```python
import torch

def _softmax(x, axis=-1):
    return torch.softmax(x, dim=axis)
def _gelu(x):
    return torch.nn.functional.gelu(x, approximate="tanh")
def _silu(x):
    return torch.nn.functional.silu(x)
def _sigmoid(x):
    return torch.sigmoid(x)
def _layernorm(x, axis=-1, eps=1e-5):
    m = x.mean(dim=axis, keepdim=True)
    v = x.var(dim=axis, keepdim=True, unbiased=False)
    return (x - m) / torch.sqrt(v + eps)
def _scatter_add(tgt, idx, src, axis=0):
    return tgt.clone().index_add_(axis, idx, src)
def _segment_sum(src, seg, n):
    out = torch.zeros((n,) + src.shape[1:], dtype=src.dtype)
    return out.index_add_(0, seg, src)
def _pad(x, pw):
    flat = tuple(v for pair in reversed(pw) for v in pair)
    return torch.nn.functional.pad(x, flat)

kernel_name = 'recurrent_scan__spectral_gfnet__mixer_channel_mlp__prompt'

def setup_inputs():

    _w = (lambda a: (lambda t: t.to(torch.bfloat16) if t.is_floating_point() else t)(torch.as_tensor(a)))
    def _A_setup():
        B, S, D = 1, 2048, 640
        Df = D // 2 + 1
        return {
            "x": _w((lambda *s: torch.randn(*s, dtype=torch.bfloat16) * 0.05)(B, S, D)),
            "w_r": _w((lambda *s: torch.randn(*s, dtype=torch.bfloat16) * 0.8)(S, Df) * 0.02),
            "w_i": _w((lambda *s: torch.randn(*s, dtype=torch.bfloat16) * 0.8)(S, Df) * 0.02),
        }
    _A_in = _A_setup()

    def _B_setup():
        B, S, D, F = 1, 2048, 640, 1728
        return {
            "x": _w((lambda *s: torch.randn(*s, dtype=torch.bfloat16) * 0.05)(B, S, D)),
            "w1": _w((lambda *s: torch.randn(*s, dtype=torch.bfloat16) * 0.8)(D, F) * (D ** -0.5)),
            "b1": _w((lambda *s: torch.randn(*s, dtype=torch.bfloat16) * 0.8)(F)),
            "w2": _w((lambda *s: torch.randn(*s, dtype=torch.bfloat16) * 0.8)(F, D) * (F ** -0.5)),
            "b2": _w((lambda *s: torch.randn(*s, dtype=torch.bfloat16) * 0.2)(D)),
        }
    _B_in = _B_setup()

    return {
        "A_x": _A_in["x"],
        "A_w_r": _A_in["w_r"],
        "A_w_i": _A_in["w_i"],
        "B_x": _B_in["x"],
        "B_w1": _B_in["w1"],
        "B_b1": _B_in["b1"],
        "B_w2": _B_in["w2"],
        "B_b2": _B_in["b2"],
    }

def reference(A_x, A_w_r, A_w_i, B_x, B_w1, B_b1, B_w2, B_b2):
    def _A_ref(x, w_r, w_i):
        B, S, D = x.shape
        X = (lambda x, axes=(-2,-1): torch.fft.rfft2(x.float(), dim=axes))(x, axes=(-2, -1))
        W = w_r + 1j * w_i
        X = X * W
        y = (lambda x, s, axes=(-2,-1): torch.fft.irfft2(x, s=s, dim=axes).to(torch.bfloat16))(X, (S, D), axes=(-2, -1))
        return y

    def _B_ref(x, w1, b1, w2, b2):
        y = _layernorm(x, axis=-1)
        h = _gelu(torch.einsum("bsd,df->bsf", y, w1) + b1)
        return torch.einsum("bsf,fd->bsd", h, w2) + b2

    x = A_x
    xn = _layernorm(x, axis=-1)
    s = _A_ref(xn, A_w_r, A_w_i)
    g = _silu(_B_ref(xn, B_w1, B_b1, B_w2, B_b2))
    return x + s * g
```

```python
import re

TRANS = ("v_exp_f32", "v_log_f32", "v_rcp_f32", "v_rsq_f32", "v_sqrt_f32", "v_sin_f32", "v_cos_f32")

def _regs(tok):
    tok = tok.strip()
    neg = tok.lstrip('-')
    m = re.fullmatch(r"(?:abs\()?([vsa])(\d+)\)?", neg)
    if m: return [(m.group(1), int(m.group(2)))]
    m = re.fullmatch(r"([vsa])\[(\d+):(\d+)\]", neg)
    if m: return [(m.group(1), i) for i in range(int(m.group(2)), int(m.group(3)) + 1)]
    if neg == "vcc": return [('s', 106), ('s', 107)]
    if neg == "m0": return [('s', 124)]
    if neg == "exec": return [('s', 126), ('s', 127)]
    return []

class Ins:
    __slots__ = ("text", "op", "dst", "src", "kind", "passes", "srcA", "srcC", "dpp", "states")
    def __init__(self, text):
        self.text = text
        t = text.split(";")[0].strip()
        parts = t.split(None, 1)
        self.op = parts[0]
        ops = []
        if len(parts) > 1:
            cur = ""; depth = 0
            for ch in parts[1]:
                if ch == '[': depth += 1
                if ch == ']': depth -= 1
                if ch == ',' and depth == 0: ops.append(cur); cur = ""
                else: cur += ch
            ops.append(cur)
        ops = [o.strip() for o in ops]
        if ops:
            last = ops[-1].split()
            ops[-1] = last[0] if last else ""
        op = self.op
        self.dpp = ("dpp" in op) or ("quad_perm" in t) or ("row_" in t and op.startswith("v_"))
        self.passes = 0; self.srcA = []; self.srcC = []; self.states = 1
        self.dst = []; self.src = []
        if op == "s_nop":
            self.kind = "nop"; self.states = int(ops[0], 0) + 1
        elif op.startswith("v_mfma"):
            self.kind = "mfma"
            self.passes = 8 if "32x32x16" in op else (4 if "16x16x32" in op else 2)
            self.dst = _regs(ops[0]); self.srcA = _regs(ops[1]) + _regs(ops[2]); self.srcC = _regs(ops[3])
            self.src = self.srcA + self.srcC
        elif op.startswith("v_"):
            self.kind = "valu"
            if op.startswith("v_cmp"):
                self.dst = _regs(ops[0]); self.src = sum((_regs(o) for o in ops[1:]), [])
            elif op.startswith("v_permlane") :
                self.dst = _regs(ops[0]) + _regs(ops[1]); self.src = list(self.dst)
            elif op.startswith("v_readfirstlane") or op.startswith("v_readlane"):
                self.dst = _regs(ops[0]); self.src = sum((_regs(o) for o in ops[1:]), [])
            else:
                self.dst = _regs(ops[0]); self.src = sum((_regs(o) for o in ops[1:]), [])
                if "_co_" in op:
                    self.dst += _regs(ops[1]); self.src = sum((_regs(o) for o in ops[2:]), [])
                if op.startswith(("v_fmac", "v_dot2c", "v_writelane", "v_pk_fmac")): self.src += self.dst
                if op.startswith("v_cndmask") and len(ops) == 3: self.src += _regs("vcc")
        elif op.startswith(("buffer_", "global_", "flat_")):
            self.kind = "vmem"
            alls = sum((_regs(o) for o in ops), [])
            if "load" in op and " lds" not in t and "_lds_" not in op:
                self.dst = _regs(ops[0]); self.src = sum((_regs(o) for o in ops[1:]), [])
            else:
                self.src = alls
                if " lds" in t or "_lds_" in op: self.src += _regs("m0")
            if "atomic" in op and "sc0" in t: self.dst = _regs(ops[0])
        elif op.startswith("ds_"):
            self.kind = "ds"
            if op.startswith(("ds_read", "ds_bpermute", "ds_permute", "ds_swizzle")):
                self.dst = _regs(ops[0]); self.src = sum((_regs(o) for o in ops[1:]), [])
            else:
                self.src = sum((_regs(o) for o in ops), [])
        elif op.startswith("s_"):
            self.kind = "salu"
            if op.startswith(("s_cmp", "s_cbranch", "s_branch", "s_waitcnt", "s_barrier", "s_endpgm", "s_setprio", "s_sleep")):
                self.src = sum((_regs(o) for o in ops), [])
            else:
                self.dst = _regs(ops[0]) if ops else []
                self.src = sum((_regs(o) for o in ops[1:]), [])
        else:
            self.kind = "other"

def need(p, c):
    n = 0
    pd = set(p.dst)
    if p.kind == "valu":
        vd = {r for r in pd if r[0] in "va"}
        sd = {r for r in pd if r[0] == 's'}
        isdot = p.op.startswith("v_dot")
        if c.kind == "mfma" and vd & set(c.src): n = max(n, 3 if isdot else 2)
        if c.kind == "valu":
            if (c.dpp or c.op.startswith("v_permlane")) and vd & set(c.src): n = max(n, 2)
            if c.op.startswith(("v_readfirstlane", "v_readlane")) and vd & set(c.src): n = max(n, 1)
            if p.op.startswith(TRANS) and not c.op.startswith(TRANS) and vd & set(c.src): n = max(n, 1)
            if sd & set(c.src): n = max(n, 4 if c.op.startswith(("v_readlane", "v_writelane")) else 2)
            if isdot and (vd & (set(c.src) | set(c.dst))):
                same_c = (c.op == p.op and not (vd & set(c.src[:len(c.src) - len(c.dst)])))
                if not same_c: n = max(n, 3)
            if ("sdwa" in p.op or "op_sel" in p.text) and vd & set(c.src): n = max(n, 1)
        if isdot and c.kind in ("vmem", "ds") and vd & set(c.src): n = max(n, 3)
        if c.kind == "vmem" and sd & set(c.src): n = max(n, 5)
        if c.kind == "salu" and sd & set(c.src): n = max(n, 1)
        if ('s', 126) in sd and c.kind == "mfma": n = max(n, 4)
    if p.kind == "mfma":
        big = {2: 5, 4: 8, 8: 12}[p.passes]
        if c.kind == "mfma":
            if pd & set(c.srcA): n = max(n, big)
            if pd & set(c.srcC):
                if c.srcC == p.dst and c.passes == p.passes: n = max(n, 2 if p.passes == 2 else 0)
                else: n = max(n, {2: 4, 4: 6, 8: 10}[p.passes])
            elif pd & set(c.dst): n = max(n, {2: 4, 4: 6, 8: 10}[p.passes])
        elif c.kind in ("valu", "vmem", "ds"):
            if pd & (set(c.src) | set(c.dst)): n = max(n, big)
        if c.kind == "valu" and set(p.srcC) & set(c.dst): n = max(n, {2: 1, 4: 3, 8: 7}[p.passes])
    if p.kind == "salu" and ('s', 124) in pd and c.kind == "vmem" and ('s', 124) in c.src: n = max(n, 1)
    if p.kind == "vmem" and "store" in p.op and ("x4" in p.op or "x3" in p.op):
        data = set(_regs(p.text.split(None, 1)[1].split(",")[0])) if p.op.startswith("buffer") else set()
        if c.kind in ("valu", "mfma") and data & set(c.dst): n = max(n, 2)
        if c.kind in ("vmem", "ds") and data & set(c.dst): n = max(n, 1)
    return n

class Asm:
    def __init__(self):
        self.lines = []
        self.hist = []
        self.vm = []
        self.nops = 0
        import os
        self.skip = [k for k in os.environ.get("SKIP", "").split(",") if k]
        self.lg = []
    def raw(self, text):
        self.lines.append(text)
    def label(self, name):
        self.lines.append(name + ":")
    def c(self, text):
        self.lines.append("    ; " + text)
    def __call__(self, text, tag=None):
        for t in text.strip().split("\n"):
            t = t.strip()
            if not t or t.startswith(";"):
                continue
            if t.endswith(":"):
                self.label(t[:-1]); continue
            if any(t.startswith(k) or (k == "dma" and " lds" in t and t.startswith("buffer_load")) for k in self.skip):
                continue
            ins = Ins(t)
            dist = 0; req = 0
            for p in reversed(self.hist):
                req = max(req, need(p, ins) - dist)
                dist += p.states
                if dist >= 20: break
            while req > 0:
                k = min(req, 16)
                nop = Ins(f"s_nop {k-1}")
                self.lines.append(f"    s_nop {k-1}")
                self.hist.append(nop); self.nops += 1
                req -= k
            self.lines.append("    " + t)
            self.hist.append(ins)
            if len(self.hist) > 64: self.hist = self.hist[-32:]
            if ins.kind == "vmem":
                self.vm.append(tag)
            if ins.kind == "ds":
                self.lg.append(tag)
            if ins.op == "s_waitcnt":
                m = re.search(r"lgkmcnt\((\d+)\)", t)
                if m:
                    n = int(m.group(1)); self.lg = self.lg[max(0, len(self.lg) - n):] if n else []
                m = re.search(r"vmcnt\((\d+)\)", t)
                if m:
                    n = int(m.group(1)); self.vm = self.vm[max(0, len(self.vm) - n):] if n else []
    def fence(self):
        self("s_nop 15")
    def vmwait(self, tags):
        if not isinstance(tags, (list, tuple, set)): tags = [tags]
        last = -1
        for i, t in enumerate(self.vm):
            if t in tags: last = i
        if last < 0: return
        n = len(self.vm) - 1 - last
        assert n <= 63, n
        self(f"s_waitcnt vmcnt({n})")
    def lgwait(self, tags):
        if not isinstance(tags, (list, tuple, set)): tags = [tags]
        last = -1
        for i, t in enumerate(self.lg):
            if t in tags: last = i
        if last < 0: return
        n = len(self.lg) - 1 - last
        self(f"s_waitcnt lgkmcnt({min(n, 15)})")
    def lgall(self):
        self("s_waitcnt lgkmcnt(0)")
    def vmall(self):
        self("s_waitcnt vmcnt(0)")
    prof = False
    def stamp(self, i):
        if self.prof: self(f"s_memtime s[{76+2*i}:{77+2*i}]")
    def dump(self, n, srd, wave_sgpr, slot, tmp=90):
        if not self.prof: return
        self(f"""s_memrealtime s[98:99]
        s_waitcnt lgkmcnt(0)
        s_lshl_b32 s96, s2, 3
        s_add_u32 s96, s96, s{wave_sgpr}
        s_lshl_b32 s96, s96, 6
        s_add_u32 s96, s96, {0x1C00000 + slot*0x40000}
        v_mov_b32 v{tmp+1}, 0""")
        for i in range(n):
            if i: self(f"s_sub_u32 s97, s{76+2*i}, s76")
            self(f"v_mov_b32 v{tmp}, s{97 if i else 98}")
            self(f"buffer_store_dword v{tmp}, v{tmp+1}, s[{srd}:{srd+3}], s96 offen offset:{4*i}")
    def text(self):
        return "\n".join(self.lines) + "\n"

def kernel_desc(name, vgpr, sgpr=100, accum=None):
    accum = accum or ((vgpr + 3) // 4 * 4)
    return f""".p2align 6
.amdhsa_kernel {name}
  .amdhsa_next_free_vgpr {vgpr}
  .amdhsa_next_free_sgpr {sgpr}
  .amdhsa_accum_offset {accum}
  .amdhsa_group_segment_fixed_size 0
  .amdhsa_kernarg_size 88
  .amdhsa_user_sgpr_count 2
  .amdhsa_user_sgpr_kernarg_segment_ptr 1
  .amdhsa_system_sgpr_workgroup_id_x 1
.end_amdhsa_kernel
"""
def f2u(x):
    import struct
    return struct.unpack("<I", struct.pack("<f", x))[0]
def fl(x):
    return f"0x{f2u(x):08x}"
```

```python
from asmlib import *
import math

WS_H = 0
WS_T = 0x800000
WS_Y = 0xC00000
WS_SIZE = 0x2000000
ST = "sc1"

K0 = -2.0 * 0.7978845608028654 * 1.4426950408889634
K1C = K0 * 0.044715

def srd(a, base, ptr, size):
    a(f"""s_mov_b32 s{base}, s{ptr}
    s_and_b32 s{base+1}, s{ptr+1}, 0xffff
    s_mov_b32 s{base+2}, {size}
    s_mov_b32 s{base+3}, 0x00020000""")

SX, SW, SB, SS = 12, 16, 20, 24
S_V, S_RB, S_IDX, S_ROT = 28, 29, 30, 31
S_SX, S_SBO = 32, 42
S_W, S_SET = 52, 53
S_T0, S_T1, S_T2, S_T3 = 54, 55, 56, 57
S_LA, S_LB, S_LC = 58, 59, 60
S_PG = 61
S_B1 = 66
S_NP = 71
S_M4, S_M2 = 72, 73
XSLOT = 81920

def stats_math(a, vsum, vssq, t0, t1, r1, rr=None, rrm=None):
    a(f"""v_mul_f32 v{vsum}, {fl(1/640)}, v{vsum}
    v_mul_f32 v{vssq}, {fl(1/640)}, v{vssq}
    v_fma_f32 v{t0}, -v{vsum}, v{vsum}, v{vssq}
    v_max_f32 v{t0}, 0, v{t0}
    v_add_f32 v{t1}, {fl(1e-5)}, v{t0}
    v_rsq_f32 v{r1}, v{t1}""")
    if rr is not None:
        a(f"""v_mul_f32 v{t1}, v{r1}, v{r1}
        v_mul_f32 v{t1}, v{t1}, v{t0}
        v_add_f32 v{t1}, {fl(1e-5)}, v{t1}
        v_rsq_f32 v{t1}, v{t1}
        v_mul_f32 v{rr}, v{r1}, v{t1}
        v_mul_f32 v{rrm}, v{rr}, v{vsum}
        v_sub_f32 v{rrm}, 0, v{rrm}""")

VXO = 2
def prologue(a):
    a.stamp(0)
    a(f"""s_cmp_ge_u32 s2, 256
    s_cbranch_scc1 L1_end
    s_load_dwordx2 s[4:5], s[0:1], 0
    s_load_dwordx4 s[8:11], s[0:1], 32
    s_load_dwordx2 s[6:7], s[0:1], 80
    v_lshrrev_b32 v2, 6, v0
    v_and_b32 v1, 63, v0
    v_readfirstlane_b32 s{S_V}, v2
    s_and_b32 s{S_T0}, s2, 7
    s_lshr_b32 s{S_T1}, s2, 3           ; q
    s_lshr_b32 s{S_T2}, s{S_T0}, 1      ; a
    s_lshl_b32 s{S_T2}, s{S_T2}, 2
    s_and_b32 s{S_T3}, s{S_T1}, 3
    s_add_u32 s{S_RB}, s{S_T2}, s{S_T3} ; rb
    s_lshr_b32 s{S_T1}, s{S_T1}, 2      ; slot 0..7
    s_and_b32 s{S_T0}, s{S_T0}, 1       ; b
    s_mul_i32 s{S_T3}, s{S_T3}, 3
    s_add_u32 s{S_ROT}, s{S_T3}, s{S_T1} ; rot 0..16
    s_lshl_b32 s{S_IDX}, s{S_T0}, 3
    s_add_u32 s{S_IDX}, s{S_IDX}, s{S_T1}
    s_cmp_ge_u32 s{S_ROT}, 10
    s_cselect_b32 s{S_T2}, 10, 0
    s_sub_u32 s{S_ROT}, s{S_ROT}, s{S_T2}
    s_and_b32 s{S_W}, s{S_V}, 3
    s_lshr_b32 s{S_SET}, s{S_V}, 2
    s_lshl_b32 s{S_M4}, s{S_W}, 12
    s_lshl_b32 s{S_M2}, s{S_W}, 11""")
    a(f"s_mov_b32 s{S_T0}, s{S_ROT}")
    for c in range(10):
        a(f"""s_lshl_b32 s{S_SX+c}, s{S_T0}, 7
        s_mul_i32 s{S_SBO+c}, s{S_T0}, {64*3456}""")
        if c < 9:
            a(f"""s_add_u32 s{S_T0}, s{S_T0}, 1
            s_cmp_eq_u32 s{S_T0}, 10
            s_cselect_b32 s{S_T0}, 0, s{S_T0}""")
    a(f"""v_lshrrev_b32 v6, 3, v1
    v_mul_u32_u24 v6, {64*1280}, v6
    s_lshl_b32 s{S_T1}, s{S_RB}, 2
    s_add_u32 s{S_T0}, s{S_W}, s{S_T1}
    s_mul_i32 s{S_T0}, s{S_T0}, 1280
    v_add_u32 v6, s{S_T0}, v6
    v_and_b32 v7, 7, v1
    v_lshrrev_b32 v8, 4, v1
    v_xor_b32 v7, v7, v8
    v_lshl_add_u32 v{VXO}, v7, 4, v6
    v_xor_b32 v7, 4, v7
    v_lshl_add_u32 v{VXO+1}, v7, 4, v6
    v_add_u32 v{VXO+1}, {8*64*1280}, v{VXO+1}
    v_add_u32 v{VXO+2}, {16*64*1280}, v{VXO}
    v_add_u32 v{VXO+3}, {16*64*1280}, v{VXO+1}
    s_waitcnt lgkmcnt(0)""")
    srd(a, SX, 4, 2621440)
    srd(a, SW, 8, 2211840)
    srd(a, SB, 10, 3456)
    srd(a, SS, 6, WS_SIZE)

def x_dma(a, c):
    slot = c % 5
    for e in range(4):
        a(f"s_add_u32 m0, s{S_M4}, {XSLOT + slot*16384 + e*1024}")
        a(f"buffer_load_dwordx4 v{VXO+e}, s[{SX}:{SX+3}], s{S_SX+c} offen lds", tag=f"x{c}")

XF = 96; ACC = (64, 80); RING = 32
STAT = 0; CSP = 1024; B1F = 3584; PRIV = 4352; HB = 8192; SGL = 40960
V_XA, V_TR, V_SSQ, V_SUM, V_CS, V_ONE, V_RR, V_RRM, V_K1, V_HO, V_J16, V_L16, V_Q = 2, 6, 10, 11, 12, 14, 15, 16, 17, 18, 19, 20, 22
V_TRD = 24

def common_mlp_regs(a):
    a(f"""v_and_b32 v23, 31, v1                 ; i / j
    v_lshrrev_b32 v21, 5, v1              ; h
    v_lshlrev_b32 v{V_J16}, 4, v23
    v_lshlrev_b32 v{V_L16}, 4, v1
    v_add_u32 v{V_L16}, s{S_M4}, v{V_L16}
    v_lshlrev_b32 v{V_HO}, 4, v1
    v_mov_b32 v{V_K1}, {fl(K1C)}""")

def cs_publish(a, pidx, vcs):
    a(f"""v_mov_b32 v{V_Q}, v{vcs}
    v_permlane32_swap_b32 v{V_Q}, v{vcs}
    v_add_f32 v{V_Q}, v{V_Q}, v{vcs}
    s_lshl_b32 s{S_T0}, s{S_W}, 2
    v_add_u32 v{V_Q+1}, s{S_T0}, v{V_J16}""")
    a(f"ds_write_b32 v{V_Q+1}, v{V_Q} offset:{CSP + pidx*512}", tag="pub")
    a(f"v_mov_b32 v{vcs}, 0")

def handoff_write(a, acc, buf, qs=range(4)):
    for q in qs:
        a(f"ds_write_b128 v{V_L16}, v[{acc+4*q}:{acc+4*q+3}] offset:{HB + buf*16384 + q*1024}", tag="pub")

def epi_prep1(a, pidx, T):
    a(f"ds_read_b128 v[{T}:{T+3}], v{V_J16} offset:{CSP + pidx*512}", tag=f"csp{pidx}")
def epi_prep2(a, pidx, T, vpw):
    a.lgwait(f"csp{pidx}")
    a(f"""v_add_f32 v{T}, v{T}, v{T+1}
    v_add_f32 v{T+2}, v{T+2}, v{T+3}
    v_add_f32 v{T}, v{T}, v{T+2}""")
    a(f"ds_write_b32 v{vpw}, v{T} offset:{PRIV + (pidx % 2)*1024}", tag=f"pw{pidx}")
def epi_rd(a, pidx, q, b, vpr, vh16, vt):
    a.lgwait(f"pw{pidx}")
    a(f"ds_read_b128 v[{b}:{b+3}], v{vpr} offset:{PRIV + (pidx % 2)*1024 + 32*q}", tag=f"e{pidx}_{q}")
    a(f"v_add_u32 v{vt}, s{S_B1+pidx}, v{vh16}")
    a(f"ds_read_b128 v[{b+4}:{b+7}], v{vt} offset:{32*q}", tag=f"e{pidx}_{q}")
def epi_step(a, pidx, q, P, b, U, O, after_use=None):
    a.lgwait([f"e{pidx}_{q}", f"acc{pidx}"])
    for t in range(4): a(f"v_fma_f32 v{b+4+t}, v{V_RRM}, v{b+t}, v{b+4+t}")
    for t in range(4): a(f"v_fma_f32 v{P+t}, v{V_RR}, v{P+t}, v{b+4+t}")
    if after_use: after_use()
    for t in range(4): a(f"v_mul_f32 v{U+t}, v{P+t}, v{P+t}")
    for t in range(4): a(f"v_fmaak_f32 v{U+t}, v{U+t}, v{V_K1}, {fl(K0)}")
    for t in range(4): a(f"v_mul_f32 v{U+t}, v{U+t}, v{P+t}")
    for t in range(4): a(f"v_exp_f32 v{U+t}, v{U+t}")
    for t in range(4): a(f"v_add_f32 v{U+t}, 1.0, v{U+t}")
    for t in range(4): a(f"v_rcp_f32 v{U+t}, v{U+t}")
    for t in range(4): a(f"v_mul_f32 v{P+t}, v{P+t}, v{U+t}")
    o = O + 2*(q % 2)
    a(f"v_cvt_pk_bf16_f32 v{o}, v{P}, v{P+1}")
    a(f"v_cvt_pk_bf16_f32 v{o+1}, v{P+2}, v{P+3}")
    if q % 2 == 1:
        a(f"buffer_store_dwordx4 v[{O}:{O+3}], v{V_HO}, s[{SS}:{SS+3}], s{S_PG+pidx} offen offset:{1024*(q//2)} {ST}", tag="h")

def mlp(a):
    a.label("L1_mlp")
    a(f"""s_mul_i32 s{S_T0}, s{S_IDX}, 5
    s_lshr_b32 s{S_T1}, s{S_T0}, 1        ; L0
    s_and_b32 s{S_T0}, s{S_T0}, 1         ; odd
    s_add_u32 s{S_T2}, s{S_T1}, s{S_T0}   ; La
    s_lshl_b32 s{S_LA}, s{S_T2}, 7
    s_add_u32 s{S_LB}, s{S_LA}, 128
    s_lshl_b32 s{S_LC}, s{S_T1}, 7
    s_cmp_eq_u32 s{S_T0}, 0
    s_cselect_b32 s{S_T2}, 256, 64
    s_add_u32 s{S_LC}, s{S_LC}, s{S_T2}
    s_cmp_eq_u32 s{S_IDX}, 10
    s_cselect_b32 s{S_NP}, 4, 5
    s_lshl_b32 s{S_T3}, s{S_T1}, 7        ; L0*128
    s_cmp_eq_u32 s{S_SET}, 0
    s_cbranch_scc1 L1_mlpA""")
    def panel_scalars():
        a(f"""s_lshl_b32 s{S_T2}, s{S_RB}, 2
        s_add_u32 s{S_T2}, s{S_T2}, s{S_W}
        s_mul_i32 s{S_T2}, s{S_T2}, {54*2048}""")
        for p, (base, add) in enumerate(((S_LA, 0), (S_LA, 64), (S_LB, 0), (S_LB, 64), (S_LC, 0))):
            a(f"""s_add_u32 s{S_T0}, s{base}, {add}
            s_lshl_b32 s{S_PG+p}, s{S_T0}, 5
            s_add_u32 s{S_PG+p}, s{S_PG+p}, s{S_T2}
            s_sub_u32 s{S_T0}, s{S_T0}, s{S_T3}
            s_lshl_b32 s{S_T0}, s{S_T0}, 1
            s_add_u32 s{S_B1+p}, s{S_T0}, {B1F}""")
    VBP, VBS, VB1 = 6, 8, 9
    a(f"""v_lshrrev_b32 v{VBP}, 3, v1
    s_lshl_b32 s{S_T0}, s{S_W}, 4
    v_add_u32 v{VBP}, s{S_T0}, v{VBP}
    v_mul_u32_u24 v{VBP}, 3456, v{VBP}
    v_bfe_u32 v23, v1, 4, 1
    v_lshlrev_b32 v23, 2, v23
    v_and_b32 v24, 7, v1
    v_xor_b32 v23, v23, v24
    v_lshl_add_u32 v{VBP}, v23, 4, v{VBP}
    v_add_u32 v{VBP+1}, {8*3456}, v{VBP}""")
    def b_dma(c, region, sline, tag):
        a(f"s_add_u32 s{S_T0}, s{S_SBO+c}, s{sline}")
        for e in range(2):
            a(f"s_add_u32 m0, s{S_M2}, {region + c*8192 + e*1024}")
            a(f"buffer_load_dwordx4 v{VBP+e}, s[{SW}:{SW+3}], s{S_T0} offen lds", tag=tag)
    def chunk(c):
        x_dma(a, c); b_dma(c, 0, S_LA, f"x{c}")
    for c in range(3): chunk(c)
    a(f"""s_lshl_b32 s{S_T0}, s{S_W}, 7
    s_add_u32 s{S_T0}, s{S_T0}, s{S_T3}
    v_lshlrev_b32 v23, 1, v1""")
    a(f"buffer_load_short_d16_hi v{VB1}, v23, s[{SB}:{SB+3}], s{S_T0} offen", tag="b1")
    a(f"""v_lshrrev_b32 v{VBS}, 2, v1
    s_lshl_b32 s{S_T0}, s{S_W}, 4
    v_add_u32 v{VBS}, s{S_T0}, v{VBS}
    v_mul_u32_u24 v{VBS}, 3456, v{VBS}
    v_and_b32 v23, 3, v1
    v_lshl_add_u32 v{VBS}, v23, 4, v{VBS}""")
    panel_scalars()
    common_mlp_regs(a)
    VH16, VPW, VPR, VT = 10, 11, 12, 13
    a(f"""v_lshlrev_b32 v{VH16}, 4, v21
    s_lshl_b32 s{S_T0}, s{S_V}, 7
    v_lshrrev_b32 v{VPW}, 2, v{V_J16}
    v_add_u32 v{VPW}, s{S_T0}, v{VPW}
    v_add_u32 v{VPR}, s{S_T0}, v{VH16}""")
    a.stamp(1)
    for c in range(11):
        if c < 10: a.vmwait(f"x{c}")
        a("s_barrier")
        if c == 0: a.stamp(2)
        if c == 5: a.stamp(3)
        if c == 0: chunk(3)
        if c + 4 <= 9: chunk(c + 4)
        if c >= 6:
            m = c - 6
            b_dma(2*m, XSLOT, S_LB, f"p{m}"); b_dma(2*m + 1, XSLOT, S_LB, f"p{m}")
        if c == 7:
            a(f"""s_cmp_ge_u32 s{S_W}, 3
            s_cbranch_scc1 L_nob1
            s_lshl_b32 s{S_T0}, s{S_W}, 8
            v_lshl_add_u32 v23, v1, 2, s{S_T0}
            ds_write_b32 v23, v{VB1} offset:{B1F}
            L_nob1:""")
    a.vmwait(["p0", "p1", "p2", "p3"])
    a.lgall()
    a("s_barrier")
    a.stamp(4)
    AR = {0: 64, 1: 80, 2: 96, 3: 112, 4: 128}
    def rd_acc(p, buf, qs=range(4)):
        for q in qs:
            a(f"ds_read_b128 v[{AR[p]+4*q}:{AR[p]+4*q+3}], v{V_L16} offset:{HB + buf*16384 + q*1024}", tag=f"acc{p}")
    a(f"v_lshrrev_b32 v23, 1, v{V_J16}")
    a(f"s_lshl_b32 s{S_T0}, s{S_W}, 8")
    a(f"v_add_u32 v23, s{S_T0}, v23")
    a(f"ds_read_b64 v[{V_RR-1}:{V_RR}], v23 offset:{STAT}", tag="st")
    epi_prep1(a, 0, 32); epi_prep1(a, 1, 36)
    rd_acc(0, 0); rd_acc(1, 1)
    for c in range(10):
        a(f"s_add_u32 s{S_T0}, s{S_SBO+c}, s{S_LC}")
        a(f"s_lshr_b32 s{S_T1}, s{S_M2}, 1")
        a(f"s_add_u32 m0, s{S_T1}, {SGL + c*4096}")
        a(f"buffer_load_dwordx4 v{VBS}, s[{SW}:{SW+3}], s{S_T0} offen lds", tag="sg")
    epi_prep2(a, 0, 32, VPW); epi_prep2(a, 1, 36, VPW)
    a(f"v_mov_b32 v{V_RRM}, v14")
    CB = (40, 48); U = 60; O = 56
    steps = [(p, q) for p in range(4) for q in range(4)]
    def rd_step(i):
        if i < len(steps):
            p, q = steps[i]; epi_rd(a, p, q, CB[i % 2], VPR, VH16, VT)
    rd_step(0); rd_step(1)
    for i, (p, q) in enumerate(steps):
        epi_step(a, p, q, AR[p] + 4*q, CB[i % 2], U, O, after_use=lambda: rd_step(i + 2))
        if i == 2:
            a.vmwait("p4"); a.lgwait(["acc0", "acc1"]); a("s_barrier")
            a.stamp(5)
        if i == 4:
            a("s_barrier")
            a.stamp(6)
            epi_prep1(a, 2, 32); rd_acc(2, 0)
        if i == 5: epi_prep2(a, 2, 32, VPW)
        if i == 9:
            a.vmwait("sg"); a.lgwait("acc2"); a("s_barrier")
            a.stamp(7)
            epi_prep1(a, 3, 32); rd_acc(3, 1); epi_prep2(a, 3, 32, VPW)
    a(f"s_cmp_eq_u32 s{S_NP}, 4")
    a("s_cbranch_scc1 L1_end")
    a("s_barrier")
    a.stamp(8)
    epi_prep1(a, 4, 32); rd_acc(4, 0, (2, 3)); epi_prep2(a, 4, 32, VPW)
    for q in (2, 3): epi_rd(a, 4, q, CB[q % 2], VPR, VH16, VT)
    for q in (2, 3): epi_step(a, 4, q, AR[4] + 4*q, CB[q % 2], U, O)
    if a.prof: a.vmall()
    a.stamp(9)
    a.dump(10, SS, S_V, 0, tmp=32)
    a("s_endpgm")

    a.label("L1_mlpA")
    a.vm = []; a.lg = []
    a("s_setprio 1")
    panel_scalars()
    common_mlp_regs(a)
    a(f"""v_bfe_u32 v25, v1, 1, 3
    v_xor_b32 v25, v25, v21
    s_lshl_b32 s{S_T0}, s{S_W}, 5
    v_add_u32 v26, s{S_T0}, v23
    v_lshlrev_b32 v26, 7, v26
    v_lshl_add_u32 v26, v25, 4, v26
    v_add_u32 v26, {XSLOT}, v26
    v_bfe_u32 v25, v1, 2, 2               ; r
    v_lshl_add_u32 v27, v21, 3, v25       ; 8h + r
    v_bfe_u32 v28, v1, 4, 1
    v_lshlrev_b32 v28, 5, v28
    v_and_b32 v29, 3, v1
    v_lshl_add_u32 v28, v29, 3, v28       ; grp*32 + c4*8
    v_lshl_add_u32 v30, v27, 6, v28
    v_add_u32 v30, {SGL}, v30
    v_lshl_add_u32 v27, v27, 7, v28
    v_lshrrev_b32 v25, 1, v25
    v_lshl_add_u32 v27, v25, 6, v27""")
    for s in range(4):
        a(f"""s_add_u32 s{S_T0}, s{S_W}, {s}
        s_and_b32 s{S_T0}, s{S_T0}, 3
        s_lshl_b32 s{S_T1}, s{S_T0}, 5
        v_xor_b32 v{V_XA+s}, s{S_T1}, v26
        s_lshl_b32 s{S_T1}, s{S_T0}, 11
        v_add_u32 v{V_TR+s}, s{S_T1}, v27""")
    for s in range(4):
        a(f"""s_add_u32 s{S_T0}, s{S_W}, {s}
        s_and_b32 s{S_T0}, s{S_T0}, 3
        s_lshl_b32 s{S_T1}, s{S_T0}, 10
        v_add_u32 v{V_TRD+s}, s{S_T1}, v30""")
    VTX = 28
    for s in range(4): a(f"v_xor_b32 v{VTX+s}, 64, v{V_TR+s}")
    a(f"""v_mov_b32 v{V_SSQ}, 0
    v_mov_b32 v{V_SUM}, 0
    v_mov_b32 v{V_CS}, 0
    v_mov_b32 v{V_CS+1}, 0
    v_mov_b32 v{V_ONE}, 0x3f803f80""")
    def X(c):
        slot = c % 5
        if slot == 4:
            for s in range(4): a(f"v_add_u32 v{V_XA+s}, 16384, v{V_XA+s}")
        for s in range(4):
            k = 4*c + s
            a(f"ds_read_b128 v[{XF+4*k}:{XF+4*k+3}], v{V_XA+s} offset:{min(slot,3)*16384}", tag=f"X{c}")
        if slot == 4:
            for s in range(4): a(f"v_subrev_u32 v{V_XA+s}, 16384, v{V_XA+s}")
    def R(k):
        c, s = divmod(k, 4)
        if c == 8:
            a(f"v_add_u32 v{V_TR+s}, 65536, v{V_TR+s}"); a(f"v_add_u32 v{VTX+s}, 65536, v{VTX+s}")
        off = (c % 8) * 8192
        b = RING + 8*s
        for hf, vb in enumerate((V_TR + s, VTX + s)):
            a(f"ds_read_b64_tr_b16 v[{b+4*hf}:{b+4*hf+1}], v{vb} offset:{off}", tag=f"R{k}")
            a(f"ds_read_b64_tr_b16 v[{b+4*hf+2}:{b+4*hf+3}], v{vb} offset:{off+512}", tag=f"R{k}")
    a.stamp(1)
    a("s_barrier")
    a.stamp(2)
    X(0); R(0); R(1); R(2)
    a.lgwait("X0")
    for c in range(1, 11):
        a("s_barrier")
        if c == 5: a.stamp(3)
        if c <= 9: X(c)
        for s in range(4):
            k = 4*(c - 1) + s
            a.lgwait(f"R{k}")
            b = RING + 8*s
            for hf in range(2):
                acc = ACC[hf]
                src = "0" if k == 0 else f"v[{acc}:{acc+15}]"
                a(f"v_mfma_f32_32x32x16_bf16 v[{acc}:{acc+15}], v[{b+4*hf}:{b+4*hf+3}], v[{XF+4*k}:{XF+4*k+3}], {src}")
            if k + 3 < 40: R(k + 3)
            if s == 0:
                for r in range(8): a(f"v_dot2c_f32_bf16 v{V_CS + r//4}, v{b+r}, v{V_ONE}")
                for r in range(16):
                    x = XF + 16*(c - 1) + r
                    a(f"v_dot2c_f32_bf16 v{V_SSQ}, v{x}, v{x}"); a(f"v_dot2c_f32_bf16 v{V_SUM}, v{x}, v{V_ONE}")
    a(f"""v_mov_b32 v32, v{V_SUM}
    v_mov_b32 v33, v{V_SSQ}
    v_permlane32_swap_b32 v32, v{V_SUM}
    v_permlane32_swap_b32 v33, v{V_SSQ}
    v_add_f32 v32, v32, v{V_SUM}
    v_add_f32 v33, v33, v{V_SSQ}""")
    stats_math(a, 32, 33, 34, 35, 36, V_RR, V_RRM)
    handoff_write(a, ACC[0], 0); handoff_write(a, ACC[1], 1)
    a(f"""v_mov_b32 v34, v{V_RRM}
    v_mov_b32 v35, v{V_RR}
    v_lshrrev_b32 v36, 1, v{V_J16}
    s_lshl_b32 s{S_T0}, s{S_W}, 8
    v_add_u32 v36, s{S_T0}, v36
    ds_write_b64 v36, v[34:35] offset:{STAT}""")
    cs_publish(a, 0, V_CS); cs_publish(a, 1, V_CS + 1)
    for s in range(4):
        a(f"v_add_u32 v{V_TR+s}, {XSLOT - 65536}, v{V_TR+s}"); a(f"v_add_u32 v{VTX+s}, {XSLOT - 65536}, v{VTX+s}")
    a.lgall()
    a("s_barrier")
    a.stamp(4)
    def R2(g, s):
        p, c = divmod(g, 10)
        b = RING + 16*(g % 2) + 4*s
        if p < 2:
            vb = (V_TR, VTX)[p] + s
            if c == 8: a(f"v_add_u32 v{vb}, 65536, v{vb}")
            off = (c % 8) * 8192; d = 512
        else:
            vb = V_TRD + s; off = c * 4096; d = 256
        a(f"ds_read_b64_tr_b16 v[{b}:{b+1}], v{vb} offset:{off}", tag=f"Q{g}_{s}")
        a(f"ds_read_b64_tr_b16 v[{b+2}:{b+3}], v{vb} offset:{off+d}", tag=f"Q{g}_{s}")
    for s in range(4): R2(0, s)
    for g in range(30):
        p, c = divmod(g, 10)
        acc = ACC[p % 2]
        vcs = V_CS + p % 2
        if g == 7:
            a("s_barrier"); a.stamp(5)
        if g == 19:
            pass
        for s in range(4):
            a.lgwait(f"Q{g}_{s}")
            k = 4*c + s; b = RING + 16*(g % 2) + 4*s
            src = "0" if k == 0 else f"v[{acc}:{acc+15}]"
            a(f"v_mfma_f32_32x32x16_bf16 v[{acc}:{acc+15}], v[{b}:{b+3}], v[{XF+4*k}:{XF+4*k+3}], {src}")
            if g + 1 < 30 and g != 19: R2(g + 1, s)
            if g == 10 and s == 1:
                handoff_write(a, ACC[0], 0); cs_publish(a, 2, V_CS)
        if g == 10:
            a.lgwait("pub"); a("s_barrier"); a.stamp(6)
        lab = f"L_cs_{g}"
        a(f"s_cmp_lg_u32 s{S_W}, {c % 4}")
        a(f"s_cbranch_scc1 {lab}")
        for r in range(16): a(f"v_dot2c_f32_bf16 v{vcs}, v{RING + 16*(g % 2) + r}, v{V_ONE}")
        a.label(lab)
        if g == 19:
            a("s_nop 3")
            cs_publish(a, 3, V_CS + 1); handoff_write(a, ACC[1], 1)
            a.lgall(); a("s_barrier"); a.stamp(7)
            a(f"s_cmp_eq_u32 s{S_NP}, 4")
            a("s_cbranch_scc1 L1_end")
            for s in range(4): R2(20, s)
    a("s_nop 3")
    cs_publish(a, 4, V_CS); handoff_write(a, ACC[0], 0, (2, 3))
    VH16, VPW, VPR, VT = 10, 11, 12, 13
    a(f"""v_lshrrev_b32 v{VH16}, 5, v1
    v_lshlrev_b32 v{VH16}, 4, v{VH16}
    s_lshl_b32 s{S_T0}, s{S_V}, 7
    v_lshrrev_b32 v{VPW}, 2, v{V_J16}
    v_add_u32 v{VPW}, s{S_T0}, v{VPW}
    v_add_u32 v{VPR}, s{S_T0}, v{VH16}""")
    a.lgall(); a("s_barrier"); a.stamp(8)
    epi_prep1(a, 4, 32); epi_prep2(a, 4, 32, VPW)
    for q in (0, 1): epi_rd(a, 4, q, (40, 48)[q], VPR, VH16, VT)
    for q in (0, 1): epi_step(a, 4, q, ACC[0] + 4*q, (40, 48)[q], 60, 56)
    if a.prof: a.vmall()
    a.stamp(9)
    a.dump(10, SS, S_V, 0, tmp=32)
    a("s_endpgm")

def dft(a):
    a.label("L1_dft")
    a.vm = []; a.lg = []
    a(f"s_cmp_eq_u32 s{S_SET}, 0")
    a("s_cbranch_scc1 L_dnl")
    for c in range(3): x_dma(a, c)
    a.label("L_dnl")
    VF, VFS, VD, VM, VMS, VW = 6, 7, 8, 9, 10, 11
    a(f"""s_lshl_b32 s{S_T0}, s{S_IDX}, 1
    s_add_u32 s{S_LA}, s{S_T0}, s{S_SET}      ; hg
    s_lshl_b32 s{S_T0}, s{S_LA}, 4
    v_and_b32 v12, 15, v1
    v_add_u32 v12, s{S_T0}, v12               ; f (cos tables)
    v_cmp_eq_u32 vcc, 0, v12
    v_mov_b32 v13, 160
    v_cndmask_b32 v13, v12, v13, vcc          ; f (sin tables)
    s_mov_b64 s[74:75], vcc                   ; special lanes
    v_cvt_f32_u32 v{VF}, v12
    v_cvt_f32_u32 v{VFS}, v13
    v_mul_f32 v{VF}, {fl(1/640)}, v{VF}
    v_mul_f32 v{VFS}, {fl(-1/640)}, v{VFS}
    s_and_b32 s{S_T0}, s{S_V}, 1
    s_bfe_u32 s{S_T1}, s{S_V}, 0x10001
    s_cmp_eq_u32 s{S_T1}, 0
    s_cselect_b32 s{S_T2}, s{S_SX}, s{S_SX+5}
    s_lshr_b32 s{S_T2}, s{S_T2}, 1
    s_add_u32 s{S_T2}, s{S_T2}, s{S_T0}       ; d base = 64*chunk + parity
    v_lshrrev_b32 v{VD}, 4, v1
    v_lshlrev_b32 v{VD}, 3, v{VD}
    v_add_u32 v{VD}, s{S_T2}, v{VD}
    v_cvt_f32_u32 v{VD}, v{VD}
    v_add_f32 v{VD}, 0.5, v{VD}
    s_mul_i32 s{S_T2}, s{S_SET}, 40960
    s_mul_i32 s{S_T1}, s{S_T1}, 20480
    s_add_u32 s{S_T2}, s{S_T2}, s{S_T1}
    s_lshl_b32 s{S_T0}, s{S_T0}, 11
    s_add_u32 s{S_T2}, s{S_T2}, s{S_T0}
    v_lshl_add_u32 v{VW}, v1, 4, s{S_T2}
    v_mul_f32 v{VM}, 32.0, v{VF}
    v_mul_f32 v{VMS}, 32.0, v{VFS}
    v_cos_f32 v{VM}, v{VM}
    v_cos_f32 v{VMS}, v{VMS}
    v_mul_f32 v12, v{VD}, v{VF}
    v_mul_f32 v13, v{VD}, v{VFS}
    v_add_f32 v{VM}, v{VM}, v{VM}
    v_add_f32 v{VMS}, v{VMS}, v{VMS}""".replace("32.0", fl(32.0)))
    CC, SN = 64, 80
    for u in range(2):
        for e in range(4):
            dl = 32*u + 2*e
            if dl:
                a(f"v_fmamk_f32 v{CC+4*u+e}, v{VF}, {fl(dl)}, v12"); a(f"v_fmamk_f32 v{SN+4*u+e}, v{VFS}, {fl(dl)}, v13")
                a(f"v_cos_f32 v{CC+4*u+e}, v{CC+4*u+e}"); a(f"v_sin_f32 v{SN+4*u+e}, v{SN+4*u+e}")
            else:
                a(f"v_cos_f32 v{CC}, v12"); a(f"v_sin_f32 v{SN}, v13")
    for m in range(5):
        o = 96 + 8*(m % 2)
        for r in range(4):
            a(f"v_cvt_pk_bf16_f32 v{o+r}, v{CC+2*r}, v{CC+2*r+1}")
            a(f"v_cvt_pk_bf16_f32 v{o+4+r}, v{SN+2*r}, v{SN+2*r+1}")
        a(f"ds_write_b128 v{VW}, v[{o}:{o+3}] offset:{m*4096}")
        a(f"ds_write_b128 v{VW}, v[{o+4}:{o+7}] offset:{m*4096+1024}")
        if m < 4:
            for u in range(2):
                for e in range(4):
                    a(f"v_fma_f32 v{CC+4*u+e}, v{VM}, v{CC+4*(1-u)+e}, -v{CC+4*u+e}")
                    a(f"v_fma_f32 v{SN+4*u+e}, v{VMS}, v{SN+4*(1-u)+e}, -v{SN+4*u+e}")
    FO = 40
    a(f"""s_lshl_b32 s{S_T0}, s{S_RB}, 2
    s_add_u32 s{S_LC}, s{S_T0}, s{S_W}        ; n2
    v_lshrrev_b32 v12, 4, v1
    v_lshlrev_b32 v12, 8, v12
    v_add_u32 v12, s{S_LC}, v12
    v_cvt_f32_u32 v12, v12
    v_and_b32 v13, 1, v1                      ; par
    s_lshl_b32 s{S_T0}, s{S_SET}, 4
    v_and_b32 v14, 15, v1
    v_add_u32 v14, s{S_T0}, v14               ; rho
    v_lshrrev_b32 v15, 1, v14
    v_cvt_f32_u32 v15, v15
    v_cmp_eq_u32 vcc, 1, v13
    v_sub_f32 v16, 0, v15
    v_cndmask_b32 v15, v16, v15, vcc          ; -k1
    v_mov_b32 v16, 0
    v_mov_b32 v17, 0.25
    v_cndmask_b32 v16, v16, v17, vcc          ; phase
    v_cmp_eq_u32 vcc, 1, v14
    v_mov_b32 v17, {fl(-16.0)}
    v_cndmask_b32 v15, v15, v17, vcc
    v_mov_b32 v17, 0
    v_cndmask_b32 v16, v16, v17, vcc
    v_mul_f32 v15, {fl(1/2048)}, v15
    v_fma_f32 v16, v15, v12, v16""")
    for jj in range(8):
        dn = 64*(16*(jj//4) + jj % 4)
        if dn == 0: a(f"v_mov_b32 v{18+jj}, v16")
        else: a(f"v_fmamk_f32 v{18+jj}, v15, {fl(dn)}, v16")
    for jj in range(8):
        a(f"v_sin_f32 v{26+jj}, v{18+jj}"); a(f"v_cos_f32 v{18+jj}, v{18+jj}")
    for r in range(4):
        a(f"v_cvt_pk_bf16_f32 v{FO+r}, v{18+2*r}, v{19+2*r}")
        a(f"v_cvt_pk_bf16_f32 v{FO+4+r}, v{26+2*r}, v{27+2*r}")
    XA = 6; VB = 10; SE, SO, ON = 11, 12, 13; ST0 = 14
    a(f"""v_and_b32 v18, 15, v1
    v_lshrrev_b32 v19, 4, v1
    v_bfe_u32 v20, v1, 1, 3
    v_xor_b32 v20, v20, v19
    s_lshl_b32 s{S_T0}, s{S_W}, 5
    v_add_u32 v18, s{S_T0}, v18
    v_lshlrev_b32 v18, 7, v18
    v_lshl_add_u32 v{XA}, v20, 4, v18
    v_add_u32 v{XA}, {XSLOT}, v{XA}
    v_xor_b32 v{XA+1}, 64, v{XA}
    v_add_u32 v{XA+2}, 2048, v{XA}
    v_add_u32 v{XA+3}, 2048, v{XA+1}
    s_mul_i32 s{S_T0}, s{S_SET}, 40960
    v_lshl_add_u32 v{VB}, v1, 4, s{S_T0}
    v_mov_b32 v{SE}, 0x05040100
    v_mov_b32 v{SO}, 0x07060302
    v_mov_b32 v{ON}, 0x3f803f80
    v_mov_b32 v{ST0}, 0
    v_mov_b32 v{ST0+1}, 0
    v_mov_b32 v{ST0+2}, 0
    v_mov_b32 v{ST0+3}, 0
    s_waitcnt lgkmcnt(0)""")
    XRB = (64, 80); TBB = (96, 112); EO = 128; AC = 144
    a.stamp(1)
    vmB = list(a.vm)
    for c in range(11):
        if c < 10:
            need = [t for t in a.vm if t == f"x{c}"]
            a.vmwait(f"x{c}")
            a("s_barrier")
            if c == 0: a.stamp(2)
            if c == 5: a.stamp(3)
            slot = c % 5
            XR, TB = XRB[c % 2], TBB[c % 2]
            if slot == 4:
                for s in range(4): a(f"v_add_u32 v{XA+s}, 16384, v{XA+s}")
            for s in range(4):
                a(f"ds_read_b128 v[{XR+4*s}:{XR+4*s+3}], v{XA+s} offset:{min(slot,3)*16384}", tag=f"X{c}")
            for ty in range(4):
                a(f"ds_read_b128 v[{TB+4*ty}:{TB+4*ty+3}], v{VB} offset:{c*4096 + ty*1024}", tag=f"X{c}")
            if slot == 4:
                for s in range(4): a(f"v_subrev_u32 v{XA+s}, 16384, v{XA+s}")
            todo = ([3] if c == 0 else []) + ([c + 4] if c + 4 <= 9 else [])
            if todo:
                a(f"s_cmp_eq_u32 s{S_SET}, 0")
                a(f"s_cbranch_scc1 L_dl_{c}")
                for cc in todo: x_dma(a, cc)
                a.label(f"L_dl_{c}")
        if c >= 1:
            XR, TB = XRB[(c - 1) % 2], TBB[(c - 1) % 2]
            def perm(t):
                for ks in range(2):
                    for r in range(2):
                        lo = XR + 8*t + 4*ks + 2*r
                        a(f"v_perm_b32 v{EO+8*t+2*ks+r}, v{lo+1}, v{lo}, v{SE}")
                        a(f"v_perm_b32 v{EO+8*t+4+2*ks+r}, v{lo+1}, v{lo}, v{SO}")
            def mm(t, ty):
                acc = AC + 8*ty + 4*t; xs = EO + 8*t + 4*(ty // 2)
                src = "0" if c == 1 else f"v[{acc}:{acc+3}]"
                a(f"v_mfma_f32_16x16x32_bf16 v[{acc}:{acc+3}], v[{xs}:{xs+3}], v[{TB+4*ty}:{TB+4*ty+3}], {src}")
            perm(0); perm(1)
            for t in range(2):
                for ty in range(4): mm(t, ty)
            a(f"s_cmp_eq_u32 s{S_SET}, 1")
            a(f"s_cbranch_scc1 L_ds_{c}")
            for r in range(16):
                a(f"v_dot2c_f32_bf16 v{ST0+2*(r//8)}, v{XR+r}, v{XR+r}"); a(f"v_dot2c_f32_bf16 v{ST0+1+2*(r//8)}, v{XR+r}, v{ON}")
            a.label(f"L_ds_{c}")
        a.lgall()
    a.stamp(4)
    a(f"""s_lshl_b32 s{S_T0}, s{S_V}, 11
    s_add_u32 s{S_T0}, s{S_T0}, {XSLOT + 1024}
    v_lshl_add_u32 v18, v1, 4, s{S_T0}
    ds_write_b128 v18, v[{FO}:{FO+3}]
    ds_write_b128 v18, v[{FO+4}:{FO+7}] offset:1024
    v_xor_b32 v18, 8192, v18
    s_cmp_eq_u32 s{S_SET}, 1
    s_cbranch_scc1 L_dst""")
    for i in range(4):
        a(f"""v_mov_b32 v{20+i}, v{ST0+i}""")
    for i in range(4): a(f"v_permlane32_swap_b32 v{20+i}, v{ST0+i}")
    for i in range(4): a(f"v_add_f32 v{ST0+i}, v{ST0+i}, v{20+i}")
    for i in range(4): a(f"v_mov_b32 v{20+i}, v{ST0+i}")
    for i in range(4): a(f"v_permlane16_swap_b32 v{20+i}, v{ST0+i}")
    for i in range(4): a(f"v_add_f32 v{ST0+i}, v{ST0+i}, v{20+i}")
    stats_math(a, ST0 + 1, ST0, 20, 21, 22)
    stats_math(a, ST0 + 3, ST0 + 2, 20, 21, 23)
    a(f"""s_lshl_b32 s{S_T0}, s{S_W}, 7
    v_and_b32 v20, 15, v1
    v_lshl_add_u32 v20, v20, 2, s{S_T0}
    v_add_u32 v20, {XSLOT}, v20
    ds_write2_b32 v20, v22, v23 offset0:0 offset1:16
    L_dst:
    s_lshl_b32 s{S_T0}, s{S_W}, 7
    v_lshrrev_b32 v19, 4, v1
    v_lshl_add_u32 v19, v19, 4, s{S_T0}
    v_add_u32 v19, {XSLOT}, v19
    s_waitcnt lgkmcnt(0)
    s_barrier
    ds_read_b128 v[24:27], v19
    ds_read_b128 v[28:31], v19 offset:64
    ds_read_b128 v[48:51], v18
    ds_read_b128 v[52:55], v18 offset:1024
    s_waitcnt lgkmcnt(2)""")
    for i in range(8):
        er, ei, orr, oi, rho = AC + i, AC + 8 + i, AC + 16 + i, AC + 24 + i, 24 + i
        a(f"""v_mul_f32 v20, v{orr}, v{rho}
        v_mul_f32 v21, v{oi}, v{rho}
        v_fma_f32 v{oi}, -v{er}, v{rho}, v20
        v_fma_f32 v{er}, v{er}, v{rho}, v20
        v_fma_f32 v{orr}, -v{ei}, v{rho}, v21
        v_fma_f32 v{ei}, v{ei}, v{rho}, v21
        v_cndmask_b32 v{er}, v{er}, v{orr}, s[74:75]
        v_cndmask_b32 v{orr}, v{orr}, 0, s[74:75]""")
    XB = 64
    for ty in range(4):
        for r in range(4):
            a(f"v_cvt_pk_bf16_f32 v{XB+4*ty+r}, v{AC+8*ty+2*r}, v{AC+8*ty+2*r+1}")
    a("s_waitcnt lgkmcnt(0)")
    FRr, FIr, FNr = (40, 48), (44, 52), (56, 60)
    for u in range(2):
        for r in range(4): a(f"v_xor_b32 v{FNr[u]+r}, 0x80008000, v{FIr[u]+r}")
    OUT = 80
    def o(sgn, cc, u): return OUT + 16*sgn + 8*cc + 4*u
    for sgn in range(2):
        xr, xi = XB + 8*sgn, XB + 8*sgn + 4
        for u in range(2):
            a(f"v_mfma_f32_16x16x32_bf16 v[{o(sgn,0,u)}:{o(sgn,0,u)+3}], v[{FRr[u]}:{FRr[u]+3}], v[{xr}:{xr+3}], 0")
            a(f"v_mfma_f32_16x16x32_bf16 v[{o(sgn,1,u)}:{o(sgn,1,u)+3}], v[{FIr[u]}:{FIr[u]+3}], v[{xr}:{xr+3}], 0")
        for u in range(2):
            a(f"v_mfma_f32_16x16x32_bf16 v[{o(sgn,0,u)}:{o(sgn,0,u)+3}], v[{FNr[u]}:{FNr[u]+3}], v[{xi}:{xi+3}], v[{o(sgn,0,u)}:{o(sgn,0,u)+3}]")
            a(f"v_mfma_f32_16x16x32_bf16 v[{o(sgn,1,u)}:{o(sgn,1,u)+3}], v[{FRr[u]}:{FRr[u]+3}], v[{xi}:{xi+3}], v[{o(sgn,1,u)}:{o(sgn,1,u)+3}]")
    a(f"""s_lshl_b32 s{S_T0}, s{S_V}, 12
    v_lshrrev_b32 v14, 4, v1
    v_lshlrev_b32 v14, 7, v14
    v_and_b32 v15, 15, v1
    v_lshl_add_u32 v14, v15, 2, v14
    v_add_u32 v14, s{S_T0}, v14
    s_lshl_b32 s{S_T1}, s{S_SET}, 9
    v_add_u32 v14, s{S_T1}, v14
    v_xor_b32 v13, 512, v14
    v_lshl_add_u32 v15, v1, 4, s{S_T0}
    v_lshrrev_b32 v16, 2, v1
    v_mul_u32_u24 v16, 163840, v16
    v_and_b32 v17, 3, v1
    v_lshl_add_u32 v16, v17, 4, v16
    s_lshl_b32 s{S_T0}, s{S_LA}, 14
    s_lshl_b32 s{S_T1}, s{S_LC}, 6
    s_add_u32 s{S_T0}, s{S_T0}, s{S_T1}
    s_add_u32 s{S_T0}, s{S_T0}, {WS_T}""")
    for sgn in range(2):
        for cc in range(2):
            it = 2*sgn + cc
            for u in range(2):
                r = o(sgn, cc, u)
                a(f"v_cvt_pk_bf16_f32 v{r}, v{r}, v{r+1}")
                a(f"v_cvt_pk_bf16_f32 v{r+1}, v{r+2}, v{r+3}")
                a(f"ds_write_b32 v{14-u}, v{r} offset:{it*1024}", tag=f"w{it}")
                a(f"ds_write_b32 v{14-u}, v{r+1} offset:{it*1024+64}", tag=f"w{it}")
    for it in range(4):
        a(f"ds_read_b128 v[{64+4*it}:{67+4*it}], v15 offset:{it*1024}", tag=f"r{it}")
    for it in range(4):
        a.lgwait(f"r{it}")
        a(f"s_add_u32 s{S_T1}, s{S_T0}, {it*4096}")
        a(f"buffer_store_dwordx4 v[{64+4*it}:{67+4*it}], v16, s[{SS}:{SS+3}], s{S_T1} offen {ST}")
    a.stamp(5)
    if a.prof: a.vmall()
    a.stamp(6)
    a.dump(7, SS, S_V, 0, tmp=32)
    a("s_endpgm")

def k1(prof=False):
    a = Asm(); a.prof = prof
    prologue(a)
    a(f"""s_cmp_lt_u32 s{S_IDX}, 6
    s_cbranch_scc1 L1_mlp
    s_sub_u32 s{S_IDX}, s{S_IDX}, 6
    s_cmp_lt_u32 s{S_IDX}, 2
    s_cbranch_scc1 L1_dft
    s_add_u32 s{S_IDX}, s{S_IDX}, 4
    s_cmp_lt_u32 s{S_IDX}, 11
    s_cbranch_scc1 L1_mlp
    s_sub_u32 s{S_IDX}, s{S_IDX}, 9
    s_branch L1_dft""")
    mlp(a)
    dft(a)
    a.label("L1_end")
    a("s_endpgm")
    return a
```

```python
from asmlib import *
from k1 import srd, WS_T, WS_Y, WS_SIZE, ST

def merge(a, mf, va):
    n = len(mf); m = len(va); j = 0
    for i in range(n):
        a(mf[i])
        k = (i + 1) * m // n
        while j < k:
            x = va[j]; j += 1
            x() if callable(x) else a(x)

WPAR = 10304
def fft_body(a, SWW, SS, s_w, s_jp, s_g, t, LW, LT, lab):
    HP, F0, K1W, T0, T1, T2, PHI = t[:7]
    a(f"""s_cmp_eq_u32 s{s_g}, 4
    s_cbranch_scc1 {lab}_g4
    s_and_b32 s{T0}, s{s_g}, 1
    s_lshl_b32 s{T0}, s{T0}, 2
    s_add_u32 s{T0}, s{T0}, s{s_w}          ; hg
    s_lshr_b32 s{T1}, s{s_g}, 1             ; sgn
    s_and_b32 s{F0}, s{s_g}, 1
    s_lshl_b32 s{F0}, s{F0}, 6
    s_sub_u32 s{T2}, 257, s{F0}
    s_cmp_eq_u32 s{T1}, 0
    s_cselect_b32 s{F0}, s{F0}, s{T2}
    s_branch {lab}_gd
    {lab}_g4:
    s_and_b32 s{T0}, s{s_w}, 1
    s_add_u32 s{T0}, s{T0}, 8
    s_lshr_b32 s{T1}, s{s_w}, 1
    s_mov_b32 s{F0}, 128
    {lab}_gd:
    s_lshl_b32 s{HP}, s{T0}, 1
    s_add_u32 s{HP}, s{HP}, s{T1}""")
    a(f"""v_and_b32 v4, 1, v1                  ; par
    v_bfe_u32 v5, v1, 1, 4                ; l
    s_lshl_b32 s{T0}, s{T0}, 4
    v_add_u32 v5, s{T0}, v5               ; 16hg + l
    v_cmp_eq_u32 vcc, 0, v5
    s_cmp_eq_u32 s{T1}, 0
    s_cselect_b64 s[{t[8]}:{t[9]}], vcc, 0
    v_sub_u32 v6, 320, v5
    s_cselect_b64 vcc, -1, 0
    v_cndmask_b32 v5, v6, v5, vcc         ; f
    v_subrev_u32 v5, s{F0}, v5
    v_lshlrev_b32 v5, 1, v5               ; 2*frel
    s_sub_u32 s{T2}, 0, s{s_jp}
    s_cmp_eq_u32 s{s_jp}, 0
    s_cselect_b32 s{T2}, 16, s{T2}
    v_mov_b32 v6, s{s_jp}
    v_mov_b32 v7, s{T2}
    v_cmp_eq_u32 vcc, 1, v4
    v_cndmask_b32 v6, v6, v7, vcc         ; k1(par)
    v_add_u32 v7, s{F0}, v6
    v_lshlrev_b32 v7, 1, v7
    v_and_b32 v7, 15, v7
    v_add_u32 v5, v5, v7
    v_lshlrev_b32 v6, 1, v6
    v_and_b32 v6, 15, v6
    v_add_u32 v6, 144, v6                 ; (2k1+320)&15 = 2k1&15
    v_cndmask_b32 v5, v5, v6, s[{t[8]}:{t[9]}]
    v_mul_u32_u24 v4, {WPAR}, v4
    v_lshrrev_b32 v6, 5, v1
    v_mul_u32_u24 v6, 640, v6
    v_add3_u32 v2, v4, v5, v6
    v_add_u32 v2, {LW}, v2
    s_and_b32 s{T0}, s{s_w}, 1
    s_cmp_eq_u32 s{T0}, 0
    s_cselect_b32 s{K1W}, s{s_jp}, s{T2}""")
    a(f"""v_lshlrev_b32 v3, 4, v1
    s_mul_i32 s{T0}, s{s_jp}, 20
    s_add_u32 s{T0}, s{T0}, s{HP}
    s_lshl_b32 s{T0}, s{T0}, 13
    s_add_u32 s{T0}, s{T0}, {WS_T}
    s_lshl_b32 s{T1}, s{s_w}, 13
    s_add_u32 s{T1}, s{T1}, {LT}""")
    def t_dma():
        for i in range(8):
            if i == 4: a(f"s_add_u32 s{T0}, s{T0}, 4096"); a(f"s_add_u32 s{T1}, s{T1}, 4096")
            if i % 4 == 0: a(f"s_mov_b32 m0, s{T1}")
            a(f"buffer_load_dwordx4 v3, s[{SS}:{SS+3}], s{T0} offen offset:{(i%4)*1024} lds", tag="t")
    t_dma()
    a(f"""s_mul_i32 s{T0}, s{K1W}, 642
    s_lshl_b32 s{T1}, s{F0}, 1
    s_add_u32 s{T1}, s{T1}, s{T0}
    s_and_b32 s{T1}, s{T1}, -16           ; B
    s_add_u32 s{T0}, s{T0}, 320
    s_and_b32 s{T0}, s{T0}, -16
    s_sub_u32 s{T0}, s{T0}, s{T1}
    s_sub_u32 s{T0}, s{T0}, 144           ; C9
    s_mul_i32 s{T2}, s{s_w}, {WPAR}
    s_add_u32 s{T2}, s{T2}, {LW}
    v_mov_b32 v8, s{T0}
    s_mov_b32 s{PHI}, 20544""")
    for i in range(5):
        a(f"""v_add_u32 v4, {64*i}, v1
        v_mul_u32_u24 v5, 6554, v4
        v_lshrrev_b32 v5, 16, v5
        v_mul_u32_u24 v6, 10, v5
        v_sub_u32 v6, v4, v6
        v_cmp_eq_u32 vcc, 9, v6
        v_lshl_add_u32 v6, v6, 4, s{T1}
        v_mad_u32_u24 v{10+i}, v5, s{PHI}, v6
        v_cndmask_b32 v7, 0, v8, vcc
        v_add_u32 v{10+i}, v{10+i}, v7""")
    a(f"""v_add_u32 v15, {32*20544}, v10
    s_cmp_lt_i32 s{K1W}, 0
    s_cselect_b32 s{T0}, {2048*642}, 0
    v_add_u32 v4, s{T0}, v10
    v_cmp_gt_u32 vcc, 10, v1
    v_cndmask_b32 v10, v10, v4, vcc
    s_mov_b32 s{T0}, {32*20544}""")
    for i in range(10):
        a(f"s_add_u32 m0, s{T2}, {i*1024}")
        if i < 5: a(f"buffer_load_dwordx4 v{10+i}, s[{SWW}:{SWW+3}], 0 offen lds", tag="w")
        elif i == 5: a(f"buffer_load_dwordx4 v15, s[{SWW}:{SWW+3}], 0 offen lds", tag="w")
        else: a(f"buffer_load_dwordx4 v{10+i-5}, s[{SWW}:{SWW+3}], s{T0} offen lds", tag="w")
    C, SN = 16, 48
    a(f"""v_and_b32 v4, 31, v1
    v_cvt_f32_u32 v5, v4
    v_mul_f32 v5, {fl(1/64)}, v5           ; a/64
    v_lshrrev_b32 v6, 5, v1
    v_lshlrev_b32 v6, 2, v6
    v_cvt_f32_u32 v6, v6
    v_mul_f32 v6, v6, v5                  ; a*4h/64
    v_and_b32 v4, 1, v4
    v_mov_b32 v7, 0x80008000
    v_cmp_eq_u32 vcc, 1, v4
    v_cndmask_b32 v7, 0, v7, vcc""")
    for s in range(2):
        for jj in range(8):
            b = 16*s + 8*(jj//4) + jj % 4
            if b: a(f"v_fmamk_f32 v{128+jj}, v5, {fl(b)}, v6")
            else: a(f"v_mov_b32 v{128+jj}, v6")
        for jj in range(8):
            a(f"v_sin_f32 v{136+jj}, v{128+jj}"); a(f"v_cos_f32 v{128+jj}, v{128+jj}")
        for r in range(4):
            a(f"v_cvt_pk_bf16_f32 v{C+4*s+r}, v{128+2*r}, v{129+2*r}")
            a(f"v_cvt_pk_bf16_f32 v{SN+4*s+r}, v{136+2*r}, v{137+2*r}")
    for base in (C, SN):
        for r in range(8): a(f"v_xor_b32 v{base+8+r}, v7, v{base+r}")
        for r in range(16): a(f"v_xor_b32 v{base+16+r}, 0x80000000, v{base+r}")
    a(f"""s_lshl_b32 s{T1}, s{s_w}, 13
    s_add_u32 s{T1}, s{T1}, {LT}
    v_lshrrev_b32 v5, 5, v1               ; h
    v_bfe_u32 v6, v1, 2, 2
    v_lshl_add_u32 v6, v5, 2, v6          ; 4h + r
    v_lshlrev_b32 v6, 6, v6
    v_bfe_u32 v7, v1, 4, 1
    v_lshl_add_u32 v6, v7, 5, v6
    v_and_b32 v7, 3, v1
    v_lshl_add_u32 v6, v7, 3, v6
    v_add_u32 v4, s{T1}, v6
    s_lshr_b32 s{PHI}, s{s_jp}, 1
    s_and_b32 s{PHI}, s{PHI}, 2
    v_and_b32 v6, 7, v1
    v_xor_b32 v6, v6, v5
    v_xor_b32 v6, s{PHI}, v6
    v_and_b32 v7, 31, v1
    v_lshlrev_b32 v7, 7, v7
    v_lshl_add_u32 v8, v6, 4, v7
    v_add_u32 v8, s{T1}, v8               ; (par 0, c 0)
    v_xor_b32 v9, 32, v8                  ; c 1
    v_xor_b32 v10, 64, v8                 ; par 1, c 0
    v_xor_b32 v11, 96, v8
    v_lshrrev_b32 v6, 3, v1
    v_and_b32 v7, 7, v1
    v_xor_b32 v12, v6, v7
    v_lshlrev_b32 v12, 4, v12
    v_lshl_add_u32 v12, v6, 7, v12
    v_add_u32 v12, s{T1}, v12
    v_mul_u32_u24 v13, 40960, v6
    v_lshl_add_u32 v13, v7, 4, v13""")
    a.stamp(1)
    a.vmwait("t")
    BR, BI, NB = 80, 96, 112
    for s in range(4):
        for cc, b in ((0, BR), (1, BI)):
            a(f"ds_read_b64_tr_b16 v[{b+4*s}:{b+4*s+1}], v4 offset:{cc*4096 + s*1024}", tag=f"b{s}")
            a(f"ds_read_b64_tr_b16 v[{b+4*s+2}:{b+4*s+3}], v4 offset:{cc*4096 + s*1024 + 512}", tag=f"b{s}")
    a.vmwait("w")
    a("s_barrier")
    a.stamp(2)
    WR, WI = 192, 208
    def wread(tau, r):
        q, tt = divmod(r, 4)
        off = (32*tau + 8*q + tt) * 160
        a(f"ds_read_u16_d16_hi v{WR+r}, v2 offset:{off}", tag=f"w{tau}_{r}")
        a(f"ds_read_u16_d16_hi v{WI+r}, v2 offset:{off + 2*WPAR}", tag=f"w{tau}_{r}")
    def M(d, A, B, first): return f"v_mfma_f32_32x32x16_bf16 v[{d}:{d+15}], v[{A}:{A+3}], v[{B}:{B+3}], " + ("0" if first else f"v[{d}:{d+15}]")
    DR, DI = (128, 160), (144, 176)
    def step2(tau):
        o = []
        for s in range(4):
            c, sn = C + 16*tau + 4*s, SN + 16*tau + 4*s
            o += [M(DR[tau], c, BR+4*s, s == 0), M(DI[tau], c, BI+4*s, s == 0), M(DR[tau], sn, BI+4*s, False), M(DI[tau], sn, NB+4*s, False)]
        return o
    m0 = step2(0)
    for s in range(4):
        a.lgwait(f"b{s}")
        for r in range(4): a(f"v_xor_b32 v{NB+4*s+r}, 0x80008000, v{BR+4*s+r}")
        for i in range(4):
            a(m0[4*s+i])
            wread(0, 4*s + i)
    ZR, ZI, ZN = (224, 112), (232, 120), (240, 248)
    def wmul(tau):
        o = []
        for g4 in range(4):
            rs = range(4*g4, 4*g4 + 4)
            o.append(lambda g4=g4: a.lgwait(f"w{tau}_{4*g4+3}"))
            for i, r in enumerate(rs): o.append(f"v_mul_f32 v{4+i}, v{DR[tau]+r}, v{WR+r}")
            for i, r in enumerate(rs): o.append(f"v_mul_f32 v{DR[tau]+r}, v{DR[tau]+r}, v{WI+r}")
            for i, r in enumerate(rs): o.append(f"v_fma_f32 v{4+i}, -v{DI[tau]+r}, v{WI+r}, v{4+i}")
            for i, r in enumerate(rs): o.append(f"v_fmac_f32 v{DR[tau]+r}, v{DI[tau]+r}, v{WR+r}")
            if tau == 0:
                for r in rs: o.append(lambda r=r: wread(1, r))
            for i, r in enumerate(rs): o.append(f"v_subrev_f32_dpp v{DI[tau]+r}, v{4+i}, v{DR[tau]+r} quad_perm:[1,0,3,2] row_mask:0xf bank_mask:0xf")
            for i, r in enumerate(rs): o.append(f"v_add_f32_dpp v{4+i}, v{DR[tau]+r}, v{4+i} quad_perm:[1,0,3,2] row_mask:0xf bank_mask:0xf")
            for k in range(2):
                z = 2*g4 + k
                o.append(f"v_cvt_pk_bf16_f32 v{ZI[tau]+z}, v{DI[tau]+4*g4+2*k}, v{DI[tau]+4*g4+2*k+1}")
            for k in range(2):
                z = 2*g4 + k
                o.append(f"v_cvt_pk_bf16_f32 v{ZR[tau]+z}, v{4+2*k}, v{5+2*k}")
                o.append(f"v_xor_b32 v{ZN[tau]+z}, 0x80008000, v{ZI[tau]+z}")
        return o
    merge(a, step2(1), wmul(0))
    YR, YI = (128, 80), (144, 96)
    def step3(ss):
        o = []
        for s in ss:
            tau, k = divmod(s, 2)
            zr, zi, zn = ZR[tau] + 4*k, ZI[tau] + 4*k, ZN[tau] + 4*k
            for tp in range(2):
                c, sn = C + 16*tp + 4*s, SN + 16*tp + 4*s
                o += [M(YR[tp], zr, c, s == 0), M(YI[tp], zi, c, s == 0)]
            for tp in range(2):
                c, sn = C + 16*tp + 4*s, SN + 16*tp + 4*s
                o += [M(YR[tp], zn, sn, False), M(YI[tp], zr, sn, False)]
        return o
    merge(a, step3((0, 1)), wmul(1))
    for x in step3((2, 3)): a(x)
    a.stamp(3)
    a(f"s_cmp_lg_u32 s{s_jp}, 0")
    a(f"s_cbranch_scc1 {lab}_ns")
    a(f"""v_and_b32 v4, 31, v1
    v_cvt_f32_u32 v4, v4
    v_mul_f32 v4, {fl(1/128)}, v4
    v_cos_f32 v5, v4
    v_sin_f32 v6, v4
    s_nop 7
    v_mul_f32 v5, 0.5, v5
    v_mul_f32 v6, 0.5, v6""")
    for tp in range(2):
        if tp == 1:
            a("v_mov_b32 v7, v5"); a("v_sub_f32 v5, 0, v6"); a("v_mov_b32 v6, v7")
        for pr in range(8):
            ar, br, ai, bi = YR[tp]+2*pr, YR[tp]+2*pr+1, YI[tp]+2*pr, YI[tp]+2*pr+1
            a(f"""v_sub_f32 v14, v{br}, v{ai}
            v_add_f32 v15, v{bi}, v{ar}
            v_sub_f32 v{ar}, v{ar}, v{bi}
            v_add_f32 v{ai}, v{ai}, v{br}
            v_mul_f32 v{br}, v5, v14
            v_mul_f32 v{bi}, v6, v14
            v_mul_f32 v{ar}, 0.5, v{ar}
            v_mul_f32 v{ai}, 0.5, v{ai}
            v_fma_f32 v{br}, -v6, v15, v{br}
            v_fmac_f32 v{bi}, v5, v15""")
    a.label(f"{lab}_ns")
    a("s_nop 7")
    O = 192
    k = 0
    for tp in range(2):
        for par in range(2):
            for cc, src in ((0, YR[tp]), (1, YI[tp])):
                o = O + 4*(k % 8); k += 1
                for q in range(4): a(f"v_cvt_pk_bf16_f32 v{o+q}, v{src+4*q+par}, v{src+4*q+2+par}")
                a(f"ds_write_b128 v{8+2*par+cc}, v[{o}:{o+3}] offset:{tp*4096}", tag=f"o{tp}")
    a(f"""s_lshl_b32 s{T0}, s{HP}, 11
    s_lshl_b32 s{T1}, s{s_jp}, 7
    s_add_u32 s{T0}, s{T0}, s{T1}
    s_add_u32 s{T0}, s{T0}, {WS_Y}""")
    for it in range(8): a(f"ds_read_b128 v[{128+4*it}:{131+4*it}], v12 offset:{it*1024}", tag=f"r{it}")
    for it in range(8):
        a.lgwait(f"r{it}")
        a(f"buffer_store_dwordx4 v[{128+4*it}:{131+4*it}], v13, s[{SS}:{SS+3}], s{T0} offen {ST}", tag="y")
        if it < 7: a(f"s_add_u32 s{T0}, s{T0}, {8*40960}")
    a.stamp(4)

def kf(prof=False):
    a = Asm(); a.prof = prof
    a.stamp(0)
    a(f"""s_cmp_ge_u32 s2, 80
    s_cbranch_scc1 LF_end
    s_load_dwordx4 s[4:7], s[0:1], 8
    s_load_dwordx2 s[8:9], s[0:1], 80
    v_lshrrev_b32 v2, 6, v0
    v_and_b32 v1, 63, v0
    v_readfirstlane_b32 s20, v2
    s_mul_i32 s21, s2, 52429
    s_lshr_b32 s21, s21, 18
    s_mul_i32 s22, s21, 5
    s_sub_u32 s22, s2, s22
    s_waitcnt lgkmcnt(0)
    s_cmp_lt_u32 s20, 2
    s_cselect_b32 s10, s4, s6
    s_cselect_b32 s11, s5, s7""")
    srd(a, 12, 10, 2048*642)
    srd(a, 16, 8, WS_SIZE)
    fft_body(a, 12, 16, 20, 21, 22, list(range(24, 34)), 0, 4*WPAR, "LF")
    if a.prof: a.vmall()
    a.stamp(5)
    a.dump(6, 16, 20, 1, tmp=4)
    a.label("LF_end")
    a("s_endpgm")
    return a
```

```python
from asmlib import *
from k1 import srd, WS_SIZE, ST
WS_P = 0x1000000
LDS = 14 * 10240
BIG = 0x7f000000
ROT = 0

def kg(prof=False):
    a = Asm(); a.prof = prof
    SW2, SS = 12, 16
    S_V, S_W, S_RB, S_CT, S_KQ, T0, T1, T2, T3 = 20, 21, 22, 23, 24, 25, 26, 27, 28
    S_P = 32
    a.stamp(0)
    a(f"""s_cmp_ge_u32 s2, 256
    s_cbranch_scc1 LG_end
    s_load_dwordx2 s[4:5], s[0:1], 48
    s_load_dwordx2 s[6:7], s[0:1], 80
    v_lshrrev_b32 v2, 6, v0
    v_and_b32 v1, 63, v0
    v_readfirstlane_b32 s{S_V}, v2
    s_and_b32 s{S_KQ}, s2, 3
    s_bfe_u32 s{T0}, s2, 0x10002
    s_lshl_b32 s{T0}, s{T0}, 3
    s_lshr_b32 s{T1}, s2, 5
    s_add_u32 s{S_RB}, s{T0}, s{T1}
    s_bfe_u32 s{S_CT}, s2, 0x20003
    s_mul_i32 s{T0}, s{S_KQ}, 14
    s_cmp_eq_u32 s{S_KQ}, 3
    s_cselect_b32 s{T0}, 41, s{T0}
    s_cmp_ge_u32 s{S_KQ}, 2
    s_cselect_b32 s{T1}, 13, 14            ; count
    s_and_b32 s{S_W}, s{S_V}, 3""")
    for i in range(14): a(f"s_add_u32 s{S_P+i}, s{T0}, {i}")
    a("s_waitcnt lgkmcnt(0)")
    srd(a, SW2, 4, 2211840)
    srd(a, SS, 6, WS_SIZE)
    a(f"s_cmp_lt_u32 s{S_V}, 4")
    a("s_cbranch_scc1 LG_A")
    a(f"s_mul_i32 s{T2}, s{S_CT}, 320")
    for i in range(14):
        a(f"s_mul_i32 s{S_P+i}, s{S_P+i}, {32*1280}")
        a(f"s_add_u32 s{S_P+i}, s{S_P+i}, s{T2}")
    a(f"s_cmp_eq_u32 s{T1}, 13")
    a(f"s_cselect_b32 s{S_P+13}, {BIG}, s{S_P+13}")
    for m in range(5):
        a(f"""s_add_u32 s{T0}, s{S_W}, {4*m}
        s_sub_u32 s{T2}, s{T0}, 10
        s_cmp_ge_u32 s{T0}, 10
        s_cselect_b32 s{T0}, s{T2}, s{T0}
        s_lshl_b32 s{T0}, s{T0}, 6
        v_add_u32 v8, s{T0}, v1
        v_mul_u32_u24 v9, 3277, v8
        v_lshrrev_b32 v9, 16, v9
        v_mul_u32_u24 v10, 20, v9
        v_sub_u32 v10, v8, v10
        v_mul_u32_u24 v9, 1280, v9
        v_lshl_add_u32 v{2+m}, v10, 4, v9""")
    a(f"s_lshl_b32 s{T3}, s{S_W}, 10")
    def pair(j):
        for m in range(5):
            a(f"s_add_u32 m0, s{T3}, {j*20480 + m*4096}")
            if m == 2:
                a(f"s_cmp_lt_u32 s{S_W}, 2"); a(f"s_cselect_b32 s{T0}, s{S_P+2*j}, s{S_P+2*j+1}")
                so = T0
            else: so = S_P + 2*j + (m > 2)
            a(f"buffer_load_dwordx4 v{2+m}, s[{SW2}:{SW2+3}], s{so} offen lds", tag=f"w{j}")
    a.stamp(1)
    pair(0); pair(1)
    for j in range(7):
        a.vmwait(f"w{j}")
        a("s_barrier")
        if j == 0: a.stamp(2)
        if j == 3: a.stamp(3)
        if j + 2 < 7: pair(j + 2)
    a.stamp(4)
    a.dump(5, SS, S_V, 2, tmp=4)
    a("s_endpgm")
    a.label("LG_A")
    a.vm = []; a.lg = []
    a("s_setprio 1")
    a(f"""s_lshl_b32 s{T2}, s{S_RB}, 2
    s_add_u32 s{T2}, s{T2}, s{S_W}         ; n2
    s_mul_i32 s{T3}, s{T2}, {54*2048}""")
    for i in range(14):
        a(f"s_lshl_b32 s{S_P+i}, s{S_P+i}, 11")
        a(f"s_add_u32 s{S_P+i}, s{S_P+i}, s{T3}")
    a(f"s_cmp_eq_u32 s{T1}, 13")
    a(f"s_cselect_b32 s{S_P+13}, {BIG}, s{S_P+13}")
    a("v_lshlrev_b32 v2, 4, v1")
    HR = 16; NH = 8; WB = 48; ACC = 96
    def hload(k):
        r = HR + 4*(k % NH)
        a(f"buffer_load_dwordx4 v[{r}:{r+3}], v2, s[{SS}:{SS+3}], s{S_P + k//2} offen offset:{(k%2)*1024}", tag=f"h{k}")
    for k in range(NH - 2): hload(k)
    a(f"""v_lshrrev_b32 v4, 5, v1
    v_bfe_u32 v5, v1, 2, 2
    v_lshl_add_u32 v4, v4, 2, v5
    v_mul_u32_u24 v4, 320, v4
    v_bfe_u32 v5, v1, 4, 1
    v_lshl_add_u32 v4, v5, 5, v4
    v_and_b32 v5, 3, v1
    v_lshl_add_u32 v3, v5, 3, v4
    s_lshl_b32 s{T0}, s{S_KQ}, 6
    s_add_u32 s{T0}, s{T0}, s{T2}
    s_mul_i32 s{T0}, s{T0}, 40960
    s_mul_i32 s{T1}, s{S_CT}, 10240
    s_add_u32 s{T0}, s{T0}, s{T1}
    s_add_u32 s{T0}, s{T0}, {WS_P}""")
    base = [0]
    def wread(k, t):
        P, p = divmod(k, 2)
        off = P*10240 + p*16*320 + t*64
        if off - base[0] + 8*320 > 65535:
            a(f"v_add_u32 v3, 61440, v3"); base[0] += 61440
        b = WB + 20*(k % 2) + 4*t
        a(f"ds_read_b64_tr_b16 v[{b}:{b+1}], v3 offset:{off - base[0]}", tag=f"r{k}_{t}")
        a(f"ds_read_b64_tr_b16 v[{b+2}:{b+3}], v3 offset:{off - base[0] + 8*320}", tag=f"r{k}_{t}")
    a.stamp(1)
    a("s_barrier")
    a.stamp(2)
    for t in range(5): wread(0, t)
    for k in range(28):
        if k % 4 == 3 and k + 1 < 28:
            a("s_barrier")
            if k == 11: a.stamp(3)
        a.vmwait(f"h{k}")
        r = HR + 4*(k % NH)
        for t in range(5):
            a.lgwait(f"r{k}_{t}")
            b = WB + 20*(k % 2) + 4*t; d = ACC + 16*t
            a(f"v_mfma_f32_32x32x16_bf16 v[{d}:{d+15}], v[{b}:{b+3}], v[{r}:{r+3}], " + ("0" if k == 0 else f"v[{d}:{d+15}]"))
            if k + 1 < 28: wread(k + 1, t)
            if t == 0 and k + NH - 2 < 28: hload(k + NH - 2)
    a.stamp(4)
    for t in range(5):
        d = ACC + 16*t
        for p in range(2):
            o = 16 + 8*t + 4*p
            for i in range(4): a(f"v_cvt_pk_bf16_f32 v{o+i}, v{d+8*p+2*i}, v{d+8*p+2*i+1}")
            a(f"buffer_store_dwordx4 v[{o}:{o+3}], v2, s[{SS}:{SS+3}], s{T0} offen offset:{p*1024} {ST}")
        if t < 4: a(f"s_add_u32 s{T0}, s{T0}, 2048")
    a.stamp(5)
    if a.prof: a.vmall()
    a.stamp(6)
    a.dump(7, SS, S_V, 2, tmp=4)
    a.label("LG_end")
    a("s_endpgm")
    return a
```

```python
from asmlib import *
from k1 import srd, WS_SIZE, WS_Y
from kg import WS_P
BLOCK = 320
LX = 40960; LO = LX + 10240
LDS = LO + 10240
LOG2E = 1.4426950408889634

def ki(prof=False):
    a = Asm(); a.prof = prof
    SX, SS, SO, SB = 12, 16, 20, 24
    S_W, S_N2, S_CQ, T0, T1, T2, T3 = 28, 29, 30, 31, 32, 33, 34
    a.stamp(0)
    a(f"""s_cmp_ge_u32 s2, 256
    s_cbranch_scc1 LI_end
    s_load_dwordx2 s[4:5], s[0:1], 0
    s_load_dwordx4 s[8:11], s[0:1], 56
    s_load_dwordx2 s[6:7], s[0:1], 80
    v_lshrrev_b32 v2, 6, v0
    v_and_b32 v1, 63, v0
    v_readfirstlane_b32 s{S_W}, v2
    s_and_b32 s{T0}, s2, 7
    s_lshl_b32 s{T0}, s{T0}, 3
    s_lshr_b32 s{T1}, s2, 5
    s_add_u32 s{S_N2}, s{T0}, s{T1}
    s_bfe_u32 s{S_CQ}, s2, 0x20003
    v_lshlrev_b32 v2, 4, v1
    v_lshrrev_b32 v3, 4, v1               ; g
    v_and_b32 v4, 15, v1                  ; l16""")
    for e in range(2):
        a(f"""s_lshl_b32 s{T0}, s{S_W}, 7
        s_add_u32 s{T0}, s{T0}, {64*e}
        v_add_u32 v8, s{T0}, v1
        v_mul_u32_u24 v9, 6554, v8
        v_lshrrev_b32 v9, 16, v9
        v_mul_u32_u24 v10, 10, v9
        v_sub_u32 v10, v8, v10
        v_lshrrev_b32 v11, 1, v9
        v_mul_u32_u24 v11, {64*1280}, v11
        v_lshl_add_u32 v11, v10, 4, v11
        v_and_b32 v9, 1, v9
        s_mul_i32 s{T1}, s{S_CQ}, 160
        s_lshl_b32 s{T2}, s{T1}, 1
        s_sub_u32 s{T2}, 1120, s{T2}
        v_mul_u32_u24 v9, s{T2}, v9
        s_mul_i32 s{T2}, s{S_N2}, 1280
        s_add_u32 s{T1}, s{T1}, s{T2}
        v_add3_u32 v{5+e}, v11, v9, s{T1}""")
    a("s_waitcnt lgkmcnt(0)")
    srd(a, SX, 4, 2621440); srd(a, SS, 6, WS_SIZE); srd(a, SB, 8, 1280); srd(a, SO, 10, 2621440)
    a(f"""s_mul_i32 s{T0}, s{S_N2}, 40960
    s_lshl_b32 s{T1}, s{S_W}, 13
    s_add_u32 s{T0}, s{T0}, s{T1}
    s_add_u32 s{T0}, s{T0}, {WS_Y}""")
    for i in range(8):
        if i == 4: a(f"s_add_u32 s{T0}, s{T0}, 4096"); a(f"s_add_u32 s{T1}, s{T1}, 4096")
        if i % 4 == 0: a(f"s_mov_b32 m0, s{T1}")
        a(f"buffer_load_dwordx4 v2, s[{SS}:{SS+3}], s{T0} offen offset:{(i%4)*1024} lds", tag="y")
    PR = 176; B2 = 168
    a(f"""v_and_b32 v8, 1, v3
    v_lshlrev_b32 v8, 9, v8
    v_lshrrev_b32 v9, 1, v3
    v_lshl_add_u32 v8, v9, 3, v8
    v_lshl_add_u32 v8, v4, 4, v8
    v_xor_b32 v9, 0x208, v8               ; mirror: g' = 3-g
    s_mul_i32 s{T0}, s{S_CQ}, 5
    s_add_u32 s{T0}, s{T0}, s{S_W}        ; cb+
    s_sub_u32 s{T1}, 39, s{T0}
    s_lshl_b32 s{T3}, s{T0}, 5
    v_lshl_add_u32 v10, v3, 3, s{T3}
    v_sub_u32 v11, 1272, v10
    s_mul_i32 s{T2}, s{S_N2}, 40960
    s_add_u32 s{T2}, s{T2}, {WS_P}
    s_lshl_b32 s{T0}, s{T0}, 10
    s_lshl_b32 s{T1}, s{T1}, 10
    s_add_u32 s{T0}, s{T0}, s{T2}
    s_add_u32 s{T1}, s{T1}, s{T2}""")
    a(f"buffer_load_dwordx2 v[{B2}:{B2+1}], v10, s[{SB}:{SB+3}], 0 offen", tag="p")
    a(f"buffer_load_dwordx2 v[{B2+2}:{B2+3}], v11, s[{SB}:{SB+3}], 0 offen", tag="p")
    for kq in range(4):
        for side in range(2):
            for rt in range(2):
                r = PR + ((side*2 + rt)*4 + kq)*2
                a(f"buffer_load_dwordx2 v[{r}:{r+1}], v{8+side}, s[{SS}:{SS+3}], s{T0+side} offen offset:{rt*256}", tag="p")
        if kq < 3: a(f"s_add_u32 s{T0}, s{T0}, {64*40960}"); a(f"s_add_u32 s{T1}, s{T1}, {64*40960}")
    a(f"s_lshl_b32 s{T0}, s{S_W}, 11")
    for e in range(2):
        a(f"s_add_u32 m0, s{T0}, {LX + e*1024}")
        a(f"buffer_load_dwordx4 v{5+e}, s[{SX}:{SX+3}], 0 offen lds", tag="x")
    GE, GO = 16, 56; CV, SV = 96, 112
    a(f"""s_mul_i32 s{T0}, s{S_CQ}, 80
    s_lshl_b32 s{T1}, s{S_W}, 4
    s_add_u32 s{T0}, s{T0}, s{T1}
    v_add_u32 v8, s{T0}, v4
    v_cvt_f32_u32 v8, v8
    v_add_f32 v8, 0.5, v8
    v_mul_f32 v8, {fl(1/640)}, v8          ; beta
    v_and_b32 v9, 1, v3
    v_lshlrev_b32 v9, 1, v9
    v_sub_u32 v10, 320, v9
    v_cmp_lt_u32 vcc, 31, v1
    v_cndmask_b32 v9, v9, v10, vcc
    v_cvt_f32_u32 v9, v9
    v_mul_f32 v9, v9, v8
    v_sub_f32 v10, 0, v8
    v_cndmask_b32 v10, v8, v10, vcc       ; sigma*beta
    v_mul_f32 v11, {fl(16.0)}, v8
    v_cos_f32 v11, v11
    v_mul_f32 v12, {fl(160.0)}, v8
    v_cos_f32 v13, v12
    v_sin_f32 v14, -v12
    v_add_f32 v11, v11, v11
    v_cmp_eq_u32 s[36:37], 0, v3
    v_cmp_eq_u32 s[38:39], 2, v3""")
    for m in range(2):
        for jj in range(8):
            o = 16*m + 4*(jj//2) + jj % 2
            if o: a(f"v_fmamk_f32 v{CV+8*m+jj}, v10, {fl(o)}, v9")
            else: a(f"v_mov_b32 v{CV}, v9")
        for jj in range(8):
            a(f"v_sin_f32 v{SV+8*m+jj}, -v{CV+8*m+jj}"); a(f"v_cos_f32 v{CV+8*m+jj}, v{CV+8*m+jj}")
    a(f"""v_cndmask_b32 v13, v{CV}, v13, s[36:37]
    v_cndmask_b32 v14, v{SV}, v14, s[36:37]
    v_mul_f32 v12, 0.5, v13
    v_mul_f32 v15, 0.5, v14
    v_cndmask_b32 v13, v13, v12, s[38:39]
    v_cndmask_b32 v14, v14, v15, s[38:39]""")
    for m in range(10):
        u = 8*(m % 2)
        for r in range(4):
            c0 = 13 if (m == 0 and r == 0) else CV + u + 2*r
            s0 = 14 if (m == 0 and r == 0) else SV + u + 2*r
            a(f"v_cvt_pk_bf16_f32 v{GE+4*m+r}, v{c0}, v{CV+u+2*r+1}")
            a(f"v_cvt_pk_bf16_f32 v{GO+4*m+r}, v{s0}, v{SV+u+2*r+1}")
        if m + 2 < 10:
            for jj in range(8):
                a(f"v_fma_f32 v{CV+u+jj}, v11, v{CV+8-u+jj}, -v{CV+u+jj}")
                a(f"v_fma_f32 v{SV+u+jj}, v11, v{SV+8-u+jj}, -v{SV+u+jj}")
    HF = 160
    a(f"""v_lshlrev_b32 v8, 6, v4
    v_add_u32 v8, s{S_N2}, v8
    v_cvt_f32_u32 v8, v8
    v_mul_f32 v8, {fl(1/2048)}, v8         ; n/2048 (tile 0)
    v_lshlrev_b32 v9, 1, v3
    v_cvt_f32_u32 v9, v9                  ; 2g
    v_cvt_f32_u32 v10, v4
    v_mul_f32 v10, 0.5, v10""")
    for t in range(2):
        if t: a("v_add_f32 v8, 0.5, v8")
        a("v_mul_f32 v11, v9, v8")
        for jj in range(8):
            jo = 8*(jj//4) + (jj % 4)//2
            if jo: a(f"v_fmamk_f32 v{CV+jj}, v8, {fl(jo)}, v11")
            else: a(f"v_mov_b32 v{CV+jj}, v11")
            if jj % 2: a(f"v_add_f32 v{CV+jj}, 0.25, v{CV+jj}".replace("0.25", fl(0.25)))
        a(f"v_cndmask_b32 v{CV+1}, v{CV+1}, v10, s[36:37]")
        for jj in range(8): a(f"v_cos_f32 v{CV+jj}, v{CV+jj}")
        for r in range(4): a(f"v_cvt_pk_bf16_f32 v{HF+4*t+r}, v{CV+2*r}, v{CV+2*r+1}")
    a.stamp(1)
    GV = 208
    a(f"""v_mov_b32 v8, 0x3f80
    v_mov_b32 v9, 0x3f800000""")
    a.vmwait("p")
    a.stamp(2)
    for side in range(2):
        for rt in range(2):
            g = GV + (side*2 + rt)*4
            for k in range(2):
                a(f"v_lshlrev_b32 v{g+2*k}, 16, v{B2+2*side+k}")
                a(f"v_and_b32 v{g+2*k+1}, 0xffff0000, v{B2+2*side+k}")
    a("s_nop 2")
    for blk in range(4):
        g = GV + blk*4
        for kq in range(4):
            r = PR + (blk*4 + kq)*2
            for k in range(2):
                a(f"v_dot2c_f32_bf16 v{g+2*k}, v{r+k}, v8")
                a(f"v_dot2c_f32_bf16 v{g+2*k+1}, v{r+k}, v9")
    for i in range(16): a(f"v_mul_f32 v{PR+i}, {fl(-LOG2E)}, v{GV+i}")
    for i in range(16): a(f"v_exp_f32 v{PR+i}, v{PR+i}")
    for i in range(16): a(f"v_add_f32 v{PR+i}, 1.0, v{PR+i}")
    for i in range(16): a(f"v_rcp_f32 v{PR+i}, v{PR+i}")
    for i in range(16): a(f"v_mul_f32 v{GV+i}, {fl(2.0/(2048*640))}, v{GV+i}")
    for i in range(16): a(f"v_mul_f32 v{GV+i}, v{GV+i}, v{PR+i}")
    a(f"""v_bfe_u32 v8, v1, 2, 2
    v_and_b32 v8, 2, v8
    v_and_b32 v9, 1, v3
    v_xor_b32 v8, v8, v9
    v_lshlrev_b32 v8, 4, v8
    v_lshl_add_u32 v8, v4, 6, v8
    v_lshrrev_b32 v9, 1, v3
    v_lshl_add_u32 v8, v9, 11, v8         ; c = 0
    v_xor_b32 v9, 32, v8                  ; c = 1
    v_mul_u32_u24 v10, 320, v4
    s_lshl_b32 s{T0}, s{S_W}, 5
    v_lshl_add_u32 v11, v3, 3, s{T0}
    v_sub_u32 v12, 312, v11
    v_add_u32 v11, v10, v11
    v_add_u32 v12, v10, v12               ; mirror""")
    a.vmwait(["y", "x"])
    a("s_barrier")
    a.stamp(3)
    YB = 96; AC = 128
    def yread(m):
        for i in range(4):
            c, rt = divmod(i, 2)
            b = YB + 16*(m % 2) + 4*i
            a(f"ds_read_b128 v[{b}:{b+3}], v{8+c} offset:{m*4096 + rt*1024}", tag=f"y{m}_{i}")
    XR = 176
    yread(0); yread(1)
    for m in range(10):
        for i in range(4):
            a.lgwait(f"y{m}_{i}")
            b = YB + 16*(m % 2) + 4*i; d = AC + 4*i; g = (GE, GO)[i // 2] + 4*m
            a(f"v_mfma_f32_16x16x32_bf16 v[{d}:{d+3}], v[{b}:{b+3}], v[{g}:{g+3}], " + ("0" if m == 0 else f"v[{d}:{d+3}]"))
        if m + 2 < 10: yread(m + 2)
        if m == 8:
            for side in range(2):
                for rt in range(2):
                    r = XR + (side*2 + rt)*2
                    a(f"ds_read_b64 v[{r}:{r+1}], v{11+side} offset:{LX + rt*5120}", tag="xr")
    for i in range(8):
        a(f"v_add_f32 v{96+i}, v{AC+i}, v{AC+8+i}")
        a(f"v_sub_f32 v{104+i}, v{AC+i}, v{AC+8+i}")
    for side in range(2):
        for r in range(4): a(f"v_cvt_pk_bf16_f32 v{112+4*side+r}, v{96+8*side+2*r}, v{97+8*side+2*r}")
    SR = 144
    for side in range(2):
        for rt in range(2):
            d = SR + (side*2 + rt)*4
            a(f"v_mfma_f32_16x16x32_bf16 v[{d}:{d+3}], v[{112+4*side}:{115+4*side}], v[{HF+4*rt}:{HF+4*rt+3}], 0")
    a.lgwait("xr")
    XF = 96
    for blk in range(4):
        for k in range(2):
            a(f"v_lshlrev_b32 v{XF+4*blk+2*k}, 16, v{XR+2*blk+k}")
            a(f"v_and_b32 v{XF+4*blk+2*k+1}, 0xffff0000, v{XR+2*blk+k}")
    for blk in range(4):
        side, rt = divmod(blk, 2)
        for i in range(4):
            sr = SR + 4*blk + (3 - i if side else i)
            a(f"v_fmac_f32 v{XF+4*blk+i}, v{sr}, v{GV+4*blk+i}")
        o = 120 + 2*blk
        a(f"v_cvt_pk_bf16_f32 v{o}, v{XF+4*blk}, v{XF+4*blk+1}")
        a(f"v_cvt_pk_bf16_f32 v{o+1}, v{XF+4*blk+2}, v{XF+4*blk+3}")
        a(f"ds_write_b64 v{11+side}, v[{o}:{o+1}] offset:{LO + rt*5120}")
    a(f"""s_lshl_b32 s{T0}, s{S_W}, 11
    v_add_u32 v2, s{T0}, v2
    s_waitcnt lgkmcnt(0)
    s_barrier""")
    a.stamp(4)
    a(f"ds_read_b128 v[96:99], v2 offset:{LO}", tag="o0")
    a(f"ds_read_b128 v[100:103], v2 offset:{LO+1024}", tag="o1")
    for e in range(2):
        a.lgwait(f"o{e}")
        a(f"buffer_store_dwordx4 v[{96+4*e}:{99+4*e}], v{5+e}, s[{SO}:{SO+3}], 0 offen")
    a.stamp(5)
    if a.prof: a.vmall()
    a.stamp(6)
    a.dump(7, SS, S_W, 3, tmp=4)
    a.label("LI_end")
    a("s_endpgm")
    return a
```

```python
import sys, importlib
sys.path.insert(0, 'gen')
from asmlib import *
HEAD = open('recurrent_scan__spectral_gfnet__mixer_channel_mlp__prompt.s.ref').read().split("; Override launch")[0]
def assemble(kernels):
    s = HEAD
    for (name, a, grid, block, lds, vg) in kernels:
        s += f"; @launch kernel={name} grid=({grid},1,1) block=({block},1,1) lds={lds}\n"
    s += '.amdgcn_target "amdgcn-amd-amdhsa--gfx950"\n.text\n'
    for (name, a, grid, block, lds, vg) in kernels:
        s += f".globl {name}\n.p2align 8\n.type {name},@function\n{name}:\n" + a.text()
    s += "CODE_END:\n    s_endpgm\n"
    s += '.section .rodata,"a"\n'
    for (name, a, grid, block, lds, vg) in kernels:
        s += kernel_desc(name, vg)
    return s
if __name__ == "__main__":
    import k1, kf
    prof = "prof" in sys.argv
    which = sys.argv[2]
    ks = []
    if '1' in which: ks.append(("k1_kernel", k1.k1(prof), 256, 512, 163840, 256))
    if 'f' in which: ks.append(("kf_kernel", kf.kf(prof), 80, 256, 4*10304 + 32768, 256))
    if 'g' in which:
        import kg; ks.append(("kg_kernel", kg.kg(prof), 256, 512, kg.LDS, 256))
    if 'i' in which:
        import ki; ks.append(("ki_kernel", ki.ki(prof), 256, ki.BLOCK, ki.LDS, 256))
    open(sys.argv[1], "w").write(assemble(ks))
    print("nops inserted:", [k[1].nops for k in ks], "lines", [len(k[1].lines) for k in ks])
```

```python
import re

TRANS = ("v_exp_f32", "v_log_f32", "v_rcp_f32", "v_rsq_f32", "v_sqrt_f32", "v_sin_f32", "v_cos_f32")

def _regs(tok):
    tok = tok.strip()
    neg = tok.lstrip('-')
    m = re.fullmatch(r"(?:abs\()?([vsa])(\d+)\)?", neg)
    if m: return [(m.group(1), int(m.group(2)))]
    m = re.fullmatch(r"([vsa])\[(\d+):(\d+)\]", neg)
    if m: return [(m.group(1), i) for i in range(int(m.group(2)), int(m.group(3)) + 1)]
    if neg == "vcc": return [('s', 106), ('s', 107)]
    if neg == "m0": return [('s', 124)]
    if neg == "exec": return [('s', 126), ('s', 127)]
    return []

class Ins:
    __slots__ = ("text", "op", "dst", "src", "kind", "passes", "srcA", "srcC", "dpp", "states")
    def __init__(self, text):
        self.text = text
        t = text.split(";")[0].strip()
        parts = t.split(None, 1)
        self.op = parts[0]
        ops = []
        if len(parts) > 1:
            cur = ""; depth = 0
            for ch in parts[1]:
                if ch == '[': depth += 1
                if ch == ']': depth -= 1
                if ch == ',' and depth == 0: ops.append(cur); cur = ""
                else: cur += ch
            ops.append(cur)
        ops = [o.strip() for o in ops]
        if ops:
            last = ops[-1].split()
            ops[-1] = last[0] if last else ""
        op = self.op
        self.dpp = ("dpp" in op) or ("quad_perm" in t) or ("row_" in t and op.startswith("v_"))
        self.passes = 0; self.srcA = []; self.srcC = []; self.states = 1
        self.dst = []; self.src = []
        if op == "s_nop":
            self.kind = "nop"; self.states = int(ops[0], 0) + 1
        elif op.startswith("v_mfma"):
            self.kind = "mfma"
            self.passes = 8 if "32x32x16" in op else (4 if "16x16x32" in op else 2)
            self.dst = _regs(ops[0]); self.srcA = _regs(ops[1]) + _regs(ops[2]); self.srcC = _regs(ops[3])
            self.src = self.srcA + self.srcC
        elif op.startswith("v_"):
            self.kind = "valu"
            if op.startswith("v_cmp"):
                self.dst = _regs(ops[0]); self.src = sum((_regs(o) for o in ops[1:]), [])
            elif op.startswith("v_permlane") :
                self.dst = _regs(ops[0]) + _regs(ops[1]); self.src = list(self.dst)
            elif op.startswith("v_readfirstlane") or op.startswith("v_readlane"):
                self.dst = _regs(ops[0]); self.src = sum((_regs(o) for o in ops[1:]), [])
            else:
                self.dst = _regs(ops[0]); self.src = sum((_regs(o) for o in ops[1:]), [])
                if "_co_" in op:
                    self.dst += _regs(ops[1]); self.src = sum((_regs(o) for o in ops[2:]), [])
                if op.startswith(("v_fmac", "v_dot2c", "v_writelane", "v_pk_fmac")): self.src += self.dst
                if op.startswith("v_cndmask") and len(ops) == 3: self.src += _regs("vcc")
        elif op.startswith(("buffer_", "global_", "flat_")):
            self.kind = "vmem"
            alls = sum((_regs(o) for o in ops), [])
            if "load" in op and " lds" not in t and "_lds_" not in op:
                self.dst = _regs(ops[0]); self.src = sum((_regs(o) for o in ops[1:]), [])
            else:
                self.src = alls
                if " lds" in t or "_lds_" in op: self.src += _regs("m0")
            if "atomic" in op and "sc0" in t: self.dst = _regs(ops[0])
        elif op.startswith("ds_"):
            self.kind = "ds"
            if op.startswith(("ds_read", "ds_bpermute", "ds_permute", "ds_swizzle")):
                self.dst = _regs(ops[0]); self.src = sum((_regs(o) for o in ops[1:]), [])
            else:
                self.src = sum((_regs(o) for o in ops), [])
        elif op.startswith("s_"):
            self.kind = "salu"
            if op.startswith(("s_cmp", "s_cbranch", "s_branch", "s_waitcnt", "s_barrier", "s_endpgm", "s_setprio", "s_sleep")):
                self.src = sum((_regs(o) for o in ops), [])
            else:
                self.dst = _regs(ops[0]) if ops else []
                self.src = sum((_regs(o) for o in ops[1:]), [])
        else:
            self.kind = "other"

def need(p, c):
    n = 0
    pd = set(p.dst)
    if p.kind == "valu":
        vd = {r for r in pd if r[0] in "va"}
        sd = {r for r in pd if r[0] == 's'}
        isdot = p.op.startswith("v_dot")
        if c.kind == "mfma" and vd & set(c.src): n = max(n, 3 if isdot else 2)
        if c.kind == "valu":
            if (c.dpp or c.op.startswith("v_permlane")) and vd & set(c.src): n = max(n, 2)
            if c.op.startswith(("v_readfirstlane", "v_readlane")) and vd & set(c.src): n = max(n, 1)
            if p.op.startswith(TRANS) and not c.op.startswith(TRANS) and vd & set(c.src): n = max(n, 1)
            if sd & set(c.src): n = max(n, 4 if c.op.startswith(("v_readlane", "v_writelane")) else 2)
            if isdot and (vd & (set(c.src) | set(c.dst))):
                same_c = (c.op == p.op and not (vd & set(c.src[:len(c.src) - len(c.dst)])))
                if not same_c: n = max(n, 3)
            if ("sdwa" in p.op or "op_sel" in p.text) and vd & set(c.src): n = max(n, 1)
        if isdot and c.kind in ("vmem", "ds") and vd & set(c.src): n = max(n, 3)
        if c.kind == "vmem" and sd & set(c.src): n = max(n, 5)
        if c.kind == "salu" and sd & set(c.src): n = max(n, 1)
        if ('s', 126) in sd and c.kind == "mfma": n = max(n, 4)
    if p.kind == "mfma":
        big = {2: 5, 4: 8, 8: 12}[p.passes]
        if c.kind == "mfma":
            if pd & set(c.srcA): n = max(n, big)
            if pd & set(c.srcC):
                if c.srcC == p.dst and c.passes == p.passes: n = max(n, 2 if p.passes == 2 else 0)
                else: n = max(n, {2: 4, 4: 6, 8: 10}[p.passes])
            elif pd & set(c.dst): n = max(n, {2: 4, 4: 6, 8: 10}[p.passes])
        elif c.kind in ("valu", "vmem", "ds"):
            if pd & (set(c.src) | set(c.dst)): n = max(n, big)
        if c.kind == "valu" and set(p.srcC) & set(c.dst): n = max(n, {2: 1, 4: 3, 8: 7}[p.passes])
    if p.kind == "salu" and ('s', 124) in pd and c.kind == "vmem" and ('s', 124) in c.src: n = max(n, 1)
    if p.kind == "vmem" and "store" in p.op and ("x4" in p.op or "x3" in p.op):
        data = set(_regs(p.text.split(None, 1)[1].split(",")[0])) if p.op.startswith("buffer") else set()
        if c.kind in ("valu", "mfma") and data & set(c.dst): n = max(n, 2)
        if c.kind in ("vmem", "ds") and data & set(c.dst): n = max(n, 1)
    return n

class Asm:
    def __init__(self):
        self.lines = []
        self.hist = []
        self.vm = []
        self.nops = 0
        import os
        self.detail = os.environ.get("DETAIL")
        self.skip = [k for k in os.environ.get("SKIP", "").split(",") if k]
        self.lg = []
    def raw(self, text):
        self.lines.append(text)
    def label(self, name):
        self.lines.append(name + ":")
    def c(self, text):
        self.lines.append("    ; " + text)
    def __call__(self, text, tag=None):
        for t in text.strip().split("\n"):
            t = t.strip()
            if not t or t.startswith(";"):
                continue
            if t.endswith(":"):
                self.label(t[:-1]); continue
            if any(t.startswith(k) or (k == "dma" and " lds" in t and t.startswith("buffer_load")) for k in self.skip):
                continue
            ins = Ins(t)
            dist = 0; req = 0
            for p in reversed(self.hist):
                req = max(req, need(p, ins) - dist)
                dist += p.states
                if dist >= 20: break
            while req > 0:
                k = min(req, 16)
                nop = Ins(f"s_nop {k-1}")
                self.lines.append(f"    s_nop {k-1}")
                self.hist.append(nop); self.nops += 1
                req -= k
            self.lines.append("    " + t)
            self.hist.append(ins)
            if len(self.hist) > 64: self.hist = self.hist[-32:]
            if ins.kind == "vmem":
                self.vm.append(tag)
            if ins.kind == "ds":
                self.lg.append(tag)
            if ins.op == "s_waitcnt":
                m = re.search(r"lgkmcnt\((\d+)\)", t)
                if m:
                    n = int(m.group(1)); self.lg = self.lg[max(0, len(self.lg) - n):] if n else []
                m = re.search(r"vmcnt\((\d+)\)", t)
                if m:
                    n = int(m.group(1)); self.vm = self.vm[max(0, len(self.vm) - n):] if n else []
    def fence(self):
        self("s_nop 15")
    def vmwait(self, tags):
        if not isinstance(tags, (list, tuple, set)): tags = [tags]
        last = -1
        for i, t in enumerate(self.vm):
            if t in tags: last = i
        if last < 0: return
        n = len(self.vm) - 1 - last
        assert n <= 63, n
        self(f"s_waitcnt vmcnt({n})")
    def lgwait(self, tags):
        if not isinstance(tags, (list, tuple, set)): tags = [tags]
        last = -1
        for i, t in enumerate(self.lg):
            if t in tags: last = i
        if last < 0: return
        n = len(self.lg) - 1 - last
        self(f"s_waitcnt lgkmcnt({min(n, 15)})")
    def lgall(self):
        self("s_waitcnt lgkmcnt(0)")
    def vmall(self):
        self("s_waitcnt vmcnt(0)")
    prof = False
    detail = None
    def stamp(self, i):
        if self.prof and (self.detail is None or i == 0): self(f"s_memtime s[{76+2*i}:{77+2*i}]")
    def dstamp(self, key, i):
        if self.prof and self.detail == key: self(f"s_memtime s[{76+2*i}:{77+2*i}]")
    def dump(self, n, srd, wave_sgpr, slot, tmp=90):
        if not self.prof: return
        if self.detail is not None: n = 10
        self(f"""s_memrealtime s[98:99]
        s_waitcnt lgkmcnt(0)
        s_lshl_b32 s96, s2, 3
        s_add_u32 s96, s96, s{wave_sgpr}
        s_lshl_b32 s96, s96, 6
        s_add_u32 s96, s96, {0x1C00000 + slot*0x40000}
        v_mov_b32 v{tmp+1}, 0""")
        for i in range(n):
            if i: self(f"s_sub_u32 s97, s{76+2*i}, s76")
            self(f"v_mov_b32 v{tmp}, s{97 if i else 98}")
            self(f"buffer_store_dword v{tmp}, v{tmp+1}, s[{srd}:{srd+3}], s96 offen offset:{4*i}")
    def text(self):
        return "\n".join(self.lines) + "\n"

def kernel_desc(name, vgpr, sgpr=100, accum=None):
    accum = accum or ((vgpr + 3) // 4 * 4)
    return f""".p2align 6
.amdhsa_kernel {name}
  .amdhsa_next_free_vgpr {vgpr}
  .amdhsa_next_free_sgpr {sgpr}
  .amdhsa_accum_offset {accum}
  .amdhsa_group_segment_fixed_size 0
  .amdhsa_kernarg_size 88
  .amdhsa_user_sgpr_count 2
  .amdhsa_user_sgpr_kernarg_segment_ptr 1
  .amdhsa_system_sgpr_workgroup_id_x 1
.end_amdhsa_kernel
"""
def f2u(x):
    import struct
    return struct.unpack("<I", struct.pack("<f", x))[0]
def fl(x):
    return f"0x{f2u(x):08x}"
```

```python
from asmlib import *
import math

WS_H = 0
WS_T = 0x800000
WS_Y = 0xC00000
WS_SIZE = 0x2000000
ST = "sc1"

import os
OPT = dict(rot=1, ntx="", ntw="", n0=2, pf=1)
for kv in os.environ.get("OPT", "").split(","):
    if "=" in kv:
        k, v = kv.split("="); OPT[k] = int(v) if v.lstrip("-").isdigit() else v
CODE_BYTES = 65536
K0 = -2.0 * 0.7978845608028654 * 1.4426950408889634
K1C = K0 * 0.044715

def srd(a, base, ptr, size):
    a(f"""s_mov_b32 s{base}, s{ptr}
    s_and_b32 s{base+1}, s{ptr+1}, 0xffff
    s_mov_b32 s{base+2}, {size}
    s_mov_b32 s{base+3}, 0x00020000""")

SX, SW, SB, SS = 12, 16, 20, 24
S_V, S_RB, S_IDX, S_ROT = 28, 29, 30, 31
S_SX, S_SBO = 32, 42
S_W, S_SET = 52, 53
S_T0, S_T1, S_T2, S_T3 = 54, 55, 56, 57
S_LA, S_LB, S_LC = 58, 59, 60
S_PG = 61
S_B1 = 66
S_NP = 71
S_M4, S_M2 = 72, 73
XSLOT = 81920

def stats_math(a, vsum, vssq, t0, t1, r1, rr=None, rrm=None):
    a(f"""v_mul_f32 v{vsum}, {fl(1/640)}, v{vsum}
    v_mul_f32 v{vssq}, {fl(1/640)}, v{vssq}
    v_fma_f32 v{t0}, -v{vsum}, v{vsum}, v{vssq}
    v_max_f32 v{t0}, 0, v{t0}
    v_add_f32 v{t1}, {fl(1e-5)}, v{t0}
    v_rsq_f32 v{r1}, v{t1}""")
    if rr is not None:
        a(f"""v_mul_f32 v{t1}, v{r1}, v{r1}
        v_mul_f32 v{t1}, v{t1}, v{t0}
        v_add_f32 v{t1}, {fl(1e-5)}, v{t1}
        v_rsq_f32 v{t1}, v{t1}
        v_mul_f32 v{rr}, v{r1}, v{t1}""")

VXO = 2
def prologue(a):
    a.stamp(0)
    if OPT["rot"] == 1:
        ROTCODE = f"s_mul_i32 s{S_T3}, s{S_T3}, 3\n s_add_u32 s{S_ROT}, s{S_T3}, s{S_T1}"
    elif OPT["rot"] == 2:
        ROTCODE = f"s_add_u32 s{S_T3}, s{S_T3}, s{S_T1}\n s_and_b32 s{S_T3}, s{S_T3}, 1\n s_mul_i32 s{S_ROT}, s{S_T3}, 5"
    elif OPT["rot"] == 3:
        ROTCODE = f"s_add_u32 s{S_T3}, s{S_T3}, s{S_T1}\n s_and_b32 s{S_T3}, s{S_T3}, 3\n s_mul_i32 s{S_ROT}, s{S_T3}, 3"
    elif OPT["rot"] == 4:
        ROTCODE = f"s_add_u32 s{S_T3}, s{S_T3}, s{S_T1}\n s_and_b32 s{S_ROT}, s{S_T3}, 1"
    else:
        ROTCODE = f"s_mov_b32 s{S_ROT}, 0"
    a(f"""s_cmp_ge_u32 s2, 256
    s_cbranch_scc1 L1_end
    s_load_dwordx2 s[4:5], s[0:1], 0
    s_load_dwordx4 s[8:11], s[0:1], 32
    s_load_dwordx2 s[6:7], s[0:1], 80
    v_lshrrev_b32 v2, 6, v0
    v_and_b32 v1, 63, v0
    v_readfirstlane_b32 s{S_V}, v2
    s_and_b32 s{S_T0}, s2, 7
    s_lshr_b32 s{S_T1}, s2, 3           ; q
    s_lshr_b32 s{S_T2}, s{S_T0}, 1      ; a
    s_lshl_b32 s{S_T2}, s{S_T2}, 2
    s_and_b32 s{S_T3}, s{S_T1}, 3
    s_add_u32 s{S_RB}, s{S_T2}, s{S_T3} ; rb
    s_lshr_b32 s{S_T1}, s{S_T1}, 2      ; slot 0..7
    s_and_b32 s{S_T0}, s{S_T0}, 1       ; b
    {ROTCODE}
    s_lshl_b32 s{S_IDX}, s{S_T0}, 3
    s_add_u32 s{S_IDX}, s{S_IDX}, s{S_T1}
    s_cmp_ge_u32 s{S_ROT}, 10
    s_cselect_b32 s{S_T2}, 10, 0
    s_sub_u32 s{S_ROT}, s{S_ROT}, s{S_T2}
    s_and_b32 s{S_W}, s{S_V}, 3
    s_lshr_b32 s{S_SET}, s{S_V}, 2
    s_lshl_b32 s{S_M4}, s{S_W}, 12
    s_lshl_b32 s{S_M2}, s{S_W}, 11""")
    a(f"s_mov_b32 s{S_T0}, s{S_ROT}")
    for c in range(10):
        a(f"""s_lshl_b32 s{S_SX+c}, s{S_T0}, 7
        s_mul_i32 s{S_SBO+c}, s{S_T0}, {64*3456}""")
        if c < 9:
            a(f"""s_add_u32 s{S_T0}, s{S_T0}, 1
            s_cmp_eq_u32 s{S_T0}, 10
            s_cselect_b32 s{S_T0}, 0, s{S_T0}""")
    a(f"""v_lshrrev_b32 v6, 3, v1
    v_mul_u32_u24 v6, {64*1280}, v6
    s_lshl_b32 s{S_T1}, s{S_RB}, 2
    s_add_u32 s{S_T0}, s{S_W}, s{S_T1}
    s_mul_i32 s{S_T0}, s{S_T0}, 1280
    v_add_u32 v6, s{S_T0}, v6
    v_and_b32 v7, 7, v1
    v_lshrrev_b32 v8, 4, v1
    v_xor_b32 v7, v7, v8
    v_lshl_add_u32 v{VXO}, v7, 4, v6
    v_xor_b32 v7, 4, v7
    v_lshl_add_u32 v{VXO+1}, v7, 4, v6
    v_add_u32 v{VXO+1}, {8*64*1280}, v{VXO+1}
    v_add_u32 v{VXO+2}, {16*64*1280}, v{VXO}
    v_add_u32 v{VXO+3}, {16*64*1280}, v{VXO+1}
    """)
    if OPT["pf"]:
        a(f"""s_cmp_lg_u32 s{S_V}, 0
        s_cbranch_scc1 L1_nopf
        s_getpc_b64 s[96:97]
        s_bfe_u32 s{S_T0}, s2, 0x30003
        s_lshl_b32 s{S_T0}, s{S_T0}, 13
        v_lshl_add_u32 v9, v1, 7, s{S_T0}
        v_min_u32 v9, CODE_END - L1_pc - 128, v9
        global_load_dword v0, v9, s[96:97]
        L1_nopf:""".replace("s_getpc_b64 s[96:97]", "s_getpc_b64 s[96:97]\n L1_pc:"))
    a("s_waitcnt lgkmcnt(0)")
    srd(a, SX, 4, 2621440)
    srd(a, SW, 8, 2211840)
    srd(a, SB, 10, 3456)
    srd(a, SS, 6, WS_SIZE)

def x_dma(a, c):
    slot = c % 5
    for e in range(4):
        a(f"s_add_u32 m0, s{S_M4}, {XSLOT + slot*16384 + e*1024}")
        a(f"buffer_load_dwordx4 v{VXO+e}, s[{SX}:{SX+3}], s{S_SX+c} offen {OPT['ntx']} lds", tag=f"x{c}")

XF = 96; ACC = (64, 80); RING = 32
STAT = 0; CSP = 1024; HB = 8192; SGL = 40960
V_XA, V_TR, V_SSQ, V_SUM, V_CS, V_ONE, V_HO, V_J16, V_L16, V_Q = 2, 6, 10, 11, 12, 14, 18, 19, 20, 22
V_IRR, V_C0, V_C1 = 15, 16, 17
V_TRD = 24
S_MSK = 74

def common_mlp_regs(a):
    a(f"""v_and_b32 v23, 31, v1                 ; i / j
    v_lshrrev_b32 v21, 5, v1              ; h
    v_lshlrev_b32 v{V_J16}, 4, v23
    v_lshlrev_b32 v{V_HO}, 4, v1
    v_add_u32 v{V_L16}, s{S_M4}, v{V_HO}
    s_mov_b32 s{S_MSK}, 0xffff""")

def cs_publish(a, pidx, vcs):
    a(f"""v_mov_b32 v{V_Q}, v{vcs}
    v_permlane32_swap_b32 v{V_Q}, v{vcs}
    v_add_f32 v{V_Q}, v{V_Q}, v{vcs}
    s_lshl_b32 s{S_T0}, s{S_W}, 2
    v_add_u32 v{V_Q+1}, s{S_T0}, v{V_J16}""")
    a(f"ds_write_b32 v{V_Q+1}, v{V_Q} offset:{CSP + pidx*512}", tag="pub")
    a(f"v_mov_b32 v{vcs}, 0")

def handoff_write(a, acc, buf):
    for q in range(4):
        a(f"ds_write_b128 v{V_L16}, v[{acc+4*q}:{acc+4*q+3}] offset:{HB + buf*16384 + q*1024}", tag="pub")

def row_consts(a, vm, vrr, XE, t):
    a(f"""v_rcp_f32 v{V_IRR}, v{vrr}
    v_mul_f32 v{V_C0}, {fl(K0)}, v{vrr}
    v_mul_f32 v{V_C1}, v{vrr}, v{vrr}
    v_mul_f32 v{V_C1}, v{V_C1}, v{vrr}
    v_mul_f32 v{V_C1}, {fl(K1C)}, v{V_C1}
    v_sub_f32 v{vm}, 0, v{vm}
    v_cvt_pk_bf16_f32 v{XE}, v{vm}, v{vm}
    v_cvt_pk_bf16_f32 v{t+1}, v{V_IRR}, v{V_IRR}
    v_and_b32 v{t}, 0xffff0000, v{XE}
    v_and_b32 v{t+1}, 0xffff0000, v{t+1}
    v_sub_f32 v{t}, v{vm}, v{t}
    v_sub_f32 v{t+1}, v{V_IRR}, v{t+1}
    v_cvt_pk_bf16_f32 v{XE+1}, v{t}, v{V_IRR}
    v_cvt_pk_bf16_f32 v{XE+2}, v{t+1}, 0
    v_cmp_gt_u32 vcc, 32, v1
    v_mov_b32 v{XE+3}, 0
    v_cndmask_b32 v{XE}, 0, v{XE}, vcc
    v_cndmask_b32 v{XE+1}, 0, v{XE+1}, vcc
    v_cndmask_b32 v{XE+2}, 0, v{XE+2}, vcc""")

def prep1(a, pidx, T):
    a(f"ds_read_b128 v[{T}:{T+3}], v{V_J16} offset:{CSP + pidx*512}", tag=f"csp{pidx}")
def prep2(a, pidx, T, vb1, acc, XE):
    a.lgwait(f"csp{pidx}")
    a(f"""v_add_f32 v{T}, v{T}, v{T+1}
    v_add_f32 v{T+2}, v{T+2}, v{T+3}
    v_add_f32 v{T}, v{T}, v{T+2}
    v_cvt_pk_bf16_f32 v{T+1}, v{T}, v{T}
    v_and_b32 v{T+2}, 0xffff0000, v{T+1}
    v_sub_f32 v{T+2}, v{T}, v{T+2}
    v_cvt_pk_bf16_f32 v{T}, v{T}, v{T+2}
    v_and_or_b32 v{T+1}, v{T+1}, s{S_MSK}, v{vb1}
    v_lshrrev_b32 v{T+2}, 16, v{vb1}
    v_mov_b32 v{T+3}, 0""")
    a.lgwait(f"acc{pidx}")
    a(f"v_mfma_f32_32x32x16_bf16 v[{acc}:{acc+15}], v[{T}:{T+3}], v[{XE}:{XE+3}], v[{acc}:{acc+15}]")
def epi_step(a, pidx, q, P, U, O):
    for t in range(4): a(f"v_mul_f32 v{U+t}, v{P+t}, v{P+t}")
    for t in range(4): a(f"v_fma_f32 v{U+t}, v{U+t}, v{V_C1}, v{V_C0}")
    for t in range(4): a(f"v_mul_f32 v{U+t}, v{U+t}, v{P+t}")
    for t in range(4): a(f"v_exp_f32 v{U+t}, v{U+t}")
    for t in range(4): a(f"v_fma_f32 v{U+t}, v{U+t}, v{V_IRR}, v{V_IRR}")
    for t in range(4): a(f"v_rcp_f32 v{U+t}, v{U+t}")
    for t in range(4): a(f"v_mul_f32 v{P+t}, v{P+t}, v{U+t}")
    o = O + 2*(q % 2)
    a(f"v_cvt_pk_bf16_f32 v{o}, v{P}, v{P+1}")
    a(f"v_cvt_pk_bf16_f32 v{o+1}, v{P+2}, v{P+3}")
    if q % 2 == 1:
        a(f"buffer_store_dwordx4 v[{O}:{O+3}], v{V_HO}, s[{SS}:{SS+3}], s{S_PG+pidx} offen offset:{1024*(q//2)} {ST}", tag="h")

def mlp(a):
    a.label("L1_mlp")
    a(f"""s_mul_i32 s{S_T0}, s{S_IDX}, 5
    s_lshr_b32 s{S_T1}, s{S_T0}, 1        ; L0
    s_and_b32 s{S_T0}, s{S_T0}, 1         ; odd
    s_add_u32 s{S_T2}, s{S_T1}, s{S_T0}   ; La
    s_lshl_b32 s{S_LA}, s{S_T2}, 7
    s_add_u32 s{S_LB}, s{S_LA}, 128
    s_lshl_b32 s{S_LC}, s{S_T1}, 7
    s_cmp_eq_u32 s{S_T0}, 0
    s_cselect_b32 s{S_T2}, 256, 64
    s_add_u32 s{S_LC}, s{S_LC}, s{S_T2}
    s_cmp_eq_u32 s{S_IDX}, 10
    s_cselect_b32 s{S_NP}, 4, 5
    s_cmp_eq_u32 s{S_SET}, 0
    s_cbranch_scc1 L1_mlpA""")
    COLS = ((S_LA, 0), (S_LA, 64), (S_LB, 0), (S_LB, 64), (S_LC, 0))
    def panel_scalars(ps):
        a(f"""s_lshl_b32 s{S_T2}, s{S_RB}, 2
        s_add_u32 s{S_T2}, s{S_T2}, s{S_W}
        s_mul_i32 s{S_T2}, s{S_T2}, {54*2048}""")
        for p in ps:
            base, add = COLS[p]
            a(f"""s_add_u32 s{S_B1+p}, s{base}, {add}
            s_lshl_b32 s{S_PG+p}, s{S_B1+p}, 5
            s_add_u32 s{S_PG+p}, s{S_PG+p}, s{S_T2}""")
    a.vm = []
    VBP, VBS, VB1, XE = 6, 8, 9, 24
    a(f"""v_lshrrev_b32 v{VBP}, 3, v1
    s_lshl_b32 s{S_T0}, s{S_W}, 4
    v_add_u32 v{VBP}, s{S_T0}, v{VBP}
    v_mul_u32_u24 v{VBP}, 3456, v{VBP}
    v_bfe_u32 v23, v1, 4, 1
    v_lshlrev_b32 v23, 2, v23
    v_and_b32 v24, 7, v1
    v_xor_b32 v23, v23, v24
    v_lshl_add_u32 v{VBP}, v23, 4, v{VBP}
    v_add_u32 v{VBP+1}, {8*3456}, v{VBP}""")
    def b_dma(c, region, sline, tag):
        a(f"s_add_u32 s{S_T0}, s{S_SBO+c}, s{sline}")
        for e in range(2):
            a(f"s_add_u32 m0, s{S_M2}, {region + c*8192 + e*1024}")
            a(f"buffer_load_dwordx4 v{VBP+e}, s[{SW}:{SW+3}], s{S_T0} offen {OPT['ntw']} lds", tag=tag)
    def chunk(c):
        x_dma(a, c); b_dma(c, 0, S_LA, f"x{c}")
    n0 = OPT["n0"]
    for c in range(n0): chunk(c)
    a(f"""v_lshrrev_b32 v{VBS}, 2, v1
    s_lshl_b32 s{S_T0}, s{S_W}, 4
    v_add_u32 v{VBS}, s{S_T0}, v{VBS}
    v_mul_u32_u24 v{VBS}, 3456, v{VBS}
    v_and_b32 v23, 3, v1
    v_lshl_add_u32 v{VBS}, v23, 4, v{VBS}""")
    panel_scalars(range(5))
    common_mlp_regs(a)
    a.stamp(1)
    nxt = n0
    for c in range(11):
        if c < 10: a.vmwait(f"x{c}")
        if 1 <= c <= 9: a.dstamp("bar", c)
        a("s_barrier")
        if c == 0: a.stamp(2)
        if c == 5: a.stamp(3)
        k = 0
        while nxt <= min(c + 4, 9) and k < 2:
            chunk(nxt); nxt += 1; k += 1
        if c >= 6:
            m = c - 6
            b_dma(2*m, XSLOT, S_LB, f"p{m}"); b_dma(2*m + 1, XSLOT, S_LB, f"p{m}")
        if c == 6:
            a(f"v_lshlrev_b32 v23, 1, v23")
            for p in range(5):
                a(f"buffer_load_short_d16_hi v{VB1+p}, v23, s[{SB}:{SB+3}], s{S_B1+p} offen", tag="b1")
    a.vmwait(["p0", "p1", "p2", "b1"])
    a("s_barrier")
    a.stamp(4)
    AR = {0: 64, 1: 80, 2: 96, 3: 112, 4: 128}
    def rd_acc(p, buf):
        for q in range(4):
            a(f"ds_read_b128 v[{AR[p]+4*q}:{AR[p]+4*q+3}], v{V_L16} offset:{HB + buf*16384 + q*1024}", tag=f"acc{p}")
    a(f"v_lshrrev_b32 v23, 1, v{V_J16}")
    a(f"s_lshl_b32 s{S_T0}, s{S_W}, 8")
    a(f"v_add_u32 v23, s{S_T0}, v23")
    a(f"ds_read_b64 v[28:29], v23 offset:{STAT}", tag="st")
    prep1(a, 0, 32); rd_acc(0, 0); prep1(a, 1, 36); rd_acc(1, 1)
    a.lgwait("st")
    row_consts(a, 28, 29, XE, 30)
    prep2(a, 0, 32, VB1, AR[0], XE); prep2(a, 1, 36, VB1 + 1, AR[1], XE)
    U = 60; O = 56
    def sg(c):
        a(f"s_add_u32 s{S_T0}, s{S_SBO+c}, s{S_LC}")
        a(f"s_lshr_b32 s{S_T1}, s{S_M2}, 1")
        a(f"s_add_u32 m0, s{S_T1}, {SGL + c*4096}")
        a(f"buffer_load_dwordx4 v{VBS}, s[{SW}:{SW+3}], s{S_T0} offen {OPT['ntw']} lds", tag="sg")
    steps = [(p, q) for p in range(4) for q in range(4)]
    for i, (p, q) in enumerate(steps):
        epi_step(a, p, q, AR[p] + 4*q, U, O)
        if i == 0:
            a.vmwait(["p3", "p4"]); a("s_barrier"); a.stamp(5)
        if 1 <= i <= 5: sg(2*i - 2); sg(2*i - 1)
        if i == 5:
            a("s_barrier"); a.stamp(6)
            prep1(a, 2, 32); rd_acc(2, 0)
        if i == 6: prep2(a, 2, 32, VB1 + 2, AR[2], XE)
        if i == 9:
            a.vmwait("sg"); a("s_barrier")
        if i == 11:
            a("s_barrier"); a.stamp(7)
            prep1(a, 3, 32); rd_acc(3, 1); prep2(a, 3, 32, VB1 + 3, AR[3], XE)
    a(f"s_cmp_eq_u32 s{S_NP}, 4")
    a("s_cbranch_scc1 L1_end")
    a("s_barrier")
    a.stamp(8)
    prep1(a, 4, 32); rd_acc(4, 0); prep2(a, 4, 32, VB1 + 4, AR[4], XE)
    for q in (2, 3): epi_step(a, 4, q, AR[4] + 4*q, U, O)
    if a.prof: a.vmall()
    a.stamp(9)
    a.dump(10, SS, S_V, 0, tmp=32)
    a("s_endpgm")

    a.label("L1_mlpA")
    a.vm = []; a.lg = []
    a("s_setprio 1")
    if OPT.get("pfw", 0):
        a(f"""s_and_b32 s{S_T0}, s{S_RB}, 3
        s_mul_i32 s{S_T0}, s{S_T0}, 160
        s_mul_i32 s{S_T1}, s{S_W}, 40
        s_add_u32 s{S_T0}, s{S_T0}, s{S_T1}
        v_min_u32 v9, 39, v1
        v_add_u32 v9, s{S_T0}, v9
        v_mul_u32_u24 v9, 3456, v9
        buffer_load_dword v0, v9, s[{SW}:{SW+3}], s{S_LB} offen
        buffer_load_dword v0, v9, s[{SW}:{SW+3}], s{S_LC} offen""")
    panel_scalars([4])
    common_mlp_regs(a)
    a(f"""v_bfe_u32 v25, v1, 1, 3
    v_xor_b32 v25, v25, v21
    s_lshl_b32 s{S_T0}, s{S_W}, 5
    v_add_u32 v26, s{S_T0}, v23
    v_lshlrev_b32 v26, 7, v26
    v_lshl_add_u32 v26, v25, 4, v26
    v_add_u32 v26, {XSLOT}, v26
    v_bfe_u32 v25, v1, 2, 2               ; r
    v_lshl_add_u32 v27, v21, 3, v25       ; 8h + r
    v_bfe_u32 v28, v1, 4, 1
    v_lshlrev_b32 v28, 5, v28
    v_and_b32 v29, 3, v1
    v_lshl_add_u32 v28, v29, 3, v28       ; grp*32 + c4*8
    v_lshl_add_u32 v30, v27, 6, v28
    v_add_u32 v30, {SGL}, v30
    v_lshl_add_u32 v27, v27, 7, v28
    v_lshrrev_b32 v25, 1, v25
    v_lshl_add_u32 v27, v25, 6, v27
    v_lshlrev_b32 v23, 1, v23""")
    a(f"buffer_load_short_d16_hi v21, v23, s[{SB}:{SB+3}], s{S_B1+4} offen", tag="b1")
    for s in range(4):
        a(f"""s_add_u32 s{S_T0}, s{S_W}, {s}
        s_and_b32 s{S_T0}, s{S_T0}, 3
        s_lshl_b32 s{S_T1}, s{S_T0}, 5
        v_xor_b32 v{V_XA+s}, s{S_T1}, v26
        s_lshl_b32 s{S_T1}, s{S_T0}, 11
        v_add_u32 v{V_TR+s}, s{S_T1}, v27""")
    for s in range(4):
        a(f"""s_add_u32 s{S_T0}, s{S_W}, {s}
        s_and_b32 s{S_T0}, s{S_T0}, 3
        s_lshl_b32 s{S_T1}, s{S_T0}, 10
        v_add_u32 v{V_TRD+s}, s{S_T1}, v30""")
    VTX = 28
    for s in range(4): a(f"v_xor_b32 v{VTX+s}, 64, v{V_TR+s}")
    a(f"""v_mov_b32 v{V_SSQ}, 0
    v_mov_b32 v{V_SUM}, 0
    v_mov_b32 v{V_CS}, 0
    v_mov_b32 v{V_CS+1}, 0
    v_mov_b32 v{V_ONE}, 0x3f803f80""")
    def X(c):
        slot = c % 5
        if slot == 4:
            for s in range(4): a(f"v_add_u32 v{V_XA+s}, 16384, v{V_XA+s}")
        for s in range(4):
            k = 4*c + s
            a(f"ds_read_b128 v[{XF+4*k}:{XF+4*k+3}], v{V_XA+s} offset:{min(slot,3)*16384}", tag=f"X{c}")
        if slot == 4:
            for s in range(4): a(f"v_subrev_u32 v{V_XA+s}, 16384, v{V_XA+s}")
    def R(k):
        c, s = divmod(k, 4)
        if c == 8:
            a(f"v_add_u32 v{V_TR+s}, 65536, v{V_TR+s}"); a(f"v_add_u32 v{VTX+s}, 65536, v{VTX+s}")
        off = (c % 8) * 8192
        b = RING + 8*s
        for hf, vb in enumerate((V_TR + s, VTX + s)):
            a(f"ds_read_b64_tr_b16 v[{b+4*hf}:{b+4*hf+1}], v{vb} offset:{off}", tag=f"R{k}")
            a(f"ds_read_b64_tr_b16 v[{b+4*hf+2}:{b+4*hf+3}], v{vb} offset:{off+512}", tag=f"R{k}")
    a.stamp(1)
    a("s_barrier")
    a.stamp(2)
    X(0); R(0); R(1); R(2)
    a.lgwait("X0")
    for c in range(1, 11):
        if c <= 9: a.dstamp("bar", c)
        a("s_barrier")
        if c == 5: a.stamp(3)
        if c == 6: a.dstamp("it", 1)
        if c == 7: a.dstamp("it", 8)
        if c == 8: a.dstamp("it", 9)
        if c <= 9: X(c)
        for s in range(4):
            k = 4*(c - 1) + s
            if c == 6: a.dstamp("it", [2, 4, 5, 6][s])
            a.lgwait(f"R{k}")
            b = RING + 8*s
            for hf in range(2):
                acc = ACC[hf]
                src = "0" if k == 0 else f"v[{acc}:{acc+15}]"
                a(f"v_mfma_f32_32x32x16_bf16 v[{acc}:{acc+15}], v[{b+4*hf}:{b+4*hf+3}], v[{XF+4*k}:{XF+4*k+3}], {src}")
            if k + 3 < 40: R(k + 3)
            if c == 6 and s == 0: a.dstamp("it", 3)
            if c == 6 and s == 3: a.dstamp("it", 7)
            if s == 0:
                for r in range(8): a(f"v_dot2c_f32_bf16 v{V_CS + r//4}, v{b+r}, v{V_ONE}")
                for r in range(16):
                    x = XF + 16*(c - 1) + r
                    a(f"v_dot2c_f32_bf16 v{V_SSQ}, v{x}, v{x}"); a(f"v_dot2c_f32_bf16 v{V_SUM}, v{x}, v{V_ONE}")
                if c == 10:
                    a(f"""v_mov_b32 v{V_XA}, v{V_SUM}
                    v_mov_b32 v{V_XA+1}, v{V_SSQ}
                    v_permlane32_swap_b32 v{V_XA}, v{V_SUM}
                    v_permlane32_swap_b32 v{V_XA+1}, v{V_SSQ}
                    v_add_f32 v{V_SSQ}, v{V_XA+1}, v{V_SSQ}
                    v_add_f32 v{V_XA}, v{V_XA}, v{V_SUM}""")
            if c == 10 and s == 1:
                stats_math(a, V_XA, V_SSQ, V_XA + 2, V_XA + 3, V_SUM, V_XA + 1)
                a(f"""v_lshrrev_b32 v{V_XA+2}, 1, v{V_J16}
                s_lshl_b32 s{S_T0}, s{S_W}, 8
                v_add_u32 v{V_XA+2}, s{S_T0}, v{V_XA+2}""")
                a(f"ds_write_b64 v{V_XA+2}, v[{V_XA}:{V_XA+1}] offset:{STAT}", tag="pub")
            if c == 10 and s == 2:
                cs_publish(a, 0, V_CS); cs_publish(a, 1, V_CS + 1)
                for s2 in range(4):
                    a(f"v_add_u32 v{V_TR+s2}, {XSLOT - 65536}, v{V_TR+s2}"); a(f"v_add_u32 v{VTX+s2}, {XSLOT - 65536}, v{VTX+s2}")
    handoff_write(a, ACC[0], 0); handoff_write(a, ACC[1], 1)
    a.lgall()
    a("s_barrier")
    a.stamp(4)
    def R2(g, s):
        p, c = divmod(g, 10)
        b = RING + 16*(g % 2) + 4*s
        if p < 2:
            vb = (V_TR, VTX)[p] + s
            if c == 8: a(f"v_add_u32 v{vb}, 65536, v{vb}")
            off = (c % 8) * 8192; d = 512
        else:
            vb = V_TRD + s; off = c * 4096; d = 256
        a(f"ds_read_b64_tr_b16 v[{b}:{b+1}], v{vb} offset:{off}", tag=f"Q{g}_{s}")
        a(f"ds_read_b64_tr_b16 v[{b+2}:{b+3}], v{vb} offset:{off+d}", tag=f"Q{g}_{s}")
    for s in range(4): R2(0, s)
    XEA = 4
    for g in range(30):
        p, c = divmod(g, 10)
        acc = ACC[p % 2]
        vcs = V_CS + p % 2
        if g == 5:
            a("s_barrier"); a.stamp(5)
        for s in range(4):
            a.lgwait(f"Q{g}_{s}")
            k = 4*c + s; b = RING + 16*(g % 2) + 4*s
            src = "0" if k == 0 else f"v[{acc}:{acc+15}]"
            a(f"v_mfma_f32_32x32x16_bf16 v[{acc}:{acc+15}], v[{b}:{b+3}], v[{XF+4*k}:{XF+4*k+3}], {src}")
            if g + 1 < 30: R2(g + 1, s)
            if g == 10 and s == 1:
                handoff_write(a, ACC[0], 0); cs_publish(a, 2, V_CS)
            if g == 20 and s == 1:
                handoff_write(a, ACC[1], 1); cs_publish(a, 3, V_CS + 1)
            if g == 22 and s == 0:
                row_consts(a, 2, 3, XEA, 8)
        if g == 10:
            a.lgwait("pub"); a("s_barrier"); a.stamp(6)
        if g == 17: a("s_barrier")
        if g == 20:
            a.lgwait("pub"); a("s_barrier"); a.stamp(7)
        lab = f"L_cs_{g}"
        a(f"s_cmp_lg_u32 s{S_W}, {c % 4}")
        a(f"s_cbranch_scc1 {lab}")
        for r in range(16): a(f"v_dot2c_f32_bf16 v{vcs}, v{RING + 16*(g % 2) + r}, v{V_ONE}")
        a.label(lab)
        if g == 19:
            a(f"s_cmp_eq_u32 s{S_NP}, 4")
            a("s_cbranch_scc1 L1_np4")
    a("s_nop 3")
    cs_publish(a, 4, V_CS); handoff_write(a, ACC[0], 0)
    a.vmwait("b1")
    a.lgall(); a("s_barrier"); a.stamp(8)
    prep1(a, 4, 32); prep2(a, 4, 32, 21, ACC[0], XEA)
    for q in (0, 1): epi_step(a, 4, q, ACC[0] + 4*q, 60, 56)
    if a.prof: a.vmall()
    a.stamp(9)
    a.dump(10, SS, S_V, 0, tmp=32)
    a("s_endpgm")
    a.label("L1_np4")
    a("s_nop 15")
    cs_publish(a, 3, V_CS + 1); handoff_write(a, ACC[1], 1)
    a.lgall(); a("s_barrier")
    a("s_endpgm")

def dft(a):
    a.label("L1_dft")
    a.vm = []; a.lg = []
    n0 = OPT["n0"] + 1
    a(f"s_cmp_eq_u32 s{S_SET}, 0")
    a("s_cbranch_scc1 L_dnl")
    for c in range(n0): x_dma(a, c)
    a.label("L_dnl")
    VF, VFS, VD, VM, VMS, VW = 6, 7, 8, 9, 10, 11
    a(f"""s_lshl_b32 s{S_T0}, s{S_IDX}, 1
    s_add_u32 s{S_LA}, s{S_T0}, s{S_SET}      ; hg
    s_lshl_b32 s{S_T0}, s{S_LA}, 4
    v_and_b32 v12, 15, v1
    v_add_u32 v12, s{S_T0}, v12
    v_cmp_eq_u32 vcc, 0, v12
    v_mov_b32 v13, 160
    v_cndmask_b32 v13, v12, v13, vcc
    s_mov_b64 s[74:75], vcc
    v_cvt_f32_u32 v{VF}, v12
    v_cvt_f32_u32 v{VFS}, v13
    v_mul_f32 v{VF}, {fl(1/640)}, v{VF}
    v_mul_f32 v{VFS}, {fl(-1/640)}, v{VFS}
    s_and_b32 s{S_T0}, s{S_V}, 1
    s_bfe_u32 s{S_T1}, s{S_V}, 0x10001
    s_cmp_eq_u32 s{S_T1}, 0
    s_cselect_b32 s{S_T2}, s{S_SX}, s{S_SX+5}
    s_lshr_b32 s{S_T2}, s{S_T2}, 1
    s_add_u32 s{S_T2}, s{S_T2}, s{S_T0}
    v_lshrrev_b32 v{VD}, 4, v1
    v_lshlrev_b32 v{VD}, 3, v{VD}
    v_add_u32 v{VD}, s{S_T2}, v{VD}
    v_cvt_f32_u32 v{VD}, v{VD}
    v_add_f32 v{VD}, 0.5, v{VD}
    s_mul_i32 s{S_T2}, s{S_SET}, 40968
    s_mul_i32 s{S_T1}, s{S_T1}, 20480
    s_add_u32 s{S_T2}, s{S_T2}, s{S_T1}
    s_lshl_b32 s{S_T0}, s{S_T0}, 11
    s_add_u32 s{S_T2}, s{S_T2}, s{S_T0}
    v_lshl_add_u32 v{VW}, v1, 4, s{S_T2}
    v_xor_b32 v14, 8, v{VW}
    v_mul_f32 v{VM}, {fl(32.0)}, v{VF}
    v_mul_f32 v{VMS}, {fl(32.0)}, v{VFS}
    v_cos_f32 v{VM}, v{VM}
    v_cos_f32 v{VMS}, v{VMS}
    v_mul_f32 v12, v{VD}, v{VF}
    v_mul_f32 v13, v{VD}, v{VFS}
    v_add_f32 v{VM}, v{VM}, v{VM}
    v_add_f32 v{VMS}, v{VMS}, v{VMS}""")
    CC, SN = 64, 80
    for u in range(2):
        for e in range(4):
            dl = 32*u + 2*e
            if dl:
                a(f"v_fmamk_f32 v{CC+4*u+e}, v{VF}, {fl(dl)}, v12"); a(f"v_fmamk_f32 v{SN+4*u+e}, v{VFS}, {fl(dl)}, v13")
                a(f"v_cos_f32 v{CC+4*u+e}, v{CC+4*u+e}"); a(f"v_sin_f32 v{SN+4*u+e}, v{SN+4*u+e}")
            else:
                a(f"v_cos_f32 v{CC}, v12"); a(f"v_sin_f32 v{SN}, v13")
    for m in range(5):
        o = 96 + 8*(m % 2)
        for r in range(4):
            a(f"v_cvt_pk_bf16_f32 v{o+r}, v{CC+2*r}, v{CC+2*r+1}")
            a(f"v_cvt_pk_bf16_f32 v{o+4+r}, v{SN+2*r}, v{SN+2*r+1}")
        a(f"ds_write2st64_b64 v{VW}, v[{o}:{o+1}], v[{o+4}:{o+5}] offset0:{m*8} offset1:{m*8+2}")
        a(f"ds_write2st64_b64 v14, v[{o+2}:{o+3}], v[{o+6}:{o+7}] offset0:{m*8} offset1:{m*8+2}")
        if m < 4:
            for u in range(2):
                for e in range(4):
                    a(f"v_fma_f32 v{CC+4*u+e}, v{VM}, v{CC+4*(1-u)+e}, -v{CC+4*u+e}")
                    a(f"v_fma_f32 v{SN+4*u+e}, v{VMS}, v{SN+4*(1-u)+e}, -v{SN+4*u+e}")
    XA = 6; VB = 10; SE, SO = 11, 12; ON = 16
    a(f"""v_and_b32 v18, 15, v1
    v_lshrrev_b32 v19, 4, v1
    v_bfe_u32 v20, v1, 1, 3
    v_xor_b32 v20, v20, v19
    s_lshl_b32 s{S_T0}, s{S_SET}, 2
    v_xor_b32 v20, s{S_T0}, v20
    s_lshl_b32 s{S_T0}, s{S_W}, 5
    v_add_u32 v18, s{S_T0}, v18
    v_lshlrev_b32 v18, 7, v18
    v_lshl_add_u32 v{XA}, v20, 4, v18
    v_add_u32 v{XA}, {XSLOT}, v{XA}
    v_xor_b32 v{XA+1}, 64, v{XA}
    v_add_u32 v{XA+2}, 2048, v{XA}
    v_add_u32 v{XA+3}, 2048, v{XA+1}
    s_mul_i32 s{S_T0}, s{S_SET}, 40960
    v_lshl_add_u32 v{VB}, v1, 4, s{S_T0}
    v_mov_b32 v{SE}, 0x05040100
    v_mov_b32 v{SO}, 0x07060302
    v_mov_b32 v{ON}, 0x3f803f80
    v_mov_b32 v{ON+1}, 0x3f803f80
    v_mov_b32 v{ON+2}, 0x3f803f80
    v_mov_b32 v{ON+3}, 0x3f803f80
    s_lshl_b32 s{S_T0}, s{S_RB}, 2
    s_add_u32 s{S_LC}, s{S_T0}, s{S_W}        ; n2""")
    FO = 40
    f1 = f"""v_lshrrev_b32 v20, 4, v1
    v_lshlrev_b32 v20, 8, v20
    v_add_u32 v20, s{S_LC}, v20
    v_cvt_f32_u32 v20, v20
    v_and_b32 v21, 1, v1
    s_lshl_b32 s{S_T0}, s{S_SET}, 4
    v_and_b32 v22, 15, v1
    v_add_u32 v22, s{S_T0}, v22
    v_lshrrev_b32 v23, 1, v22
    v_cvt_f32_u32 v23, v23
    v_cmp_eq_u32 vcc, 1, v21
    v_sub_f32 v21, 0, v23
    v_cndmask_b32 v23, v21, v23, vcc
    v_mov_b32 v21, 0.25
    v_cndmask_b32 v21, 0, v21, vcc
    v_cmp_eq_u32 vcc, 1, v22
    v_mov_b32 v22, {fl(-16.0)}
    v_cndmask_b32 v23, v23, v22, vcc
    v_mov_b32 v22, 0
    v_cndmask_b32 v21, v21, v22, vcc
    v_mul_f32 v23, {fl(1/2048)}, v23
    v_fma_f32 v21, v23, v20, v21""".split("\n")
    for jj in range(8):
        dn = 64*(16*(jj//4) + jj % 4)
        f1.append(f"v_mov_b32 v{24+jj}, v21" if dn == 0 else f"v_fmamk_f32 v{24+jj}, v23, {fl(dn)}, v21")
    for jj in range(8): f1 += [f"v_sin_f32 v{32+jj}, v{24+jj}", f"v_cos_f32 v{24+jj}, v{24+jj}"]
    for r in range(4): f1 += [f"v_cvt_pk_bf16_f32 v{FO+r}, v{24+2*r}, v{25+2*r}", f"v_cvt_pk_bf16_f32 v{FO+4+r}, v{32+2*r}, v{33+2*r}"]
    a.lgall()
    XRB = (64, 80); TBB = (96, 112); EOB = (128, 144); AC = 160; GS = 192
    a.stamp(1)
    nxt = n0
    from kf import merge
    for c in range(12):
        rd = []
        if c < 10:
            a.vmwait(f"x{c}")
            if c == 7: a.dstamp("it", 6)
            if c >= 1: a.dstamp("bar", c)
            a("s_barrier")
            if c == 6: a.dstamp("it", 1)
            if c == 7: a.dstamp("it", 7)
            if c == 8: a.dstamp("it", 8)
            if c == 9: a.dstamp("it", 9)
            if c == 0: a.stamp(2)
            if c == 5: a.stamp(3)
            slot = c % 5
            XR = XRB[c % 2]
            for s in range(4):
                if slot == 4: rd.append(f"v_add_u32 v{XA+s}, 16384, v{XA+s}")
                rd.append(f"ds_read_b128 v[{XR+4*s}:{XR+4*s+3}], v{XA+s} offset:{min(slot,3)*16384}")
                if slot == 4: rd.append(f"v_subrev_u32 v{XA+s}, 16384, v{XA+s}")
        if 1 <= c <= 10:
            TB = TBB[(c - 1) % 2]
            for ty in range(4):
                rd.append(f"ds_read_b128 v[{TB+4*ty}:{TB+4*ty+3}], v{VB} offset:{(c-1)*4096 + ty*1024}")
        mf = []; va = []
        if c >= 2:
            EO, TB = EOB[c % 2], TBB[c % 2]
            for t in range(2):
                for ty in range(4):
                    acc = AC + 8*ty + 4*t; xs = EO + 8*t + 4*(ty // 2)
                    mf.append(f"v_mfma_f32_16x16x32_bf16 v[{acc}:{acc+3}], v[{xs}:{xs+3}], v[{TB+4*ty}:{TB+4*ty+3}], " + ("0" if c == 2 else f"v[{acc}:{acc+3}]"))
        if 1 <= c <= 10:
            XR, EO = XRB[(c - 1) % 2], EOB[(c - 1) % 2]
            for t in range(2):
                x = XR + 8*t
                mf.append(f"v_mfma_f32_16x16x32_bf16 v[{GS+4*t}:{GS+4*t+3}], v[{x}:{x+3}], v[{x}:{x+3}], " + ("0" if c == 1 else f"v[{GS+4*t}:{GS+4*t+3}]"))
                mf.append(f"v_mfma_f32_16x16x32_bf16 v[{GS+8+4*t}:{GS+8+4*t+3}], v[{x}:{x+3}], v[{ON}:{ON+3}], " + ("0" if c == 1 else f"v[{GS+8+4*t}:{GS+8+4*t+3}]"))
            for t in range(2):
                for ks in range(2):
                    for r in range(2):
                        lo = XR + 8*t + 4*ks + 2*r
                        va.append(f"v_perm_b32 v{EO+8*t+2*ks+r}, v{lo+1}, v{lo}, v{SE}")
                        va.append(f"v_perm_b32 v{EO+8*t+4+2*ks+r}, v{lo+1}, v{lo}, v{SO}")
        if c == 0: va += f1[:30]
        if c == 1: va += f1[30:]
        fill = []
        n = max(len(mf), 1)
        rds = [x for x in rd]
        per = -(-len(va) // n)
        for i in range(n):
            grp = []
            while rds and (not grp or not grp[-1].startswith("ds_") or (rds[0].startswith("v_subrev"))): grp.append(rds.pop(0))
            grp += va[i*per:(i+1)*per] if i >= 0 else []
            fill.append(grp)
        fill[-1] = rds + fill[-1] if not mf else fill[-1] + rds
        for i in range(n):
            if mf: a(mf[i])
            for x in fill[i]: a(x)
        if c == 6: a.dstamp("it", 3)
        todo = []
        while nxt <= min(c + 4, 9) and len(todo) < 2: todo.append(nxt); nxt += 1
        if todo:
            a(f"s_cmp_eq_u32 s{S_SET}, 0")
            a(f"s_cbranch_scc1 L_dl_{c}")
            for cc in todo: x_dma(a, cc)
            a.label(f"L_dl_{c}")
        if c == 10:
            a(f"""v_and_b32 v20, 1, v1
            v_cmp_eq_u32 s[76+20:77+20], 1, v20
            v_and_b32 v20, 2, v1
            v_cmp_eq_u32 vcc, 2, v20""".replace("s[76+20:77+20]", "s[96:97]"))
            for i in range(4):
                g = GS + 4*i
                a(f"v_cndmask_b32 v{g}, v{g}, v{g+1}, s[96:97]")
                a(f"v_cndmask_b32 v{g+2}, v{g+2}, v{g+3}, s[96:97]")
            a(f"""v_cndmask_b32 v24, v{GS}, v{GS+2}, vcc
            v_cndmask_b32 v25, v{GS+8}, v{GS+10}, vcc
            v_cndmask_b32 v26, v{GS+4}, v{GS+6}, vcc
            v_cndmask_b32 v27, v{GS+12}, v{GS+14}, vcc
            v_bfe_u32 v20, v1, 2, 2
            v_lshrrev_b32 v21, 4, v1
            v_cmp_eq_u32 vcc, v20, v21
            s_lshl_b32 s{S_T0}, s{S_SET}, 10
            s_lshl_b32 s{S_T1}, s{S_W}, 8
            s_add_u32 s{S_T0}, s{S_T0}, s{S_T1}
            s_add_u32 s{S_T0}, s{S_T0}, {XSLOT}
            v_and_b32 v20, 15, v1
            v_lshl_add_u32 v20, v20, 3, s{S_T0}
            v_mov_b32 v21, {XSLOT + 3072}
            v_cndmask_b32 v20, v21, v20, vcc
            ds_write2_b64 v20, v[24:25], v[26:27] offset0:0 offset1:16
            s_lshl_b32 s{S_T0}, s{S_V}, 11
            s_add_u32 s{S_T0}, s{S_T0}, {XSLOT + 16384}
            v_lshl_add_u32 v18, v1, 4, s{S_T0}
            ds_write_b128 v18, v[{FO}:{FO+3}]
            ds_write_b128 v18, v[{FO+4}:{FO+7}] offset:1024
            v_xor_b32 v18, 8192, v18
            v_and_b32 v20, 31, v1
            v_lshl_add_u32 v20, v20, 3, s{S_T1}
            v_add_u32 v20, {XSLOT}, v20""")
        if c == 6: a.dstamp("it", 4)
        if c < 11: a.lgall()
        if c == 6: a.dstamp("it", 5)
        if c == 10:
            a("s_barrier")
            a(f"ds_read_b64 v[24:25], v20", tag="s")
            a(f"ds_read_b64 v[26:27], v20 offset:1024", tag="s")
            a(f"ds_read_b128 v[48:51], v18", tag="f")
            a(f"ds_read_b128 v[52:55], v18 offset:1024", tag="f")
    a.stamp(4)
    a.lgwait("s")
    a(f"""v_add_f32 v24, v24, v26
    v_add_f32 v25, v25, v27""")
    stats_math(a, 25, 24, 26, 27, 28)
    a(f"""s_lshl_b32 s{S_T0}, s{S_V}, 7
    s_add_u32 s{S_T0}, s{S_T0}, {XSLOT + 4096}
    v_and_b32 v20, 31, v1
    v_lshl_add_u32 v20, v20, 2, s{S_T0}
    ds_write_b32 v20, v28
    v_lshrrev_b32 v19, 4, v1
    v_lshl_add_u32 v19, v19, 4, s{S_T0}""")
    a(f"ds_read_b128 v[24:27], v19", tag="r")
    a(f"ds_read_b128 v[28:31], v19 offset:64", tag="r")
    FRr, FIr, FNr = (40, 48), (44, 52), (56, 60)
    for u in range(2):
        for r in range(4): a(f"v_xor_b32 v{FNr[u]+r}, 0x80008000, v{FIr[u]+r}")
    a(f"""s_lshl_b32 s{S_T0}, s{S_V}, 12
    v_lshrrev_b32 v14, 4, v1
    v_lshlrev_b32 v14, 7, v14
    v_and_b32 v15, 15, v1
    v_lshl_add_u32 v14, v15, 2, v14
    v_add_u32 v14, s{S_T0}, v14
    s_lshl_b32 s{S_T1}, s{S_SET}, 9
    v_add_u32 v14, s{S_T1}, v14
    v_xor_b32 v13, 512, v14
    v_lshl_add_u32 v15, v1, 4, s{S_T0}
    v_lshrrev_b32 v16, 2, v1
    v_mul_u32_u24 v16, 163840, v16
    v_and_b32 v17, 3, v1
    v_lshl_add_u32 v16, v17, 4, v16
    s_lshl_b32 s{S_T0}, s{S_LA}, 14
    s_lshl_b32 s{S_T1}, s{S_LC}, 6
    s_add_u32 s{S_T0}, s{S_T0}, s{S_T1}
    s_add_u32 s{S_T0}, s{S_T0}, {WS_T}""")
    a.lgwait("r")
    for i in range(8):
        er, ei, orr, oi, rho = AC + i, AC + 8 + i, AC + 16 + i, AC + 24 + i, 24 + i
        a(f"""v_mul_f32 v20, v{orr}, v{rho}
        v_mul_f32 v21, v{oi}, v{rho}
        v_fma_f32 v{oi}, -v{er}, v{rho}, v20
        v_fma_f32 v{er}, v{er}, v{rho}, v20
        v_fma_f32 v{orr}, -v{ei}, v{rho}, v21
        v_fma_f32 v{ei}, v{ei}, v{rho}, v21""")
    a(f"s_cmp_lg_u32 s{S_LA}, 0")
    a("s_cbranch_scc1 L_dnsp")
    for i in range(8):
        a(f"v_cndmask_b32 v{AC+i}, v{AC+i}, v{AC+16+i}, s[74:75]")
        a(f"v_cndmask_b32 v{AC+16+i}, v{AC+16+i}, 0, s[74:75]")
    a.label("L_dnsp")
    XB = 64
    OUT = 80
    def o(sgn, cc, u): return OUT + 16*sgn + 8*cc + 4*u
    for sgn in range(2):
        for ty in (2*sgn, 2*sgn + 1):
            for r in range(4):
                a(f"v_cvt_pk_bf16_f32 v{XB+4*ty+r}, v{AC+8*ty+2*r}, v{AC+8*ty+2*r+1}")
        xr, xi = XB + 8*sgn, XB + 8*sgn + 4
        for u in range(2):
            a(f"v_mfma_f32_16x16x32_bf16 v[{o(sgn,0,u)}:{o(sgn,0,u)+3}], v[{FRr[u]}:{FRr[u]+3}], v[{xr}:{xr+3}], 0")
            a(f"v_mfma_f32_16x16x32_bf16 v[{o(sgn,1,u)}:{o(sgn,1,u)+3}], v[{FIr[u]}:{FIr[u]+3}], v[{xr}:{xr+3}], 0")
        for u in range(2):
            a(f"v_mfma_f32_16x16x32_bf16 v[{o(sgn,0,u)}:{o(sgn,0,u)+3}], v[{FNr[u]}:{FNr[u]+3}], v[{xi}:{xi+3}], v[{o(sgn,0,u)}:{o(sgn,0,u)+3}]")
            a(f"v_mfma_f32_16x16x32_bf16 v[{o(sgn,1,u)}:{o(sgn,1,u)+3}], v[{FRr[u]}:{FRr[u]+3}], v[{xi}:{xi+3}], v[{o(sgn,1,u)}:{o(sgn,1,u)+3}]")
    for sgn in range(2):
        for cc in range(2):
            it = 2*sgn + cc
            for u in range(2):
                r = o(sgn, cc, u)
                a(f"v_cvt_pk_bf16_f32 v{r}, v{r}, v{r+1}")
                a(f"v_cvt_pk_bf16_f32 v{r+1}, v{r+2}, v{r+3}")
                a(f"ds_write_b32 v{14-u}, v{r} offset:{it*1024}")
                a(f"ds_write_b32 v{14-u}, v{r+1} offset:{it*1024+64}")
            a(f"ds_read_b128 v[{128+4*it}:{131+4*it}], v15 offset:{it*1024}", tag=f"r{it}")
    for it in range(4):
        a.lgwait(f"r{it}")
        a(f"s_add_u32 s{S_T1}, s{S_T0}, {it*4096}")
        a(f"buffer_store_dwordx4 v[{128+4*it}:{131+4*it}], v16, s[{SS}:{SS+3}], s{S_T1} offen {ST}")
    a.stamp(5)
    if a.prof: a.vmall()
    a.stamp(6)
    a.dump(7, SS, S_V, 0, tmp=32)
    a("s_endpgm")

def k1(prof=False):
    a = Asm(); a.prof = prof
    prologue(a)
    a(f"""s_cmp_lt_u32 s{S_IDX}, 6
    s_cbranch_scc1 L1_mlp
    s_sub_u32 s{S_IDX}, s{S_IDX}, 6
    s_cmp_lt_u32 s{S_IDX}, 2
    s_cbranch_scc1 L1_dft
    s_add_u32 s{S_IDX}, s{S_IDX}, 4
    s_cmp_lt_u32 s{S_IDX}, 11
    s_cbranch_scc1 L1_mlp
    s_sub_u32 s{S_IDX}, s{S_IDX}, 9
    s_branch L1_dft""")
    mlp(a)
    dft(a)
    a.label("L1_end")
    a("s_endpgm")
    return a
```

```python
from asmlib import *
import os
OPT = dict(sleep=2, rot=1, ntx="", ntw="", n0=1, pf=1)
for kv in os.environ.get("OPT", "").split(","):
    if "=" in kv:
        k, v = kv.split("="); OPT[k] = int(v) if v.lstrip("-").isdigit() else v

WS_H, WS_T, WS_Y, WS_P, WS_F = 0, 0x800000, 0xC00000, 0x1000000, 0x1B00000
WS_SIZE = 0x2000000
F_EP, F_TF, F_YF, F_HA, F_HB, F_PF, F_DM = WS_F, WS_F + 0x1000, WS_F + 0x4000, WS_F + 0x8000, WS_F + 0x20000, WS_F + 0x40000, WS_F + 0x60000
ST = "sc1"
K0 = -2.0 * 0.7978845608028654 * 1.4426950408889634
K1C = K0 * 0.044715
LOG2E = 1.4426950408889634
BIG = 0x7f000000
SPIN = 40000

SG, SX, SW, SB, SS = 4, 12, 16, 20, 24
S_TAG = 3
S_V, S_RB, S_IDX, S_ROT = 28, 29, 30, 31
S_SX, S_SBO = 32, 42
S_W, S_SET = 52, 53
T0, T1, T2, T3 = 54, 55, 56, 57
S_LA, S_LB, S_LC = 58, 59, 60
S_PG, S_B1, S_NP, S_M4, S_M2, S_MSK = 61, 66, 71, 72, 73, 74
S_DBG = 100
XSLOT = 81920
S_PL = list(range(42, 52)) + [66, 67, 68, 69]

def srd(a, base, ptr, size):
    a(f"""s_mov_b32 s{base}, s{ptr}
    s_and_b32 s{base+1}, s{ptr+1}, 0xffff
    s_mov_b32 s{base+2}, {size}
    s_mov_b32 s{base+3}, 0x00020000""")

def stats_math(a, vsum, vssq, t0, t1, r1, rr=None):
    a(f"""v_mul_f32 v{vsum}, {fl(1/640)}, v{vsum}
    v_mul_f32 v{vssq}, {fl(1/640)}, v{vssq}
    v_fma_f32 v{t0}, -v{vsum}, v{vsum}, v{vssq}
    v_max_f32 v{t0}, 0, v{t0}
    v_add_f32 v{t1}, {fl(1e-5)}, v{t0}
    v_rsq_f32 v{r1}, v{t1}""")
    if rr is not None:
        a(f"""v_mul_f32 v{t1}, v{r1}, v{r1}
        v_mul_f32 v{t1}, v{t1}, v{t0}
        v_add_f32 v{t1}, {fl(1e-5)}, v{t1}
        v_rsq_f32 v{t1}, v{t1}
        v_mul_f32 v{rr}, v{r1}, v{t1}""")

_uid = [0]
def uid(p):
    _uid[0] += 1
    return f"{p}_{_uid[0]}"

def tag_issue(a, v, vz):
    a(f"v_mov_b32 v{vz}, 0")
    a(f"global_load_dword v{v}, v{vz}, s[{S_DBG}:{S_DBG+1}] sc1", tag="tag")
def tag_check(a, v, vz):
    L = uid("Ltag")
    a.vmwait("tag")
    a(f"""v_readfirstlane_b32 s{S_TAG}, v{v}
    s_mov_b32 s{T3}, 0
    v_mov_b32 v{vz}, 0
    {L}:
    s_cmp_lg_u32 s{S_TAG}, 0
    s_cbranch_scc1 {L}d
    global_load_dword v{v}, v{vz}, s[{S_DBG}:{S_DBG+1}] sc1
    s_waitcnt vmcnt(0)
    v_readfirstlane_b32 s{S_TAG}, v{v}
    s_add_u32 s{T3}, s{T3}, 1
    s_cmp_lt_u32 s{T3}, {SPIN}
    s_cbranch_scc1 {L}
    {L}d:
    s_and_b32 s{S_TAG}, s{S_TAG}, -8""".replace("s_waitcnt vmcnt(0)", "s_waitcnt vmcnt(0) ; slow path"))
def keep_vm(f):
    def g(a, *x, **k):
        vm = list(a.vm); f(a, *x, **k); a.vm = vm
    return g

def publish(a, soff, cnt, v, vz):
    a(f"""s_or_b32 s{T3}, s{S_TAG}, {cnt}
    v_mov_b32 v{v}, s{T3}
    v_mov_b32 v{vz}, 0
    s_mov_b64 exec, 1""")
    a(f"buffer_store_dword v{v}, v{vz}, s[{SS}:{SS+3}], s{soff} offen {ST}", tag="flag")
    a("s_mov_b64 exec, -1")

def poll_issue(a, voff, soff, smask, v, nload=1, stride=256):
    a(f"s_mov_b64 exec, s[{smask}:{smask+1}]")
    for i in range(nload):
        a(f"buffer_load_dword v{v+i}, v{voff}, s[{SS}:{SS+3}], s{soff} offen offset:{i*stride} sc1", tag="poll")
    a("s_mov_b64 exec, -1")
def poll_check(a, voff, soff, need, smask, v, nload=1, stride=256):
    L = uid("Lpoll")
    a.vmwait("poll")
    vm = list(a.vm)
    a(f"""s_mov_b32 s{T2}, 0
    s_add_u32 s{T3}, s{S_TAG}, {need}
    s_mov_b64 exec, s[{smask}:{smask+1}]
    {L}:""")
    for i in range(nload): a(f"v_subrev_u32 v{v+i}, s{T3}, v{v+i}")
    for i in range(1, nload): a(f"v_max_u32 v{v}, v{v}, v{v+i}")
    a(f"""v_cmp_lt_u32 vcc, {7-need}, v{v}
    s_add_u32 s{T2}, s{T2}, 1
    s_cbranch_vccz {L}d
    s_cmp_ge_u32 s{T2}, {SPIN}
    s_cbranch_scc1 {L}d
    s_sleep {OPT['sleep']}""")
    for i in range(nload):
        a(f"buffer_load_dword v{v+i}, v{voff}, s[{SS}:{SS+3}], s{soff} offen offset:{i*stride} sc1")
    a(f"""s_waitcnt vmcnt(0)
    s_branch {L}
    {L}d:
    s_mov_b64 exec, -1""")
    a.vm = vm
def poll(a, voff, soff, need, smask, v, nload=1, stride=256):
    poll_issue(a, voff, soff, smask, v, nload, stride); poll_check(a, voff, soff, need, smask, v, nload, stride)

VXO = 2
def prologue(a):
    a.stamp(0)
    R = OPT["rot"]
    ROT = {1: f"s_mul_i32 s{T3}, s{T3}, 3\n s_add_u32 s{S_ROT}, s{T3}, s{T1}",
           2: f"s_add_u32 s{T3}, s{T3}, s{T1}\n s_and_b32 s{T3}, s{T3}, 1\n s_mul_i32 s{S_ROT}, s{T3}, 5",
           4: f"s_add_u32 s{T3}, s{T3}, s{T1}\n s_and_b32 s{S_ROT}, s{T3}, 1",
           0: f"s_mov_b32 s{S_ROT}, 0"}[R]
    a(f"""s_cmp_ge_u32 s2, 256
    s_cbranch_scc1 L_end
    s_load_dwordx2 s[4:5], s[0:1], 0
    s_load_dwordx4 s[8:11], s[0:1], 32
    s_load_dwordx2 s[6:7], s[0:1], 80
    s_load_dwordx2 s[{S_DBG}:{S_DBG+1}], s[0:1], 72
    v_lshrrev_b32 v2, 6, v0
    v_and_b32 v1, 63, v0
    v_readfirstlane_b32 s{S_V}, v2
    s_and_b32 s{T0}, s2, 7
    s_lshr_b32 s{T1}, s2, 3
    s_lshr_b32 s{T2}, s{T0}, 1
    s_lshl_b32 s{T2}, s{T2}, 2
    s_and_b32 s{T3}, s{T1}, 3
    s_add_u32 s{S_RB}, s{T2}, s{T3}
    s_lshr_b32 s{T1}, s{T1}, 2
    s_and_b32 s{T0}, s{T0}, 1
    {ROT}
    s_lshl_b32 s{S_IDX}, s{T0}, 3
    s_add_u32 s{S_IDX}, s{S_IDX}, s{T1}
    s_cmp_ge_u32 s{S_ROT}, 10
    s_cselect_b32 s{T2}, 10, 0
    s_sub_u32 s{S_ROT}, s{S_ROT}, s{T2}
    s_and_b32 s{S_W}, s{S_V}, 3
    s_lshr_b32 s{S_SET}, s{S_V}, 2
    s_lshl_b32 s{S_M4}, s{S_W}, 12
    s_lshl_b32 s{S_M2}, s{S_W}, 11""")
    a(f"s_mov_b32 s{T0}, s{S_ROT}")
    for c in range(10):
        a(f"s_lshl_b32 s{S_SX+c}, s{T0}, 7")
        if c < 9:
            a(f"""s_add_u32 s{T0}, s{T0}, 1
            s_cmp_eq_u32 s{T0}, 10
            s_cselect_b32 s{T0}, 0, s{T0}""")
    a(f"""v_lshrrev_b32 v6, 3, v1
    v_mul_u32_u24 v6, {64*1280}, v6
    s_lshl_b32 s{T1}, s{S_RB}, 2
    s_add_u32 s{T0}, s{S_W}, s{T1}
    s_mul_i32 s{T0}, s{T0}, 1280
    v_add_u32 v6, s{T0}, v6
    v_and_b32 v7, 7, v1
    v_lshrrev_b32 v8, 4, v1
    v_xor_b32 v7, v7, v8
    v_lshl_add_u32 v{VXO}, v7, 4, v6
    v_xor_b32 v7, 4, v7
    v_lshl_add_u32 v{VXO+1}, v7, 4, v6
    v_add_u32 v{VXO+1}, {8*64*1280}, v{VXO+1}
    v_add_u32 v{VXO+2}, {16*64*1280}, v{VXO}
    v_add_u32 v{VXO+3}, {16*64*1280}, v{VXO+1}""")
    if OPT["pf"]:
        a(f"""s_cmp_lg_u32 s{S_V}, 1
        s_cbranch_scc1 L_nopf
        s_getpc_b64 s[96:97]
        L_pc:
        s_bfe_u32 s{T0}, s2, 0x30003
        s_lshl_b32 s{T0}, s{T0}, 13
        v_lshl_add_u32 v9, v1, 7, s{T0}
        v_min_u32 v9, CODE_END - L_pc - 128, v9
        global_load_dword v0, v9, s[96:97]
        L_nopf:""")
    a("s_waitcnt lgkmcnt(0)")
    srd(a, SX, 4, 2621440); srd(a, SW, 8, 2211840); srd(a, SB, 10, 3456); srd(a, SS, 6, WS_SIZE)
    a(f"s_load_dwordx2 s[8:9], s[0:1], 48")
    a(f"""s_or_b32 s{T0}, s2, s{S_V}
    s_cmp_lg_u32 s{T0}, 0
    s_cbranch_scc1 L_notag
    v_mov_b32 v9, 0
    s_mov_b32 s{T0}, {F_EP}
    buffer_load_dword v10, v9, s[{SS}:{SS+3}], s{T0} offen sc1
    s_waitcnt vmcnt(0)
    v_add_u32 v10, 8, v10
    v_or_b32 v10, 1, v10
    buffer_store_dword v10, v9, s[{SS}:{SS+3}], s{T0} offen sc1
    global_store_dword v9, v10, s[{S_DBG}:{S_DBG+1}] sc1
    L_notag:""")
    a.vm = []

def x_dma(a, c):
    slot = c % 5
    for e in range(4):
        a(f"s_add_u32 m0, s{S_M4}, {XSLOT + slot*16384 + e*1024}")
        a(f"buffer_load_dwordx4 v{VXO+e}, s[{SX}:{SX+3}], s{S_SX+c} offen {OPT['ntx']} lds", tag=f"x{c}")

def panel_order(kq):
    p0 = [0, 14, 28, 41][kq]; n = [14, 14, 13, 13][kq]
    def pidx(P):
        cg, r = divmod(P, 5)
        return r if cg % 2 == 0 else (4 if r == 0 else r - 1)
    ps = sorted(range(p0, p0 + n), key=lambda P: (pidx(P), P))
    assert all(pidx(P) <= 1 for P in ps[:5]) and all(pidx(P) <= 2 for P in ps[:8]) and all(pidx(P) <= 3 for P in ps[:10])
    allc = sorted({P // 5 for P in ps})
    a_half = sorted({P // 5 for P in ps if pidx(P) == 4})
    m1 = sum(1 << c for c in allc); m2 = m1 | sum(1 << (16 + c) for c in a_half)
    return ps + [63] * (14 - n), m1, m2

def c_scalars(mult, addreg, which_mask):
    tabs = [panel_order(k) for k in range(4)]
    PK = (70, 96, 97)
    def pack(ps, lo): return sum(p << (6*i) for i, p in enumerate(ps[lo:lo+5]))
    o = [[f"s_and_b32 s{S_MSK+1}, s2, 3"] + [f"s_mov_b32 s{PK[j]}, {pack(tabs[0][0], lo)}" for j, lo in enumerate((0, 5, 10))]
         + [f"s_mov_b32 s{S_MSK}, {tabs[0][which_mask]}"]]
    for k in range(1, 4):
        o.append([f"s_cmp_eq_u32 s{S_MSK+1}, {k}"] + [f"s_cselect_b32 s{PK[j]}, {pack(tabs[k][0], lo)}, s{PK[j]}" for j, lo in enumerate((0, 5, 10))]
                 + [f"s_cselect_b32 s{S_MSK}, {tabs[k][which_mask]}, s{S_MSK}"])
    o.append([f"s_mov_b32 s{S_MSK+1}, 0"])
    for i in range(14):
        r = S_PL[i]
        g = [f"s_bfe_u32 s{r}, s{PK[i//5]}, {(6 << 16) | (6*(i % 5))}"]
        if i == 13: g.append(f"s_cmp_eq_u32 s{r}, 63")
        g.append(f"s_mul_i32 s{r}, s{r}, {mult}")
        if i == 13: g.append(f"s_cselect_b32 s{r}, {BIG}, s{r}")
        g.append(f"s_add_u32 s{r}, s{r}, s{addreg}")
        o.append(g)
    return o

def rb2(a, dst):
    a(f"""s_bfe_u32 s{dst}, s2, 0x10002
    s_lshl_b32 s{dst}, s{dst}, 3
    s_lshr_b32 s{T3}, s2, 5
    s_add_u32 s{dst}, s{dst}, s{T3}""")

def pair_lds(j): return [122880, 143360, 81920, 102400, 0, 20480, 40960][j]
VW2 = [2, 3, 4, 5, 14]
def w2_setup(a):
    a("s_waitcnt lgkmcnt(0)")
    srd(a, SG, 8, 2211840)
    a(f"s_bfe_u32 s{T1}, s2, 0x20003")
    a(f"s_mul_i32 s{T1}, s{T1}, 320")
    for g in c_scalars(32*1280, T1, 2):
        for x in g: a(x)
    for m in range(5):
        a(f"""s_add_u32 s{T0}, s{S_W}, {4*m}
        s_sub_u32 s{T2}, s{T0}, 10
        s_cmp_ge_u32 s{T0}, 10
        s_cselect_b32 s{T0}, s{T2}, s{T0}
        s_lshl_b32 s{T0}, s{T0}, 6
        v_add_u32 v28, s{T0}, v1
        v_mul_u32_u24 v29, 3277, v28
        v_lshrrev_b32 v29, 16, v29
        v_mul_u32_u24 v30, 20, v29
        v_sub_u32 v30, v28, v30
        v_mul_u32_u24 v29, 1280, v29
        v_lshl_add_u32 v{VW2[m]}, v30, 4, v29""")
def w2_pair(a, j):
    a(f"s_lshr_b32 s{T1}, s{S_M2}, 1")
    for m in range(5):
        a(f"s_add_u32 m0, s{T1}, {pair_lds(j) + m*4096}")
        if m == 2:
            a(f"s_cmp_lt_u32 s{S_W}, 2"); a(f"s_cselect_b32 s{T0}, s{S_PL[2*j]}, s{S_PL[2*j+1]}")
            so = T0
        else: so = S_PL[2*j + (m > 2)]
        a(f"buffer_load_dwordx4 v{VW2[m]}, s[{SG}:{SG+3}], s{so} offen lds", tag=f"w{j}")

HR = 96; NH = 8; WB = 48; ACC2 = 128
S_N2G, S_HFA = 59, 98
def ca_scalars():
    o = [[f"s_bfe_u32 s{S_N2G}, s2, 0x10002", f"s_lshl_b32 s{S_N2G}, s{S_N2G}, 3", f"s_lshr_b32 s{S_HFA}, s2, 5"],
         [f"s_add_u32 s{S_N2G}, s{S_N2G}, s{S_HFA}", f"s_lshl_b32 s{S_N2G}, s{S_N2G}, 2", f"s_add_u32 s{S_N2G}, s{S_N2G}, s{S_W}"],
         [f"s_mul_i32 s{S_HFA}, s{S_N2G}, {54*2048}"]]
    o += c_scalars(2048, S_HFA, 1)
    o += [[f"s_lshl_b32 s{S_HFA}, s{S_N2G}, 11", f"s_add_u32 s{S_HFA}, s{S_HFA}, {F_HB}"]]
    return o
def hload(a, k, vl16):
    r = HR + 4*(k % NH)
    a(f"buffer_load_dwordx4 v[{r}:{r+3}], v{vl16}, s[{SS}:{SS+3}], s{S_PL[k//2]} offen offset:{(k%2)*1024} sc1", tag=f"h{k}")

XF = 96; ACC = (64, 80); RING = 32
STAT = 0; CSP = 1024; TAGL = 3584; HB = 8192; SGL = 40960
V_XA, V_TR, V_SSQ, V_SUM, V_CS, V_ONE, V_HO, V_J16, V_L16, V_Q = 2, 6, 10, 11, 12, 14, 18, 19, 20, 22
V_IRR, V_C0, V_C1 = 15, 16, 17
V_TRD = 24

def common_mlp_regs(a):
    a(f"""v_and_b32 v23, 31, v1
    v_lshrrev_b32 v21, 5, v1
    v_lshlrev_b32 v{V_J16}, 4, v23
    v_lshlrev_b32 v{V_HO}, 4, v1
    v_add_u32 v{V_L16}, s{S_M4}, v{V_HO}
    s_mov_b32 s{S_ROT}, 0xffff""")
def cs_publish(a, pidx, vcs):
    a(f"""v_mov_b32 v{V_Q}, v{vcs}
    v_permlane32_swap_b32 v{V_Q}, v{vcs}
    v_add_f32 v{V_Q}, v{V_Q}, v{vcs}
    s_lshl_b32 s{T0}, s{S_W}, 2
    v_add_u32 v{V_Q+1}, s{T0}, v{V_J16}""")
    a(f"ds_write_b32 v{V_Q+1}, v{V_Q} offset:{CSP + pidx*512}", tag="pub")
    a(f"v_mov_b32 v{vcs}, 0")
def handoff_write(a, acc, buf):
    for q in range(4):
        a(f"ds_write_b128 v{V_L16}, v[{acc+4*q}:{acc+4*q+3}] offset:{HB + buf*16384 + q*1024}", tag="pub")
def row_consts(a, vm, vrr, XE, t):
    a(f"""v_rcp_f32 v{V_IRR}, v{vrr}
    v_mul_f32 v{V_C0}, {fl(K0)}, v{vrr}
    v_mul_f32 v{V_C1}, v{vrr}, v{vrr}
    v_mul_f32 v{V_C1}, v{V_C1}, v{vrr}
    v_mul_f32 v{V_C1}, {fl(K1C)}, v{V_C1}
    v_sub_f32 v{vm}, 0, v{vm}
    v_cvt_pk_bf16_f32 v{XE}, v{vm}, v{vm}
    v_cvt_pk_bf16_f32 v{t+1}, v{V_IRR}, v{V_IRR}
    v_and_b32 v{t}, 0xffff0000, v{XE}
    v_and_b32 v{t+1}, 0xffff0000, v{t+1}
    v_sub_f32 v{t}, v{vm}, v{t}
    v_sub_f32 v{t+1}, v{V_IRR}, v{t+1}
    v_cvt_pk_bf16_f32 v{XE+1}, v{t}, v{V_IRR}
    v_cvt_pk_bf16_f32 v{XE+2}, v{t+1}, 0
    v_cmp_gt_u32 vcc, 32, v1
    v_mov_b32 v{XE+3}, 0
    v_cndmask_b32 v{XE}, 0, v{XE}, vcc
    v_cndmask_b32 v{XE+1}, 0, v{XE+1}, vcc
    v_cndmask_b32 v{XE+2}, 0, v{XE+2}, vcc""")
def prep1(a, pidx, T):
    a(f"ds_read_b128 v[{T}:{T+3}], v{V_J16} offset:{CSP + pidx*512}", tag=f"csp{pidx}")
def prep2(a, pidx, T, vb1, acc, XE):
    a.lgwait(f"csp{pidx}")
    a(f"""v_add_f32 v{T}, v{T}, v{T+1}
    v_add_f32 v{T+2}, v{T+2}, v{T+3}
    v_add_f32 v{T}, v{T}, v{T+2}
    v_cvt_pk_bf16_f32 v{T+1}, v{T}, v{T}
    v_and_b32 v{T+2}, 0xffff0000, v{T+1}
    v_sub_f32 v{T+2}, v{T}, v{T+2}
    v_cvt_pk_bf16_f32 v{T}, v{T}, v{T+2}
    v_and_or_b32 v{T+1}, v{T+1}, s{S_ROT}, v{vb1}
    v_lshrrev_b32 v{T+2}, 16, v{vb1}
    v_mov_b32 v{T+3}, 0""")
    a.lgwait(f"acc{pidx}")
    a(f"v_mfma_f32_32x32x16_bf16 v[{acc}:{acc+15}], v[{T}:{T+3}], v[{XE}:{XE+3}], v[{acc}:{acc+15}]")
def epi_step(a, pidx, q, P, U, O):
    for t in range(4): a(f"v_mul_f32 v{U+t}, v{P+t}, v{P+t}")
    for t in range(4): a(f"v_fma_f32 v{U+t}, v{U+t}, v{V_C1}, v{V_C0}")
    for t in range(4): a(f"v_mul_f32 v{U+t}, v{U+t}, v{P+t}")
    for t in range(4): a(f"v_exp_f32 v{U+t}, v{U+t}")
    for t in range(4): a(f"v_fma_f32 v{U+t}, v{U+t}, v{V_IRR}, v{V_IRR}")
    for t in range(4): a(f"v_rcp_f32 v{U+t}, v{U+t}")
    for t in range(4): a(f"v_mul_f32 v{P+t}, v{P+t}, v{U+t}")
    o = O + 2*(q % 2)
    a(f"v_cvt_pk_bf16_f32 v{o}, v{P}, v{P+1}")
    a(f"v_cvt_pk_bf16_f32 v{o+1}, v{P+2}, v{P+3}")
    if q % 2 == 1:
        a(f"buffer_store_dwordx4 v[{O}:{O+3}], v{V_HO}, s[{SS}:{SS+3}], s{S_PG+pidx} offen offset:{1024*(q//2)} {ST}", tag=f"h{pidx}")
def hf_addr(a, dst, second):
    if second:
        a(f"s_lshl_b32 s{dst}, s{S_RB}, 4")
    else:
        a(f"""s_lshl_b32 s{dst}, s{S_RB}, 2
        s_add_u32 s{dst}, s{dst}, s{S_W}
        s_lshl_b32 s{dst}, s{dst}, 4""")
    a(f"""s_add_u32 s{dst}, s{dst}, s{S_IDX}
    s_lshl_b32 s{dst}, s{dst}, 7
    s_add_u32 s{dst}, s{dst}, {F_HA if second else F_HB}""")

def mlp(a):
    a.label("L_mlp")
    a(f"""s_mul_i32 s{T0}, s{S_IDX}, 5
    s_lshr_b32 s{T1}, s{T0}, 1
    s_and_b32 s{T0}, s{T0}, 1
    s_add_u32 s{T2}, s{T1}, s{T0}
    s_lshl_b32 s{S_LA}, s{T2}, 7
    s_add_u32 s{S_LB}, s{S_LA}, 128
    s_lshl_b32 s{S_LC}, s{T1}, 7
    s_cmp_eq_u32 s{T0}, 0
    s_cselect_b32 s{T2}, 256, 64
    s_add_u32 s{S_LC}, s{S_LC}, s{T2}
    s_cmp_eq_u32 s{S_IDX}, 10
    s_cselect_b32 s{S_NP}, 4, 5
    s_cmp_eq_u32 s{S_SET}, 0
    s_cbranch_scc1 L_mlpA""")
    COLS = ((S_LA, 0), (S_LA, 64), (S_LB, 0), (S_LB, 64), (S_LC, 0))
    def panel_scalars(ps):
        a(f"""s_lshl_b32 s{T2}, s{S_RB}, 2
        s_add_u32 s{T2}, s{T2}, s{S_W}
        s_mul_i32 s{T2}, s{T2}, {54*2048}""")
        for p in ps:
            base, add = COLS[p]
            a(f"""s_add_u32 s{S_B1+p}, s{base}, {add}
            s_lshl_b32 s{S_PG+p}, s{S_B1+p}, 5
            s_add_u32 s{S_PG+p}, s{S_PG+p}, s{T2}""")
    VBP, VBS, VB1, XE = 6, 8, 9, 24
    a(f"""v_lshrrev_b32 v{VBP}, 3, v1
    s_lshl_b32 s{T0}, s{S_W}, 4
    v_add_u32 v{VBP}, s{T0}, v{VBP}
    v_mul_u32_u24 v{VBP}, 3456, v{VBP}
    v_bfe_u32 v23, v1, 4, 1
    v_lshlrev_b32 v23, 2, v23
    v_and_b32 v24, 7, v1
    v_xor_b32 v23, v23, v24
    v_lshl_add_u32 v{VBP}, v23, 4, v{VBP}
    v_add_u32 v{VBP+1}, {8*3456}, v{VBP}""")
    def b_dma(c, region, sline, tag):
        a(f"s_mul_i32 s{T0}, s{S_SX+c}, 1728")
        a(f"s_add_u32 s{T0}, s{T0}, s{sline}")
        for e in range(2):
            a(f"s_add_u32 m0, s{S_M2}, {region + c*8192 + e*1024}")
            a(f"buffer_load_dwordx4 v{VBP+e}, s[{SW}:{SW+3}], s{T0} offen {OPT['ntw']} lds", tag=tag)
    def chunk(c):
        x_dma(a, c); b_dma(c, 0, S_LA, f"x{c}")
    n0 = OPT["n0"]
    for c in range(n0): chunk(c)
    a(f"""v_lshrrev_b32 v{VBS}, 2, v1
    s_lshl_b32 s{T0}, s{S_W}, 4
    v_add_u32 v{VBS}, s{T0}, v{VBS}
    v_mul_u32_u24 v{VBS}, 3456, v{VBS}
    v_and_b32 v23, 3, v1
    v_lshl_add_u32 v{VBS}, v23, 4, v{VBS}""")
    panel_scalars(range(5))
    common_mlp_regs(a)
    nxt = n0
    for c in range(11):
        if c < 10: a.vmwait(f"x{c}")
        a("s_barrier")
        if c == 0: a.stamp(1)
        k = 0
        while nxt <= min(c + 4, 9) and k < 2:
            chunk(nxt); nxt += 1; k += 1
        if c >= 6:
            m = c - 6
            b_dma(2*m, XSLOT, S_LB, f"p{m}"); b_dma(2*m + 1, XSLOT, S_LB, f"p{m}")
        if c == 6:
            a(f"v_lshlrev_b32 v23, 1, v23")
            for p in range(5):
                a(f"buffer_load_short_d16_hi v{VB1+p}, v23, s[{SB}:{SB+3}], s{S_B1+p} offen", tag="b1")
        if c == 7: w2_setup(a)
    a.vmwait(["p0", "p1", "p2", "b1"])
    a("s_barrier")
    a.stamp(2)
    AR = {0: 64, 1: 80, 2: 96, 3: 112, 4: 128}
    def rd_acc(p, buf):
        for q in range(4):
            a(f"ds_read_b128 v[{AR[p]+4*q}:{AR[p]+4*q+3}], v{V_L16} offset:{HB + buf*16384 + q*1024}", tag=f"acc{p}")
    a(f"v_lshrrev_b32 v23, 1, v{V_J16}")
    a(f"s_lshl_b32 s{T0}, s{S_W}, 8")
    a(f"v_add_u32 v23, s{T0}, v23")
    a(f"ds_read_b64 v[28:29], v23 offset:{STAT}", tag="st")
    a(f"v_mov_b32 v22, 0")
    a(f"ds_read_b32 v22, v22 offset:{TAGL}", tag="st")
    prep1(a, 0, 32); rd_acc(0, 0); prep1(a, 1, 36); rd_acc(1, 1)
    a.lgwait("st")
    a(f"v_readfirstlane_b32 s{S_TAG}, v22")
    row_consts(a, 28, 29, XE, 30)
    prep2(a, 0, 32, VB1, AR[0], XE); prep2(a, 1, 36, VB1 + 1, AR[1], XE)
    U = 60; O = 56
    def sg(c):
        a(f"s_mul_i32 s{T0}, s{S_SX+c}, 1728")
        a(f"s_add_u32 s{T0}, s{T0}, s{S_LC}")
        a(f"s_lshr_b32 s{T1}, s{S_M2}, 1")
        a(f"s_add_u32 m0, s{T1}, {SGL + c*4096}")
        a(f"buffer_load_dwordx4 v{VBS}, s[{SW}:{SW+3}], s{T0} offen {OPT['ntw']} lds", tag="sg")
    steps = [(p, q) for p in range(4) for q in range(4)]
    for i, (p, q) in enumerate(steps):
        epi_step(a, p, q, AR[p] + 4*q, U, O)
        if i == 0:
            a.vmwait(["p3", "p4"]); a("s_barrier")
        if 1 <= i <= 5: sg(2*i - 2); sg(2*i - 1)
        if i == 5:
            a("s_barrier")
            prep1(a, 2, 32); rd_acc(2, 0)
        if i == 6: prep2(a, 2, 32, VB1 + 2, AR[2], XE)
        if i == 9:
            a.vmwait("sg"); a("s_barrier")
        if i == 11:
            a("s_barrier"); a.stamp(3)
            prep1(a, 3, 32); rd_acc(3, 1); prep2(a, 3, 32, VB1 + 3, AR[3], XE)
        if i == 10:
            hf_addr(a, S_LA, 0)
            a.vmwait("h1"); publish(a, S_LA, 2, 28, 29)
        if i == 13: w2_pair(a, 0)
        if i == 14:
            a.vmwait("h2"); publish(a, S_LA, 3, 28, 29)
        if i == 15: w2_pair(a, 1)
    a(f"s_cmp_eq_u32 s{S_NP}, 4")
    a("s_cbranch_scc1 L_mlpB4")
    vm4 = list(a.vm)
    a("s_barrier")
    a.stamp(4)
    prep1(a, 4, 32); rd_acc(4, 0); prep2(a, 4, 32, VB1 + 4, AR[4], XE)
    for q in (2, 3): epi_step(a, 4, q, AR[4] + 4*q, U, O)
    a("s_branch L_CB")
    a.label("L_mlpB4")
    tag_issue(a, 0, 31)
    a("s_branch L_CB")

    a.label("L_mlpA")
    a.vm = []; a.lg = []
    a("s_setprio 1")
    panel_scalars([4])
    common_mlp_regs(a)
    a(f"""v_bfe_u32 v25, v1, 1, 3
    v_xor_b32 v25, v25, v21
    s_lshl_b32 s{T0}, s{S_W}, 5
    v_add_u32 v26, s{T0}, v23
    v_lshlrev_b32 v26, 7, v26
    v_lshl_add_u32 v26, v25, 4, v26
    v_add_u32 v26, {XSLOT}, v26
    v_bfe_u32 v25, v1, 2, 2
    v_lshl_add_u32 v27, v21, 3, v25
    v_bfe_u32 v28, v1, 4, 1
    v_lshlrev_b32 v28, 5, v28
    v_and_b32 v29, 3, v1
    v_lshl_add_u32 v28, v29, 3, v28
    v_lshl_add_u32 v30, v27, 6, v28
    v_add_u32 v30, {SGL}, v30
    v_lshl_add_u32 v27, v27, 7, v28
    v_lshrrev_b32 v25, 1, v25
    v_lshl_add_u32 v27, v25, 6, v27
    v_lshlrev_b32 v23, 1, v23""")
    a(f"buffer_load_short_d16_hi v21, v23, s[{SB}:{SB+3}], s{S_B1+4} offen", tag="b1")
    for s in range(4):
        a(f"""s_add_u32 s{T0}, s{S_W}, {s}
        s_and_b32 s{T0}, s{T0}, 3
        s_lshl_b32 s{T1}, s{T0}, 5
        v_xor_b32 v{V_XA+s}, s{T1}, v26
        s_lshl_b32 s{T1}, s{T0}, 11
        v_add_u32 v{V_TR+s}, s{T1}, v27""")
    for s in range(4):
        a(f"""s_add_u32 s{T0}, s{S_W}, {s}
        s_and_b32 s{T0}, s{T0}, 3
        s_lshl_b32 s{T1}, s{T0}, 10
        v_add_u32 v{V_TRD+s}, s{T1}, v30""")
    VTX = 28
    for s in range(4): a(f"v_xor_b32 v{VTX+s}, 64, v{V_TR+s}")
    a(f"""v_mov_b32 v{V_SSQ}, 0
    v_mov_b32 v{V_SUM}, 0
    v_mov_b32 v{V_CS}, 0
    v_mov_b32 v{V_CS+1}, 0
    v_mov_b32 v{V_ONE}, 0x3f803f80""")
    def X(c):
        slot = c % 5
        if slot == 4:
            for s in range(4): a(f"v_add_u32 v{V_XA+s}, 16384, v{V_XA+s}")
        for s in range(4):
            k = 4*c + s
            a(f"ds_read_b128 v[{XF+4*k}:{XF+4*k+3}], v{V_XA+s} offset:{min(slot,3)*16384}", tag=f"X{c}")
        if slot == 4:
            for s in range(4): a(f"v_subrev_u32 v{V_XA+s}, 16384, v{V_XA+s}")
    def R(k):
        c, s = divmod(k, 4)
        if c == 8:
            a(f"v_add_u32 v{V_TR+s}, 65536, v{V_TR+s}"); a(f"v_add_u32 v{VTX+s}, 65536, v{VTX+s}")
        off = (c % 8) * 8192
        b = RING + 8*s
        for hf, vb in enumerate((V_TR + s, VTX + s)):
            a(f"ds_read_b64_tr_b16 v[{b+4*hf}:{b+4*hf+1}], v{vb} offset:{off}", tag=f"R{k}")
            a(f"ds_read_b64_tr_b16 v[{b+4*hf+2}:{b+4*hf+3}], v{vb} offset:{off+512}", tag=f"R{k}")
    a("s_barrier")
    a.stamp(1)
    X(0); R(0); R(1); R(2)
    a.lgwait("X0")
    for c in range(1, 11):
        a("s_barrier")
        if c <= 9: X(c)
        if c == 6: tag_issue(a, 15, 16)
        for s in range(4):
            k = 4*(c - 1) + s
            a.lgwait(f"R{k}")
            b = RING + 8*s
            for hf in range(2):
                acc = ACC[hf]
                src = "0" if k == 0 else f"v[{acc}:{acc+15}]"
                a(f"v_mfma_f32_32x32x16_bf16 v[{acc}:{acc+15}], v[{b+4*hf}:{b+4*hf+3}], v[{XF+4*k}:{XF+4*k+3}], {src}")
            if k + 3 < 40: R(k + 3)
            if s == 0:
                for r in range(8): a(f"v_dot2c_f32_bf16 v{V_CS + r//4}, v{b+r}, v{V_ONE}")
                for r in range(16):
                    x = XF + 16*(c - 1) + r
                    a(f"v_dot2c_f32_bf16 v{V_SSQ}, v{x}, v{x}"); a(f"v_dot2c_f32_bf16 v{V_SUM}, v{x}, v{V_ONE}")
                if c == 10:
                    a(f"""v_mov_b32 v{V_XA}, v{V_SUM}
                    v_mov_b32 v{V_XA+1}, v{V_SSQ}
                    v_permlane32_swap_b32 v{V_XA}, v{V_SUM}
                    v_permlane32_swap_b32 v{V_XA+1}, v{V_SSQ}
                    v_add_f32 v{V_SSQ}, v{V_XA+1}, v{V_SSQ}
                    v_add_f32 v{V_XA}, v{V_XA}, v{V_SUM}""")
            if c == 9 and s == 1:
                tag_check(a, 15, 16)
                a(f"v_mov_b32 v15, s{S_TAG}")
                a(f"ds_write_b32 v16, v15 offset:{TAGL}", tag="pub")
            if c == 10 and s == 1:
                stats_math(a, V_XA, V_SSQ, V_XA + 2, V_XA + 3, V_SUM, V_XA + 1)
                a(f"""v_lshrrev_b32 v{V_XA+2}, 1, v{V_J16}
                s_lshl_b32 s{T0}, s{S_W}, 8
                v_add_u32 v{V_XA+2}, s{T0}, v{V_XA+2}""")
                a(f"ds_write_b64 v{V_XA+2}, v[{V_XA}:{V_XA+1}] offset:{STAT}", tag="pub")
            if c == 10 and s == 2:
                cs_publish(a, 0, V_CS); cs_publish(a, 1, V_CS + 1)
                for s2 in range(4):
                    a(f"v_add_u32 v{V_TR+s2}, {XSLOT - 65536}, v{V_TR+s2}"); a(f"v_add_u32 v{VTX+s2}, {XSLOT - 65536}, v{VTX+s2}")
    handoff_write(a, ACC[0], 0); handoff_write(a, ACC[1], 1)
    a.lgall()
    a("s_barrier")
    a.stamp(2)
    def R2(g, s):
        p, c = divmod(g, 10)
        b = RING + 16*(g % 2) + 4*s
        if p < 2:
            vb = (V_TR, VTX)[p] + s
            if c == 8: a(f"v_add_u32 v{vb}, 65536, v{vb}")
            off = (c % 8) * 8192; d = 512
        else:
            vb = V_TRD + s; off = c * 4096; d = 256
        a(f"ds_read_b64_tr_b16 v[{b}:{b+1}], v{vb} offset:{off}", tag=f"Q{g}_{s}")
        a(f"ds_read_b64_tr_b16 v[{b+2}:{b+3}], v{vb} offset:{off+d}", tag=f"Q{g}_{s}")
    for s in range(4): R2(0, s)
    XEA = 4
    cas = ca_scalars()
    assert len(cas) <= 28
    for g in range(30):
        p, c = divmod(g, 10)
        acc = ACC[p % 2]; vcs = V_CS + p % 2
        if g == 5: a("s_barrier")
        for s in range(4):
            a.lgwait(f"Q{g}_{s}")
            k = 4*c + s; b = RING + 16*(g % 2) + 4*s
            src = "0" if k == 0 else f"v[{acc}:{acc+15}]"
            a(f"v_mfma_f32_32x32x16_bf16 v[{acc}:{acc+15}], v[{b}:{b+3}], v[{XF+4*k}:{XF+4*k+3}], {src}")
            if g + 1 < 30: R2(g + 1, s)
            if g == 10 and s == 1:
                handoff_write(a, ACC[0], 0); cs_publish(a, 2, V_CS)
            if g == 20 and s == 1:
                handoff_write(a, ACC[1], 1); cs_publish(a, 3, V_CS + 1)
            if g == 22 and s == 0: row_consts(a, 2, 3, XEA, 8)
            if 11 <= g <= 17:
                for grp in cas[(g-11)*4 + s: (g-11)*4 + s + 1]:
                    for x in grp: a(x)
            if g == 25 and s == 0:
                a(f"v_lshlrev_b32 v8, 7, v1"); poll_issue(a, 8, S_HFA, S_MSK, 9)
            if g == 28 and s == 0: poll_check(a, 8, S_HFA, 2, S_MSK, 9)
            if g >= 28 and (g, s) != (28, 0) and (g - 28)*4 + s - 1 < NH - 2: hload(a, (g - 28)*4 + s - 1, V_HO)
        if g == 10:
            a.lgwait("pub"); a("s_barrier")
        if g == 17: a("s_barrier")
        if g == 20:
            a.lgwait("pub"); a("s_barrier"); a.stamp(3)
        lab = f"L_cs_{g}"
        a(f"s_cmp_lg_u32 s{S_W}, {c % 4}")
        a(f"s_cbranch_scc1 {lab}")
        for r in range(16): a(f"v_dot2c_f32_bf16 v{vcs}, v{RING + 16*(g % 2) + r}, v{V_ONE}")
        a.label(lab)
        if g == 19:
            a(f"s_cmp_eq_u32 s{S_NP}, 4")
            a("s_cbranch_scc1 L_np4")
    a("s_nop 3")
    cs_publish(a, 4, V_CS); handoff_write(a, ACC[0], 0)
    a.lgall(); a("s_barrier"); a.stamp(4)
    prep1(a, 4, 32); prep2(a, 4, 32, 21, ACC[0], XEA)
    for q in (0, 1): epi_step(a, 4, q, ACC[0] + 4*q, 60, 56)
    hf_addr(a, S_LA, 1)
    a("s_branch L_CA")
    a.label("L_np4")
    a("s_nop 15")
    cs_publish(a, 3, V_CS + 1); handoff_write(a, ACC[1], 1)
    hf_addr(a, S_LA, 1)
    a.lgall(); a("s_barrier")
    a.vm = []
    a(f"v_lshlrev_b32 v8, 7, v1")
    poll(a, 8, S_HFA, 2, S_MSK, 9)
    for k in range(NH - 2): hload(a, k, V_HO)
    tag_issue(a, 0, 9)
    a("s_branch L_CA")

def merge(a, mf, va):
    n = len(mf); m = len(va); j = 0
    for i in range(n):
        a(mf[i])
        k = (i + 1) * m // n
        while j < k:
            x = va[j]; j += 1
            x() if callable(x) else a(x)

WPAR = 10240; LW = XSLOT; LT = 0; EXS = 122880; EXF = 131072
def dft(a):
    a.label("L_dft")
    a.vm = []; a.lg = []
    a(f"""s_cmp_eq_u32 s{S_SET}, 0
    s_cselect_b64 vcc, -1, 0
    v_cndmask_b32 v{VXO}, v{VXO+2}, v{VXO}, vcc
    v_cndmask_b32 v{VXO+1}, v{VXO+3}, v{VXO+1}, vcc
    s_lshl_b32 s{T0}, s{S_SET}, 11
    s_add_u32 s{S_LB}, s{S_M4}, s{T0}""")
    def xd(c, e):
        a(f"s_add_u32 m0, s{S_LB}, {XSLOT + (c % 5)*16384 + e*1024}")
        a(f"buffer_load_dwordx4 v{VXO+e}, s[{SX}:{SX+3}], s{S_SX+c} offen {OPT['ntx']} lds", tag=f"x{c}")
    n0 = 3
    for c in range(n0): xd(c, 0); xd(c, 1)
    a("s_load_dwordx4 s[68:71], s[0:1], 8")
    VF, VFS, VD, VM, VMS, VW = 6, 7, 8, 9, 10, 11
    a(f"""s_lshl_b32 s{T0}, s{S_IDX}, 1
    s_add_u32 s{S_LA}, s{T0}, s{S_SET}      ; hg
    s_lshl_b32 s{T0}, s{S_LA}, 4
    v_and_b32 v12, 15, v1
    v_add_u32 v12, s{T0}, v12
    v_cmp_eq_u32 vcc, 0, v12
    v_mov_b32 v13, 160
    v_cndmask_b32 v13, v12, v13, vcc
    s_mov_b64 s[74:75], vcc
    v_cvt_f32_u32 v{VF}, v12
    v_cvt_f32_u32 v{VFS}, v13
    v_mul_f32 v{VF}, {fl(1/640)}, v{VF}
    v_mul_f32 v{VFS}, {fl(-1/640)}, v{VFS}
    s_and_b32 s{T0}, s{S_V}, 1
    s_bfe_u32 s{T1}, s{S_V}, 0x10001
    s_cmp_eq_u32 s{T1}, 0
    s_cselect_b32 s{T2}, s{S_SX}, s{S_SX+5}
    s_lshr_b32 s{T2}, s{T2}, 1
    s_add_u32 s{T2}, s{T2}, s{T0}
    v_lshrrev_b32 v{VD}, 4, v1
    v_lshlrev_b32 v{VD}, 3, v{VD}
    v_add_u32 v{VD}, s{T2}, v{VD}
    v_cvt_f32_u32 v{VD}, v{VD}
    v_add_f32 v{VD}, 0.5, v{VD}
    s_mul_i32 s{T2}, s{S_SET}, 40968
    s_mul_i32 s{T1}, s{T1}, 20480
    s_add_u32 s{T2}, s{T2}, s{T1}
    s_lshl_b32 s{T0}, s{T0}, 11
    s_add_u32 s{T2}, s{T2}, s{T0}
    v_lshl_add_u32 v{VW}, v1, 4, s{T2}
    v_xor_b32 v14, 8, v{VW}
    v_mul_f32 v{VM}, {fl(32.0)}, v{VF}
    v_mul_f32 v{VMS}, {fl(32.0)}, v{VFS}
    v_cos_f32 v{VM}, v{VM}
    v_cos_f32 v{VMS}, v{VMS}
    v_mul_f32 v12, v{VD}, v{VF}
    v_mul_f32 v13, v{VD}, v{VFS}
    v_add_f32 v{VM}, v{VM}, v{VM}
    v_add_f32 v{VMS}, v{VMS}, v{VMS}""")
    CC, SN = 64, 80
    for u in range(2):
        for e in range(4):
            dl = 32*u + 2*e
            if dl:
                a(f"v_fmamk_f32 v{CC+4*u+e}, v{VF}, {fl(dl)}, v12"); a(f"v_fmamk_f32 v{SN+4*u+e}, v{VFS}, {fl(dl)}, v13")
                a(f"v_cos_f32 v{CC+4*u+e}, v{CC+4*u+e}"); a(f"v_sin_f32 v{SN+4*u+e}, v{SN+4*u+e}")
            else:
                a(f"v_cos_f32 v{CC}, v12"); a(f"v_sin_f32 v{SN}, v13")
    for m in range(5):
        o = 96 + 8*(m % 2)
        for r in range(4):
            a(f"v_cvt_pk_bf16_f32 v{o+r}, v{CC+2*r}, v{CC+2*r+1}")
            a(f"v_cvt_pk_bf16_f32 v{o+4+r}, v{SN+2*r}, v{SN+2*r+1}")
        a(f"ds_write2st64_b64 v{VW}, v[{o}:{o+1}], v[{o+4}:{o+5}] offset0:{m*8} offset1:{m*8+2}")
        a(f"ds_write2st64_b64 v14, v[{o+2}:{o+3}], v[{o+6}:{o+7}] offset0:{m*8} offset1:{m*8+2}")
        if m < 4:
            for u in range(2):
                for e in range(4):
                    a(f"v_fma_f32 v{CC+4*u+e}, v{VM}, v{CC+4*(1-u)+e}, -v{CC+4*u+e}")
                    a(f"v_fma_f32 v{SN+4*u+e}, v{VMS}, v{SN+4*(1-u)+e}, -v{SN+4*u+e}")
    XA = 6; VB = 10; SE, SO = 11, 12; ON = 16
    a(f"""v_and_b32 v18, 15, v1
    v_lshrrev_b32 v19, 4, v1
    v_bfe_u32 v20, v1, 1, 3
    v_xor_b32 v20, v20, v19
    s_lshl_b32 s{T0}, s{S_SET}, 2
    v_xor_b32 v20, s{T0}, v20
    s_lshl_b32 s{T0}, s{S_W}, 5
    v_add_u32 v18, s{T0}, v18
    v_lshlrev_b32 v18, 7, v18
    v_lshl_add_u32 v{XA}, v20, 4, v18
    v_add_u32 v{XA}, {XSLOT}, v{XA}
    v_xor_b32 v{XA+1}, 64, v{XA}
    v_add_u32 v{XA+2}, 2048, v{XA}
    v_add_u32 v{XA+3}, 2048, v{XA+1}
    s_mul_i32 s{T0}, s{S_SET}, 40960
    v_lshl_add_u32 v{VB}, v1, 4, s{T0}
    v_mov_b32 v{SE}, 0x05040100
    v_mov_b32 v{SO}, 0x07060302
    v_mov_b32 v{ON}, 0x3f803f80
    v_mov_b32 v{ON+1}, 0x3f803f80
    v_mov_b32 v{ON+2}, 0x3f803f80
    v_mov_b32 v{ON+3}, 0x3f803f80
    s_lshl_b32 s{T0}, s{S_RB}, 2
    s_add_u32 s{S_LC}, s{T0}, s{S_W}        ; n2""")
    FO = 40
    f1 = f"""v_lshrrev_b32 v20, 4, v1
    v_lshlrev_b32 v20, 8, v20
    v_add_u32 v20, s{S_LC}, v20
    v_cvt_f32_u32 v20, v20
    v_and_b32 v21, 1, v1
    s_lshl_b32 s{T0}, s{S_SET}, 4
    v_and_b32 v22, 15, v1
    v_add_u32 v22, s{T0}, v22
    v_lshrrev_b32 v23, 1, v22
    v_cvt_f32_u32 v23, v23
    v_cmp_eq_u32 vcc, 1, v21
    v_sub_f32 v21, 0, v23
    v_cndmask_b32 v23, v21, v23, vcc
    v_mov_b32 v21, 0.25
    v_cndmask_b32 v21, 0, v21, vcc
    v_cmp_eq_u32 vcc, 1, v22
    v_mov_b32 v22, {fl(-16.0)}
    v_cndmask_b32 v23, v23, v22, vcc
    v_mov_b32 v22, 0
    v_cndmask_b32 v21, v21, v22, vcc
    v_mul_f32 v23, {fl(1/2048)}, v23
    v_fma_f32 v21, v23, v20, v21""".split("\n")
    for jj in range(8):
        dn = 64*(16*(jj//4) + jj % 4)
        f1.append(f"v_mov_b32 v{24+jj}, v21" if dn == 0 else f"v_fmamk_f32 v{24+jj}, v23, {fl(dn)}, v21")
    for jj in range(8): f1 += [f"v_sin_f32 v{32+jj}, v{24+jj}", f"v_cos_f32 v{24+jj}, v{24+jj}"]
    for r in range(4): f1 += [f"v_cvt_pk_bf16_f32 v{FO+r}, v{24+2*r}, v{25+2*r}", f"v_cvt_pk_bf16_f32 v{FO+4+r}, v{32+2*r}, v{33+2*r}"]
    f1parts = {2: f1[:16], 3: f1[16:30], 4: f1[30:42], 5: f1[42:]}
    HP, F0, K1W, SGN, HG = 61, 62, 63, 64, 65
    a.lgall()
    a(f"""s_cmp_lt_u32 s{S_W}, 2
    s_cselect_b32 s10, s68, s70
    s_cselect_b32 s11, s69, s71""")
    srd(a, SW, 10, 2048*642)
    a(f"""s_and_b32 s{HG}, s{S_IDX}, 1
    s_lshl_b32 s{F0}, s{HG}, 6
    s_lshl_b32 s{HG}, s{HG}, 2
    s_add_u32 s{HG}, s{HG}, s{S_W}
    s_lshr_b32 s{SGN}, s{S_IDX}, 1
    s_sub_u32 s{T2}, 257, s{F0}
    s_cmp_eq_u32 s{SGN}, 0
    s_cselect_b32 s{F0}, s{F0}, s{T2}
    s_and_b32 s{T0}, s{S_W}, 1
    s_add_u32 s{T1}, s{T0}, 8
    s_lshr_b32 s{T2}, s{S_W}, 1
    s_cmp_eq_u32 s{S_IDX}, 4
    s_cselect_b32 s{HG}, s{T1}, s{HG}
    s_cselect_b32 s{SGN}, s{T2}, s{SGN}
    s_cselect_b32 s{F0}, 128, s{F0}
    s_lshl_b32 s{HP}, s{HG}, 1
    s_add_u32 s{HP}, s{HP}, s{SGN}
    s_sub_u32 s{T2}, 0, s{S_RB}
    s_cmp_eq_u32 s{S_RB}, 0
    s_cselect_b32 s66, 16, s{T2}
    s_cmp_eq_u32 s{T0}, 0
    s_cselect_b32 s{K1W}, s{S_RB}, s66
    s_mul_i32 s{T0}, s{K1W}, 642
    s_lshl_b32 s{T1}, s{F0}, 1
    s_add_u32 s{T1}, s{T1}, s{T0}
    s_and_b32 s{T1}, s{T1}, -16
    s_add_u32 s{T0}, s{T0}, 320
    s_and_b32 s{T0}, s{T0}, -16
    s_sub_u32 s{T0}, s{T0}, s{T1}
    s_sub_u32 s68, s{T0}, 144               ; C9
    s_mul_i32 s{T0}, s{S_SET}, {32*20544}
    s_add_u32 s69, s{T1}, s{T0}
    s_cmp_lt_i32 s69, 0
    s_cselect_b32 s70, {2048*642}, 0
    s_cmp_lt_i32 s{K1W}, 0
    s_cselect_b32 s70, {2048*642}, 0
    s_cmp_eq_u32 s{S_SET}, 0
    s_cselect_b32 s70, s70, 0
    s_mul_i32 s71, s{S_W}, {WPAR}
    s_mul_i32 s{T0}, s{S_SET}, 5120
    s_add_u32 s71, s71, s{T0}
    s_mov_b32 s67, 20544""")
    WV = 48
    wv = []
    for i in range(5):
        wv += f"""v_add_u32 v56, {64*i}, v1
        v_mul_u32_u24 v57, 6554, v56
        v_lshrrev_b32 v57, 16, v57
        v_mul_u32_u24 v58, 10, v57
        v_sub_u32 v58, v56, v58
        v_cmp_eq_u32 vcc, 9, v58
        v_lshl_add_u32 v58, v58, 4, s69
        v_mad_u32_u24 v{WV+i}, v57, s67, v58
        v_mov_b32 v56, s68
        v_cndmask_b32 v56, 0, v56, vcc
        v_add_u32 v{WV+i}, v{WV+i}, v56""".split("\n")
    wv += f"""v_add_u32 v56, s70, v{WV}
    v_cmp_gt_u32 vcc, 10, v1
    v_cndmask_b32 v{WV}, v{WV}, v56, vcc""".split("\n")
    f1parts[6] = wv[:22]; f1parts[7] = wv[22:44]; f1parts[8] = wv[44:]
    def wd(i):
        a(f"s_add_u32 m0, s71, {LW + i*1024}")
        a(f"buffer_load_dwordx4 v{WV+i}, s[{SW}:{SW+3}], 0 offen lds", tag="w")
    a.lgall()
    XRB = (64, 80); TBB = (96, 112); EOB = (128, 144); AC = 160; GS = 192
    nxt = n0
    for c in range(12):
        rd = []
        if c < 10:
            a.vmwait(f"x{c}")
            a("s_barrier")
            if c == 0: a.stamp(1)
            slot = c % 5
            XR = XRB[c % 2]
            for s in range(4):
                g = []
                if slot == 4: g.append(f"v_add_u32 v{XA+s}, 16384, v{XA+s}")
                g.append(f"ds_read_b128 v[{XR+4*s}:{XR+4*s+3}], v{XA+s} offset:{min(slot,3)*16384}")
                if slot == 4: g.append(f"v_subrev_u32 v{XA+s}, 16384, v{XA+s}")
                rd.append(g)
        if 1 <= c <= 10:
            TB = TBB[(c - 1) % 2]
            for ty in range(4):
                rd.append([f"ds_read_b128 v[{TB+4*ty}:{TB+4*ty+3}], v{VB} offset:{(c-1)*4096 + ty*1024}"])
        todo = []
        while nxt <= min(c + 4, 9) and len(todo) < 2: todo.append(nxt); nxt += 1
        for cc in todo:
            for e in range(2): rd.append([lambda cc=cc, e=e: xd(cc, e)])
        if c == 6: rd.append([lambda: tag_issue(a, 4, 5)])
        if c == 9:
            for i in range(5): rd.append([lambda i=i: wd(i)])
        mf = []; va = []
        if c >= 2:
            EO, TB = EOB[c % 2], TBB[c % 2]
            for t in range(2):
                for ty in range(4):
                    acc = AC + 8*ty + 4*t; xs = EO + 8*t + 4*(ty // 2)
                    mf.append(f"v_mfma_f32_16x16x32_bf16 v[{acc}:{acc+3}], v[{xs}:{xs+3}], v[{TB+4*ty}:{TB+4*ty+3}], " + ("0" if c == 2 else f"v[{acc}:{acc+3}]"))
        if 1 <= c <= 10:
            XR, EO = XRB[(c - 1) % 2], EOB[(c - 1) % 2]
            for t in range(2):
                x = XR + 8*t
                mf.append(f"v_mfma_f32_16x16x32_bf16 v[{GS+4*t}:{GS+4*t+3}], v[{x}:{x+3}], v[{x}:{x+3}], " + ("0" if c == 1 else f"v[{GS+4*t}:{GS+4*t+3}]"))
                mf.append(f"v_mfma_f32_16x16x32_bf16 v[{GS+8+4*t}:{GS+8+4*t+3}], v[{x}:{x+3}], v[{ON}:{ON+3}], " + ("0" if c == 1 else f"v[{GS+8+4*t}:{GS+8+4*t+3}]"))
            for t in range(2):
                for ks in range(2):
                    for r in range(2):
                        lo = XR + 8*t + 4*ks + 2*r
                        va.append(f"v_perm_b32 v{EO+8*t+2*ks+r}, v{lo+1}, v{lo}, v{SE}")
                        va.append(f"v_perm_b32 v{EO+8*t+4+2*ks+r}, v{lo+1}, v{lo}, v{SO}")
        va += f1parts.get(c, [])
        n = max(len(mf), 1)
        for i in range(n):
            if mf: a(mf[i])
            for grp in rd[i*len(rd)//n:(i+1)*len(rd)//n]:
                for x in grp: x() if callable(x) else a(x)
            for x in va[i*len(va)//n:(i+1)*len(va)//n]: a(x)
        if c == 10:
            a(f"""v_and_b32 v20, 1, v1
            v_cmp_eq_u32 s[96:97], 1, v20
            v_and_b32 v20, 2, v1
            v_cmp_eq_u32 vcc, 2, v20""")
            for i in range(4):
                g = GS + 4*i
                a(f"v_cndmask_b32 v{g}, v{g}, v{g+1}, s[96:97]")
                a(f"v_cndmask_b32 v{g+2}, v{g+2}, v{g+3}, s[96:97]")
            a(f"""v_cndmask_b32 v24, v{GS}, v{GS+2}, vcc
            v_cndmask_b32 v25, v{GS+8}, v{GS+10}, vcc
            v_cndmask_b32 v26, v{GS+4}, v{GS+6}, vcc
            v_cndmask_b32 v27, v{GS+12}, v{GS+14}, vcc
            v_bfe_u32 v20, v1, 2, 2
            v_lshrrev_b32 v21, 4, v1
            v_cmp_eq_u32 vcc, v20, v21
            s_lshl_b32 s{T0}, s{S_SET}, 10
            s_lshl_b32 s{T1}, s{S_W}, 8
            s_add_u32 s{T0}, s{T0}, s{T1}
            s_add_u32 s{T0}, s{T0}, {EXS}
            v_and_b32 v20, 15, v1
            v_lshl_add_u32 v20, v20, 3, s{T0}
            v_mov_b32 v21, {EXS + 3072}
            v_cndmask_b32 v20, v21, v20, vcc
            ds_write2_b64 v20, v[24:25], v[26:27] offset0:0 offset1:16
            s_lshl_b32 s{T0}, s{S_V}, 11
            s_add_u32 s{T0}, s{T0}, {EXF}
            v_lshl_add_u32 v18, v1, 4, s{T0}
            ds_write_b128 v18, v[{FO}:{FO+3}]
            ds_write_b128 v18, v[{FO+4}:{FO+7}] offset:1024
            v_xor_b32 v18, 8192, v18
            v_and_b32 v20, 31, v1
            v_lshl_add_u32 v20, v20, 3, s{T1}
            v_add_u32 v20, {EXS}, v20""")
        if c < 11: a.lgall()
        if c == 10:
            a("s_barrier")
            a(f"ds_read_b64 v[24:25], v20", tag="s")
            a(f"ds_read_b64 v[26:27], v20 offset:1024", tag="s")
            a(f"ds_read_b128 v[48:51], v18", tag="f")
            a(f"ds_read_b128 v[52:55], v18 offset:1024", tag="f")
    a.stamp(2)
    a.lgwait("s")
    a(f"""v_add_f32 v24, v24, v26
    v_add_f32 v25, v25, v27""")
    stats_math(a, 25, 24, 26, 27, 28)
    a(f"""s_lshl_b32 s{T0}, s{S_V}, 7
    s_add_u32 s{T0}, s{T0}, {EXS + 4096}
    v_and_b32 v20, 31, v1
    v_lshl_add_u32 v20, v20, 2, s{T0}
    ds_write_b32 v20, v28
    v_lshrrev_b32 v19, 4, v1
    v_lshl_add_u32 v19, v19, 4, s{T0}""")
    a(f"ds_read_b128 v[24:27], v19", tag="r")
    a(f"ds_read_b128 v[28:31], v19 offset:64", tag="r")
    FRr, FIr, FNr = (40, 48), (44, 52), (56, 60)
    for u in range(2):
        for r in range(4): a(f"v_xor_b32 v{FNr[u]+r}, 0x80008000, v{FIr[u]+r}")
    tag_check(a, 4, 5)
    a(f"""s_lshl_b32 s{T0}, s{S_V}, 12
    v_lshrrev_b32 v14, 4, v1
    v_lshlrev_b32 v14, 7, v14
    v_and_b32 v15, 15, v1
    v_lshl_add_u32 v14, v15, 2, v14
    v_add_u32 v14, s{T0}, v14
    s_lshl_b32 s{T1}, s{S_SET}, 9
    v_add_u32 v14, s{T1}, v14
    v_xor_b32 v13, 512, v14
    v_lshl_add_u32 v15, v1, 4, s{T0}
    v_lshrrev_b32 v16, 2, v1
    v_mul_u32_u24 v16, 163840, v16
    v_and_b32 v17, 3, v1
    v_lshl_add_u32 v16, v17, 4, v16
    s_lshl_b32 s{T0}, s{S_LA}, 14
    s_lshl_b32 s{T1}, s{S_LC}, 6
    s_add_u32 s{T0}, s{T0}, s{T1}
    s_add_u32 s{T0}, s{T0}, {WS_T}""")
    a.lgwait("r")
    for i in range(8):
        er, ei, orr, oi, rho = AC + i, AC + 8 + i, AC + 16 + i, AC + 24 + i, 24 + i
        a(f"""v_mul_f32 v20, v{orr}, v{rho}
        v_mul_f32 v21, v{oi}, v{rho}
        v_fma_f32 v{oi}, -v{er}, v{rho}, v20
        v_fma_f32 v{er}, v{er}, v{rho}, v20
        v_fma_f32 v{orr}, -v{ei}, v{rho}, v21
        v_fma_f32 v{ei}, v{ei}, v{rho}, v21""")
    a(f"s_cmp_lg_u32 s{S_LA}, 0")
    a("s_cbranch_scc1 L_dnsp")
    for i in range(8):
        a(f"v_cndmask_b32 v{AC+i}, v{AC+i}, v{AC+16+i}, s[74:75]")
        a(f"v_cndmask_b32 v{AC+16+i}, v{AC+16+i}, 0, s[74:75]")
    a.label("L_dnsp")
    XB = 64; OUT = 80
    def o(sgn, cc, u): return OUT + 16*sgn + 8*cc + 4*u
    for sgn in range(2):
        for ty in (2*sgn, 2*sgn + 1):
            for r in range(4):
                a(f"v_cvt_pk_bf16_f32 v{XB+4*ty+r}, v{AC+8*ty+2*r}, v{AC+8*ty+2*r+1}")
        xr, xi = XB + 8*sgn, XB + 8*sgn + 4
        for u in range(2):
            a(f"v_mfma_f32_16x16x32_bf16 v[{o(sgn,0,u)}:{o(sgn,0,u)+3}], v[{FRr[u]}:{FRr[u]+3}], v[{xr}:{xr+3}], 0")
            a(f"v_mfma_f32_16x16x32_bf16 v[{o(sgn,1,u)}:{o(sgn,1,u)+3}], v[{FIr[u]}:{FIr[u]+3}], v[{xr}:{xr+3}], 0")
        for u in range(2):
            a(f"v_mfma_f32_16x16x32_bf16 v[{o(sgn,0,u)}:{o(sgn,0,u)+3}], v[{FNr[u]}:{FNr[u]+3}], v[{xi}:{xi+3}], v[{o(sgn,0,u)}:{o(sgn,0,u)+3}]")
            a(f"v_mfma_f32_16x16x32_bf16 v[{o(sgn,1,u)}:{o(sgn,1,u)+3}], v[{FRr[u]}:{FRr[u]+3}], v[{xi}:{xi+3}], v[{o(sgn,1,u)}:{o(sgn,1,u)+3}]")
    for sgn in range(2):
        for cc in range(2):
            it = 2*sgn + cc
            for u in range(2):
                r = o(sgn, cc, u)
                a(f"v_cvt_pk_bf16_f32 v{r}, v{r}, v{r+1}")
                a(f"v_cvt_pk_bf16_f32 v{r+1}, v{r+2}, v{r+3}")
                a(f"ds_write_b32 v{14-u}, v{r} offset:{it*1024}")
                a(f"ds_write_b32 v{14-u}, v{r+1} offset:{it*1024+64}")
            a(f"ds_read_b128 v[{128+4*it}:{131+4*it}], v15 offset:{it*1024}", tag=f"r{it}")
    for it in range(4):
        a.lgwait(f"r{it}")
        a(f"s_add_u32 s{T1}, s{T0}, {it*4096}")
        a(f"buffer_store_dwordx4 v[{128+4*it}:{131+4*it}], v16, s[{SS}:{SS+3}], s{T1} offen {ST}", tag="T")
    a.stamp(3)
    a(f"s_cmp_eq_u32 s{S_SET}, 0")
    a("s_cbranch_scc1 L_fft")
    vm = list(a.vm)
    a(f"""s_lshl_b32 s{S_LA}, s{S_IDX}, 4
    s_add_u32 s{S_LA}, s{S_LA}, s{S_RB}
    s_lshl_b32 s{S_LA}, s{S_LA}, 7
    s_add_u32 s{S_LA}, s{S_LA}, {F_TF}""")
    a.vmwait("T")
    a("s_barrier")
    a(f"s_cmp_lg_u32 s{S_V}, 4")
    a("s_cbranch_scc1 L_dnp")
    publish(a, S_LA, 5, 28, 29)
    a.label("L_dnp")
    w2_setup(a)
    a(f"""s_lshl_b32 s{S_LA}, s2, 2
    s_add_u32 s{S_LA}, s{S_LA}, s{S_W}
    s_lshl_b32 s{S_LA}, s{S_LA}, 7
    s_add_u32 s{S_LA}, s{S_LA}, {F_DM}""")
    a("s_barrier")
    a("s_sleep 4")
    w2_pair(a, 0); w2_pair(a, 1)
    tag_issue(a, 0, 31)
    a("s_branch L_CB")
    a.vm = vm
    fft(a)

def fft(a):
    a.label("L_fft")
    s_w, s_jp, s_g = S_W, S_RB, S_IDX
    HP, F0, K1W, SGN, HG, PHI, MK = 61, 62, 63, 64, 65, 67, 68
    a(f"""v_and_b32 v4, 1, v1
    v_bfe_u32 v5, v1, 1, 4
    s_lshl_b32 s{T0}, s{HG}, 4
    v_add_u32 v5, s{T0}, v5
    v_cmp_eq_u32 vcc, 0, v5
    s_cmp_eq_u32 s{SGN}, 0
    s_cselect_b64 s[{MK}:{MK+1}], vcc, 0
    v_sub_u32 v6, 320, v5
    s_cselect_b64 vcc, -1, 0
    v_cndmask_b32 v5, v6, v5, vcc
    v_subrev_u32 v5, s{F0}, v5
    v_lshlrev_b32 v5, 1, v5
    v_mov_b32 v6, s{s_jp}
    v_mov_b32 v7, s66
    v_cmp_eq_u32 vcc, 1, v4
    v_cndmask_b32 v6, v6, v7, vcc
    v_add_u32 v7, s{F0}, v6
    v_lshlrev_b32 v7, 1, v7
    v_and_b32 v7, 15, v7
    v_add_u32 v5, v5, v7
    v_lshlrev_b32 v6, 1, v6
    v_and_b32 v6, 15, v6
    v_add_u32 v6, 144, v6
    v_cndmask_b32 v5, v5, v6, s[{MK}:{MK+1}]
    v_mul_u32_u24 v4, {WPAR}, v4
    v_lshrrev_b32 v6, 5, v1
    v_mul_u32_u24 v6, 640, v6
    v_add3_u32 v2, v4, v5, v6
    v_add_u32 v2, {LW}, v2""")
    C, SN = 16, 48
    a(f"""v_and_b32 v4, 31, v1
    v_cvt_f32_u32 v5, v4
    v_mul_f32 v5, {fl(1/64)}, v5
    v_lshrrev_b32 v6, 5, v1
    v_lshlrev_b32 v6, 2, v6
    v_cvt_f32_u32 v6, v6
    v_mul_f32 v6, v6, v5
    v_and_b32 v4, 1, v4
    v_mov_b32 v7, 0x80008000
    v_cmp_eq_u32 vcc, 1, v4
    v_cndmask_b32 v7, 0, v7, vcc""")
    for s in range(2):
        for jj in range(8):
            b = 16*s + 8*(jj//4) + jj % 4
            if b: a(f"v_fmamk_f32 v{128+jj}, v5, {fl(b)}, v6")
            else: a(f"v_mov_b32 v{128+jj}, v6")
        for jj in range(8):
            a(f"v_sin_f32 v{136+jj}, v{128+jj}"); a(f"v_cos_f32 v{128+jj}, v{128+jj}")
        for r in range(4):
            a(f"v_cvt_pk_bf16_f32 v{C+4*s+r}, v{128+2*r}, v{129+2*r}")
            a(f"v_cvt_pk_bf16_f32 v{SN+4*s+r}, v{136+2*r}, v{137+2*r}")
    for base in (C, SN):
        for r in range(8): a(f"v_xor_b32 v{base+8+r}, v7, v{base+r}")
        for r in range(16): a(f"v_xor_b32 v{base+16+r}, 0x80000000, v{base+r}")
    a(f"""s_lshl_b32 s{T1}, s{s_w}, 13
    v_lshrrev_b32 v5, 5, v1
    v_bfe_u32 v6, v1, 2, 2
    v_lshl_add_u32 v6, v5, 2, v6
    v_lshlrev_b32 v6, 6, v6
    v_bfe_u32 v7, v1, 4, 1
    v_lshl_add_u32 v6, v7, 5, v6
    v_and_b32 v7, 3, v1
    v_lshl_add_u32 v6, v7, 3, v6
    v_add_u32 v4, s{T1}, v6
    s_lshr_b32 s{PHI}, s{s_jp}, 1
    s_and_b32 s{PHI}, s{PHI}, 2
    v_and_b32 v6, 7, v1
    v_xor_b32 v6, v6, v5
    v_xor_b32 v6, s{PHI}, v6
    v_and_b32 v7, 31, v1
    v_lshlrev_b32 v7, 7, v7
    v_lshl_add_u32 v8, v6, 4, v7
    v_add_u32 v8, s{T1}, v8
    v_xor_b32 v9, 32, v8
    v_xor_b32 v10, 64, v8
    v_xor_b32 v11, 96, v8
    v_lshrrev_b32 v6, 3, v1
    v_and_b32 v7, 7, v1
    v_xor_b32 v12, v6, v7
    v_lshlrev_b32 v12, 4, v12
    v_lshl_add_u32 v12, v6, 7, v12
    v_add_u32 v12, s{T1}, v12
    v_mul_u32_u24 v13, 40960, v6
    v_lshl_add_u32 v13, v7, 4, v13
    v_lshlrev_b32 v3, 4, v1
    v_lshlrev_b32 v14, 7, v1
    s_and_b32 s{T0}, s{s_g}, 1
    s_lshl_b32 s{T0}, s{T0}, 12
    s_cmp_eq_u32 s{s_g}, 4
    s_cselect_b32 s{T0}, 8192, s{T0}
    s_cselect_b32 s{MK}, 0xffff, -1
    s_mov_b32 s{MK+1}, 0
    s_add_u32 s{T0}, s{T0}, {F_TF}""")
    a.vmwait("T")
    a("s_barrier")
    a.stamp(4)
    a(f"s_cmp_lg_u32 s{S_V}, 0")
    a("s_cbranch_scc1 L_fnp")
    poll(a, 14, T0, 5, MK, 15)
    a.label("L_fnp")
    a("s_barrier")
    a.stamp(5)
    a(f"""s_mul_i32 s{T0}, s{s_jp}, 20
    s_add_u32 s{T0}, s{T0}, s{HP}
    s_lshl_b32 s{T0}, s{T0}, 13
    s_add_u32 s{T0}, s{T0}, {WS_T}""")
    for i in range(8):
        if i == 4: a(f"s_add_u32 s{T0}, s{T0}, 4096"); a(f"s_add_u32 s{T1}, s{T1}, 4096")
        if i % 4 == 0: a(f"s_mov_b32 m0, s{T1}")
        a(f"buffer_load_dwordx4 v3, s[{SS}:{SS+3}], s{T0} offen offset:{(i%4)*1024} sc1 lds", tag="t")
    for grp in ca_scalars():
        for x in grp: a(x)
    BR, BI, NB = 80, 96, 112
    WR, WI = 192, 208
    def wread(tau, r):
        q, tt = divmod(r, 4)
        off = (32*tau + 8*q + tt) * 160
        a(f"ds_read_u16_d16_hi v{WR+r}, v2 offset:{off}", tag=f"w{tau}_{r}")
        a(f"ds_read_u16_d16_hi v{WI+r}, v2 offset:{off + 2*WPAR}", tag=f"w{tau}_{r}")
    for r in range(16): wread(0, r)
    a.vmwait("t")
    for s in range(4):
        for cc, b in ((0, BR), (1, BI)):
            a(f"ds_read_b64_tr_b16 v[{b+4*s}:{b+4*s+1}], v4 offset:{cc*4096 + s*1024}", tag=f"b{s}")
            a(f"ds_read_b64_tr_b16 v[{b+4*s+2}:{b+4*s+3}], v4 offset:{cc*4096 + s*1024 + 512}", tag=f"b{s}")
    def M(d, A, B, first): return f"v_mfma_f32_32x32x16_bf16 v[{d}:{d+15}], v[{A}:{A+3}], v[{B}:{B+3}], " + ("0" if first else f"v[{d}:{d+15}]")
    DR, DI = (128, 160), (144, 176)
    def step2(tau):
        o = []
        for s in range(4):
            c, sn = C + 16*tau + 4*s, SN + 16*tau + 4*s
            o += [M(DR[tau], c, BR+4*s, s == 0), M(DI[tau], c, BI+4*s, s == 0), M(DR[tau], sn, BI+4*s, False), M(DI[tau], sn, NB+4*s, False)]
        return o
    m0 = step2(0)
    for s in range(4):
        a.lgwait(f"b{s}")
        a(m0[4*s])
        for r in range(4): a(f"v_xor_b32 v{NB+4*s+r}, 0x80008000, v{BR+4*s+r}")
        for i in range(1, 4): a(m0[4*s+i])
    ZR, ZI, ZN = (224, 112), (232, 120), (240, 248)
    def wmul(tau):
        o = []
        for g4 in range(4):
            rs = range(4*g4, 4*g4 + 4)
            o.append(lambda g4=g4: a.lgwait(f"w{tau}_{4*g4+3}"))
            for i, r in enumerate(rs): o.append(f"v_mul_f32 v{4+i}, v{DR[tau]+r}, v{WR+r}")
            for i, r in enumerate(rs): o.append(f"v_mul_f32 v{DR[tau]+r}, v{DR[tau]+r}, v{WI+r}")
            for i, r in enumerate(rs): o.append(f"v_fma_f32 v{4+i}, -v{DI[tau]+r}, v{WI+r}, v{4+i}")
            for i, r in enumerate(rs): o.append(f"v_fmac_f32 v{DR[tau]+r}, v{DI[tau]+r}, v{WR+r}")
            if tau == 0:
                for r in rs: o.append(lambda r=r: wread(1, r))
            for i, r in enumerate(rs): o.append(f"v_subrev_f32_dpp v{DI[tau]+r}, v{4+i}, v{DR[tau]+r} quad_perm:[1,0,3,2] row_mask:0xf bank_mask:0xf")
            for i, r in enumerate(rs): o.append(f"v_add_f32_dpp v{4+i}, v{DR[tau]+r}, v{4+i} quad_perm:[1,0,3,2] row_mask:0xf bank_mask:0xf")
            for k in range(2):
                z = 2*g4 + k
                o.append(f"v_cvt_pk_bf16_f32 v{ZI[tau]+z}, v{DI[tau]+4*g4+2*k}, v{DI[tau]+4*g4+2*k+1}")
            for k in range(2):
                z = 2*g4 + k
                o.append(f"v_cvt_pk_bf16_f32 v{ZR[tau]+z}, v{4+2*k}, v{5+2*k}")
                o.append(f"v_xor_b32 v{ZN[tau]+z}, 0x80008000, v{ZI[tau]+z}")
        return o
    merge(a, step2(1), wmul(0))
    YR, YI = (128, 80), (144, 96)
    def step3(ss):
        o = []
        for s in ss:
            tau, k = divmod(s, 2)
            zr, zi, zn = ZR[tau] + 4*k, ZI[tau] + 4*k, ZN[tau] + 4*k
            for tp in range(2):
                c = C + 16*tp + 4*s
                o += [M(YR[tp], zr, c, s == 0), M(YI[tp], zi, c, s == 0)]
            for tp in range(2):
                sn = SN + 16*tp + 4*s
                o += [M(YR[tp], zn, sn, False), M(YI[tp], zr, sn, False)]
        return o
    merge(a, step3((0, 1)), wmul(1))
    poll_issue(a, 14, S_HFA, S_MSK, 2)
    for x in step3((2, 3)): a(x)
    a(f"s_cmp_lg_u32 s{s_jp}, 0")
    a(f"s_cbranch_scc1 L_fns")
    a(f"""v_and_b32 v4, 31, v1
    v_cvt_f32_u32 v4, v4
    v_mul_f32 v4, {fl(1/128)}, v4
    v_cos_f32 v5, v4
    v_sin_f32 v6, v4
    s_nop 7
    v_mul_f32 v5, 0.5, v5
    v_mul_f32 v6, 0.5, v6""")
    for tp in range(2):
        if tp == 1:
            a("v_mov_b32 v7, v5"); a("v_sub_f32 v5, 0, v6"); a("v_mov_b32 v6, v7")
        for pr in range(8):
            ar, br, ai, bi = YR[tp]+2*pr, YR[tp]+2*pr+1, YI[tp]+2*pr, YI[tp]+2*pr+1
            a(f"""v_sub_f32 v4, v{br}, v{ai}
            v_add_f32 v15, v{bi}, v{ar}
            v_sub_f32 v{ar}, v{ar}, v{bi}
            v_add_f32 v{ai}, v{ai}, v{br}
            v_mul_f32 v{br}, v5, v4
            v_mul_f32 v{bi}, v6, v4
            v_mul_f32 v{ar}, 0.5, v{ar}
            v_mul_f32 v{ai}, 0.5, v{ai}
            v_fma_f32 v{br}, -v6, v15, v{br}
            v_fmac_f32 v{bi}, v5, v15""")
    a.label("L_fns")
    a("s_nop 8")
    O = 192; k = 0
    for tp in range(2):
        for par in range(2):
            for cc, src in ((0, YR[tp]), (1, YI[tp])):
                o = O + 4*(k % 8); k += 1
                for q in range(4): a(f"v_cvt_pk_bf16_f32 v{o+q}, v{src+4*q+par}, v{src+4*q+2+par}")
                a(f"ds_write_b128 v{8+2*par+cc}, v[{o}:{o+3}] offset:{tp*4096}")
        for it in range(4*tp, 4*tp + 4): a(f"ds_read_b128 v[{16+4*it}:{19+4*it}], v12 offset:{it*1024}", tag=f"r{it}")
    a(f"""s_lshl_b32 s{T0}, s{HP}, 11
    s_lshl_b32 s{T1}, s{s_jp}, 7
    s_add_u32 s{T0}, s{T0}, s{T1}
    s_add_u32 s{T0}, s{T0}, {WS_Y}""")
    poll_check(a, 14, S_HFA, 2, S_MSK, 2)
    for k in range(NH - 2): hload(a, k, 3)
    for it in range(8):
        a.lgwait(f"r{it}")
        a(f"buffer_store_dwordx4 v[{16+4*it}:{19+4*it}], v13, s[{SS}:{SS+3}], s{T0} offen {ST}", tag="y")
        if it < 7: a(f"s_add_u32 s{T0}, s{T0}, {8*40960}")
    a(f"""s_mul_i32 s{S_LA}, s{s_jp}, 5
    s_add_u32 s{S_LA}, s{S_LA}, s{s_g}
    s_lshl_b32 s{S_LA}, s{S_LA}, 7
    s_add_u32 s{S_LA}, s{S_LA}, {F_YF}
    s_setprio 1""")

LX = 61440; LO = LX + 10240; LY = 122880
S_RB2, S_N2, S_CQ, S_TW = 58 + 1, 60, 61, 62
def phase_c(a):
    a.label("L_CA")
    a.vm = [f"h{k}" for k in range(NH - 2)] + ["S"]; a.lg = []
    a.stamp(6)
    a("v_lshlrev_b32 v2, 4, v1")
    a(f"""v_lshrrev_b32 v4, 5, v1
    v_bfe_u32 v5, v1, 2, 2
    v_lshl_add_u32 v4, v4, 2, v5
    v_mul_u32_u24 v4, 320, v4
    v_bfe_u32 v5, v1, 4, 1
    v_lshl_add_u32 v4, v5, 5, v4
    v_and_b32 v5, 3, v1
    v_lshl_add_u32 v8, v5, 3, v4
    v_add_u32 v3, {pair_lds(0)}, v8
    s_and_b32 s{T0}, s2, 3
    s_bfe_u32 s{T1}, s2, 0x20003
    s_lshl_b32 s{S_HFA}, s{S_N2G}, 4
    s_lshl_b32 s{T2}, s{T1}, 2
    s_add_u32 s{S_HFA}, s{S_HFA}, s{T2}
    s_add_u32 s{S_HFA}, s{S_HFA}, s{T0}
    s_lshl_b32 s{S_HFA}, s{S_HFA}, 7
    s_add_u32 s{S_HFA}, s{S_HFA}, {F_PF}
    s_lshl_b32 s{T0}, s{T0}, 6
    s_add_u32 s{T0}, s{T0}, s{S_N2G}
    s_mul_i32 s{T0}, s{T0}, 40960
    s_mul_i32 s{T1}, s{T1}, 10240
    s_add_u32 s{T0}, s{T0}, s{T1}
    s_add_u32 s63, s{T0}, {WS_P}""")
    base = [pair_lds(0)]
    def wread(k, t):
        P, p = divmod(k, 2)
        off = pair_lds(P // 2) + (P % 2)*10240 + p*16*320 + t*64
        if off < base[0]:
            base[0] = pair_lds(P // 2)
            a(f"v_add_u32 v3, {base[0]}, v8")
        b = WB + 20*(k % 2) + 4*t
        a(f"ds_read_b64_tr_b16 v[{b}:{b+1}], v3 offset:{off - base[0]}", tag=f"r{k}_{t}")
        a(f"ds_read_b64_tr_b16 v[{b+2}:{b+3}], v3 offset:{off - base[0] + 8*320}", tag=f"r{k}_{t}")
    a("s_barrier")
    a.stamp(7)
    for t in range(5): wread(0, t)
    for k in range(28):
        if k % 4 == 3 and k + 1 < 28: a("s_barrier")
        if k == 7:
            a(f"s_cmp_eq_u32 s{S_V}, 0")
            a(f"s_cselect_b32 s{S_LA}, s{S_LA}, {BIG}")
            publish(a, S_LA, 5, 6, 7)
        a.vmwait(f"h{k}")
        r = HR + 4*(k % NH)
        for t in range(5):
            a.lgwait(f"r{k}_{t}")
            b = WB + 20*(k % 2) + 4*t; d = ACC2 + 16*t
            a(f"v_mfma_f32_32x32x16_bf16 v[{d}:{d+15}], v[{b}:{b+3}], v[{r}:{r+3}], " + ("0" if k == 0 else f"v[{d}:{d+15}]"))
            if k + 1 < 28: wread(k + 1, t)
            if t == 0 and k + NH - 2 < 28 and k != 14: hload(a, k + NH - 2 - (k == 15), 2)
            if t == 2 and k == 15: hload(a, 21, 2)
    a.stamp(8)
    for t in range(5):
        d = ACC2 + 16*t
        for p in range(2):
            o = 208 + 8*t + 4*p
            for i in range(4): a(f"v_cvt_pk_bf16_f32 v{o+i}, v{d+8*p+2*i}, v{d+8*p+2*i+1}")
            a(f"buffer_store_dwordx4 v[{o}:{o+3}], v2, s[{SS}:{SS+3}], s63 offen offset:{p*1024} {ST}", tag="P")
        if t < 4: a(f"s_add_u32 s63, s63, 2048")
    a(f"""s_mov_b32 s{S_TW}, 4
    s_cmp_eq_u32 s{S_V}, 0
    s_cbranch_scc1 L_fin""")
    a("s_barrier")
    a.vmall()
    publish(a, S_HFA, 5, 6, 7)
    a.stamp(9)
    a.dump(10, SS, S_V, 0, tmp=32)
    a("s_endpgm")
    a.label("L_CB")
    a.lg = []
    a.vm = ["S"]
    a("s_waitcnt vmcnt(1)")
    a.stamp(6)
    a("s_barrier")
    a.stamp(7)
    publish(a, S_LA, 4, 28, 29)
    rb2(a, S_RB2)
    a(f"""s_mov_b32 s{S_TW}, s{S_W}
    s_and_b32 s{T0}, s2, 7
    s_lshl_b32 s{T0}, s{T0}, 3
    s_lshr_b32 s{T1}, s2, 5
    s_add_u32 s{S_N2}, s{T0}, s{T1}
    v_lshlrev_b32 v9, 4, v1
    s_lshl_b32 s{S_HFA}, s{S_RB2}, 2
    s_add_u32 s{S_HFA}, s{S_HFA}, s{S_W}
    s_lshl_b32 s{S_HFA}, s{S_HFA}, 11
    s_add_u32 s{S_HFA}, s{S_HFA}, {F_HB - F_HA}
    s_lshl_b32 s{T0}, s{S_RB2}, 11
    s_sub_u32 s{T0}, s{T0}, 2048
    v_lshlrev_b32 v7, 7, v1
    v_add_u32 v8, s{S_HFA}, v7
    v_add_u32 v11, s{T0}, v7
    v_cmp_gt_u32 vcc, 16, v1
    v_cndmask_b32 v8, v11, v8, vcc
    s_mov_b32 s{S_HFA}, {F_HA}
    s_and_b32 s96, s{S_MSK}, 0xffff
    s_mov_b32 s97, 0""")
    poll_issue(a, 8, S_HFA, 96, 10); w2_pair(a, 2); poll_check(a, 8, S_HFA, 3, 96, 10)
    publish(a, S_LA, 5, 28, 29)
    a("s_barrier")
    poll_issue(a, 8, S_HFA, 96, 10); w2_pair(a, 3); poll_check(a, 8, S_HFA, 4, 96, 10)
    a.vmwait("w2")
    a("s_barrier")
    w2_pair(a, 4); w2_pair(a, 5)
    a.vmwait("w3")
    a("s_barrier")
    poll_issue(a, 8, S_HFA, S_MSK, 10); w2_pair(a, 6); poll_check(a, 8, S_HFA, 5, S_MSK, 10)
    a.vmwait("w4")
    a("s_barrier")
    a.vmwait("w5")
    a("s_barrier")
    a(f"""s_mov_b64 s[{S_MSK}:{S_MSK+1}], 0xfffff
    s_mul_i32 s{T0}, s{S_W}, 2560
    s_add_u32 s{T0}, s{T0}, {F_YF}""")
    poll(a, 7, T0, 5, S_MSK, 10)
    a("s_barrier")
    a(f"""s_mul_i32 s{T0}, s{S_N2}, 40960
    s_mul_i32 s{T1}, s{S_W}, 10240
    s_add_u32 s{T0}, s{T0}, s{T1}
    s_add_u32 s{T0}, s{T0}, {WS_Y}
    s_add_u32 s{T1}, s{T1}, {LY}""")
    for i in range(10):
        if i in (4, 8): a(f"s_add_u32 s{T0}, s{T0}, 4096"); a(f"s_add_u32 s{T1}, s{T1}, 4096")
        if i % 4 == 0: a(f"s_mov_b32 m0, s{T1}")
        a(f"buffer_load_dwordx4 v9, s[{SS}:{SS+3}], s{T0} offen offset:{(i%4)*1024} sc1 lds", tag="y")
    a.stamp(8)
    a.label("L_fin")
    a.vm = []; a.lg = []
    a(f"""s_load_dwordx4 s[8:11], s[0:1], 56
    s_and_b32 s{T0}, s2, 7
    s_lshl_b32 s{T0}, s{T0}, 3
    s_lshr_b32 s{T1}, s2, 5
    s_add_u32 s{S_N2}, s{T0}, s{T1}
    s_bfe_u32 s{S_CQ}, s2, 0x20003
    v_lshlrev_b32 v2, 4, v1
    v_lshrrev_b32 v3, 4, v1
    v_and_b32 v4, 15, v1""")
    for e in range(2):
        a(f"""s_lshl_b32 s{T0}, s{S_TW}, 7
        s_add_u32 s{T0}, s{T0}, {64*e}
        v_add_u32 v8, s{T0}, v1
        v_mul_u32_u24 v9, 6554, v8
        v_lshrrev_b32 v9, 16, v9
        v_mul_u32_u24 v10, 10, v9
        v_sub_u32 v10, v8, v10
        v_lshrrev_b32 v11, 1, v9
        v_mul_u32_u24 v11, {64*1280}, v11
        v_lshl_add_u32 v11, v10, 4, v11
        v_and_b32 v9, 1, v9
        s_mul_i32 s{T1}, s{S_CQ}, 160
        s_lshl_b32 s{T2}, s{T1}, 1
        s_sub_u32 s{T2}, 1120, s{T2}
        v_mul_u32_u24 v9, s{T2}, v9
        s_mul_i32 s{T2}, s{S_N2}, 1280
        s_add_u32 s{T1}, s{T1}, s{T2}
        v_add3_u32 v{5+e}, v11, v9, s{T1}""")
    a(f"s_lshl_b32 s{T0}, s{S_TW}, 11")
    for e in range(2):
        a(f"s_add_u32 m0, s{T0}, {LX + e*1024}")
        a(f"buffer_load_dwordx4 v{5+e}, s[{SX}:{SX+3}], 0 offen lds", tag="x")
    a("s_waitcnt lgkmcnt(0)")
    srd(a, SB, 8, 1280); srd(a, SW, 10, 2621440)
    PR = 224; B2 = 168
    a(f"""s_mul_i32 s{T0}, s{S_CQ}, 5
    s_add_u32 s64, s{T0}, s{S_TW}         ; cb+
    s_lshl_b32 s{T3}, s64, 5
    v_lshl_add_u32 v10, v3, 3, s{T3}
    v_sub_u32 v11, 1272, v10""")
    a(f"buffer_load_dwordx2 v[{B2}:{B2+1}], v10, s[{SB}:{SB+3}], 0 offen", tag="b")
    a(f"buffer_load_dwordx2 v[{B2+2}:{B2+3}], v11, s[{SB}:{SB+3}], 0 offen", tag="b")
    GE, GO = 16, 56; CV, SV = 96, 112
    a(f"""s_lshl_b32 s{T0}, s64, 4
    v_add_u32 v8, s{T0}, v4
    v_cvt_f32_u32 v8, v8
    v_add_f32 v8, 0.5, v8
    v_mul_f32 v8, {fl(1/640)}, v8
    v_and_b32 v9, 1, v3
    v_lshlrev_b32 v9, 1, v9
    v_sub_u32 v10, 320, v9
    v_cmp_lt_u32 vcc, 31, v1
    v_cndmask_b32 v9, v9, v10, vcc
    v_cvt_f32_u32 v9, v9
    v_mul_f32 v9, v9, v8
    v_sub_f32 v10, 0, v8
    v_cndmask_b32 v10, v8, v10, vcc
    v_mul_f32 v11, {fl(16.0)}, v8
    v_cos_f32 v11, v11
    v_mul_f32 v12, {fl(160.0)}, v8
    v_cos_f32 v13, v12
    v_sin_f32 v14, -v12
    v_add_f32 v11, v11, v11
    v_cmp_eq_u32 s[66:67], 0, v3
    v_cmp_eq_u32 s[68:69], 2, v3""")
    for m in range(2):
        for jj in range(8):
            o = 16*m + 4*(jj//2) + jj % 2
            if o: a(f"v_fmamk_f32 v{CV+8*m+jj}, v10, {fl(o)}, v9")
            else: a(f"v_mov_b32 v{CV}, v9")
        for jj in range(8):
            a(f"v_sin_f32 v{SV+8*m+jj}, -v{CV+8*m+jj}"); a(f"v_cos_f32 v{CV+8*m+jj}, v{CV+8*m+jj}")
    a(f"""v_cndmask_b32 v13, v{CV}, v13, s[66:67]
    v_cndmask_b32 v14, v{SV}, v14, s[66:67]
    v_mul_f32 v12, 0.5, v13
    v_mul_f32 v15, 0.5, v14
    v_cndmask_b32 v13, v13, v12, s[68:69]
    v_cndmask_b32 v14, v14, v15, s[68:69]""")
    for m in range(10):
        u = 8*(m % 2)
        for r in range(4):
            c0 = 13 if (m == 0 and r == 0) else CV + u + 2*r
            s0 = 14 if (m == 0 and r == 0) else SV + u + 2*r
            a(f"v_cvt_pk_bf16_f32 v{GE+4*m+r}, v{c0}, v{CV+u+2*r+1}")
            a(f"v_cvt_pk_bf16_f32 v{GO+4*m+r}, v{s0}, v{SV+u+2*r+1}")
        if m + 2 < 10:
            for jj in range(8):
                a(f"v_fma_f32 v{CV+u+jj}, v11, v{CV+8-u+jj}, -v{CV+u+jj}")
                a(f"v_fma_f32 v{SV+u+jj}, v11, v{SV+8-u+jj}, -v{SV+u+jj}")
        if m == 2:
            a(f"s_cmp_lg_u32 s{S_V}, 0")
            a("s_cbranch_scc1 L_fin_np")
            vm = list(a.vm)
            a.vmall(); publish(a, S_HFA, 5, 7, 15)
            a.vm = vm
            a.label("L_fin_np")
    HF = 160
    a(f"""v_lshlrev_b32 v8, 6, v4
    v_add_u32 v8, s{S_N2}, v8
    v_cvt_f32_u32 v8, v8
    v_mul_f32 v8, {fl(1/2048)}, v8
    v_lshlrev_b32 v9, 1, v3
    v_cvt_f32_u32 v9, v9
    v_cvt_f32_u32 v10, v4
    v_mul_f32 v10, 0.5, v10""")
    for t in range(2):
        if t: a("v_add_f32 v8, 0.5, v8")
        a("v_mul_f32 v11, v9, v8")
        for jj in range(8):
            jo = 8*(jj//4) + (jj % 4)//2
            if jo: a(f"v_fmamk_f32 v{CV+jj}, v8, {fl(jo)}, v11")
            else: a(f"v_mov_b32 v{CV+jj}, v11")
            if jj % 2: a(f"v_add_f32 v{CV+jj}, {fl(0.25)}, v{CV+jj}")
        a(f"v_cndmask_b32 v{CV+1}, v{CV+1}, v10, s[66:67]")
        for jj in range(8): a(f"v_cos_f32 v{CV+jj}, v{CV+jj}")
        for r in range(4): a(f"v_cvt_pk_bf16_f32 v{HF+4*t+r}, v{CV+2*r}, v{CV+2*r+1}")
    a(f"""v_bfe_u32 v8, v1, 2, 2
    v_and_b32 v8, 2, v8
    v_and_b32 v9, 1, v3
    v_xor_b32 v8, v8, v9
    v_lshlrev_b32 v8, 4, v8
    v_lshl_add_u32 v8, v4, 6, v8
    v_lshrrev_b32 v9, 1, v3
    v_lshl_add_u32 v8, v9, 11, v8
    v_add_u32 v8, {LY}, v8
    v_xor_b32 v9, 32, v8
    v_mul_u32_u24 v10, 320, v4
    s_lshl_b32 s{T0}, s{S_TW}, 5
    v_lshl_add_u32 v11, v3, 3, s{T0}
    v_sub_u32 v12, 312, v11
    v_add3_u32 v11, v10, v11, {0}
    v_add_u32 v12, v10, v12
    v_add_u32 v11, {LX}, v11
    v_add_u32 v12, {LX}, v12""")
    a.vmall()
    a("s_barrier")
    YB = 96; AC = 128
    def yread(m):
        for i in range(4):
            c, rt = divmod(i, 2)
            b = YB + 16*(m % 2) + 4*i
            a(f"ds_read_b128 v[{b}:{b+3}], v{8+c} offset:{m*4096 + rt*1024}", tag=f"y{m}_{i}")
    yread(0); yread(1)
    for m in range(10):
        for i in range(4):
            a.lgwait(f"y{m}_{i}")
            b = YB + 16*(m % 2) + 4*i; d = AC + 4*i; g = (GE, GO)[i // 2] + 4*m
            a(f"v_mfma_f32_16x16x32_bf16 v[{d}:{d+3}], v[{b}:{b+3}], v[{g}:{g+3}], " + ("0" if m == 0 else f"v[{d}:{d+3}]"))
        if m + 2 < 10: yread(m + 2)
    for i in range(8):
        a(f"v_add_f32 v{96+i}, v{AC+i}, v{AC+8+i}")
        a(f"v_sub_f32 v{104+i}, v{AC+i}, v{AC+8+i}")
    for side in range(2):
        for r in range(4): a(f"v_cvt_pk_bf16_f32 v{112+4*side+r}, v{96+8*side+2*r}, v{97+8*side+2*r}")
    SR = 144
    for side in range(2):
        for rt in range(2):
            d = SR + (side*2 + rt)*4
            a(f"v_mfma_f32_16x16x32_bf16 v[{d}:{d+3}], v[{112+4*side}:{115+4*side}], v[{HF+4*rt}:{HF+4*rt+3}], 0")
    GV = 208
    a(f"""v_and_b32 v16, 1, v3
    v_lshlrev_b32 v16, 9, v16
    v_lshrrev_b32 v17, 1, v3
    v_lshl_add_u32 v16, v17, 3, v16
    v_lshl_add_u32 v16, v4, 4, v16
    v_xor_b32 v17, 0x208, v16
    v_lshlrev_b32 v18, 7, v1
    s_mov_b32 s{S_MSK}, 0xf00f
    s_cmp_ge_u32 s64, 10
    s_cselect_b32 s{S_MSK}, 0x0ff0, s{S_MSK}
    s_mov_b32 s{S_MSK+1}, 0
    s_lshl_b32 s{T0}, s{S_N2}, 11
    s_add_u32 s{T0}, s{T0}, {F_PF}
    v_mov_b32 v20, 0x3f80
    v_mov_b32 v21, 0x3f800000""")
    a.vmwait("b")
    for side in range(2):
        for rt in range(2):
            g = GV + (side*2 + rt)*4
            for k in range(2):
                a(f"v_lshlrev_b32 v{g+2*k}, 16, v{B2+2*side+k}")
                a(f"v_and_b32 v{g+2*k+1}, 0xffff0000, v{B2+2*side+k}")
    a.dstamp("fin", 1)
    a(f"s_cmp_lg_u32 s{S_V}, 4")
    a("s_cbranch_scc1 L_finp")
    poll(a, 18, T0, 5, S_MSK, 19)
    a.label("L_finp")
    a("s_barrier")
    a.dstamp("fin", 2)
    a(f"""s_sub_u32 s{T1}, 39, s64
    s_mul_i32 s{T2}, s{S_N2}, 40960
    s_add_u32 s{T2}, s{T2}, {WS_P}
    s_lshl_b32 s{T0}, s64, 10
    s_lshl_b32 s{T1}, s{T1}, 10
    s_add_u32 s{T0}, s{T0}, s{T2}
    s_add_u32 s{T1}, s{T1}, s{T2}""")
    for kq in range(4):
        for side in range(2):
            for rt in range(2):
                r = PR + ((side*2 + rt)*4 + kq)*2
                a(f"buffer_load_dwordx2 v[{r}:{r+1}], v{16+side}, s[{SS}:{SS+3}], s{T0+side} offen offset:{rt*256} sc1", tag=f"p{kq}")
        if kq < 3: a(f"s_add_u32 s{T0}, s{T0}, {64*40960}"); a(f"s_add_u32 s{T1}, s{T1}, {64*40960}")
    XR = 176
    for side in range(2):
        for rt in range(2):
            r = XR + (side*2 + rt)*2
            a(f"ds_read_b64 v[{r}:{r+1}], v{11+side} offset:{rt*5120}", tag="xr")
    for i in range(16): a(f"v_mul_f32 v{SR+i}, {fl(2.0/(2048*640))}, v{SR+i}")
    a.lgwait("xr")
    XFF = 96
    for blk in range(4):
        for k in range(2):
            a(f"v_lshlrev_b32 v{XFF+4*blk+2*k}, 16, v{XR+2*blk+k}")
            a(f"v_and_b32 v{XFF+4*blk+2*k+1}, 0xffff0000, v{XR+2*blk+k}")
    for kq in range(4):
        a.vmwait(f"p{kq}")
        for blk in range(4):
            g = GV + blk*4; r = PR + (blk*4 + kq)*2
            for k in range(2):
                a(f"v_dot2c_f32_bf16 v{g+2*k}, v{r+k}, v20")
                a(f"v_dot2c_f32_bf16 v{g+2*k+1}, v{r+k}, v21")
    E = 112
    for i in range(16): a(f"v_mul_f32 v{E+i}, {fl(-LOG2E)}, v{GV+i}")
    for i in range(16): a(f"v_exp_f32 v{E+i}, v{E+i}")
    for blk in range(4):
        for i in range(4):
            sr = SR + 4*blk + (3 - i if blk // 2 else i)
            a(f"v_mul_f32 v{GV+4*blk+i}, v{GV+4*blk+i}, v{sr}")
    for i in range(16): a(f"v_add_f32 v{E+i}, 1.0, v{E+i}")
    for i in range(16): a(f"v_rcp_f32 v{E+i}, v{E+i}")
    for blk in range(4):
        side, rt = divmod(blk, 2)
        for i in range(4): a(f"v_fmac_f32 v{XFF+4*blk+i}, v{GV+4*blk+i}, v{E+4*blk+i}")
        o = 128 + 2*blk
        a(f"v_cvt_pk_bf16_f32 v{o}, v{XFF+4*blk}, v{XFF+4*blk+1}")
        a(f"v_cvt_pk_bf16_f32 v{o+1}, v{XFF+4*blk+2}, v{XFF+4*blk+3}")
        a(f"ds_write_b64 v{11+side}, v[{o}:{o+1}] offset:{10240 + rt*5120}")
    a(f"""s_lshl_b32 s{T0}, s{S_TW}, 11
    s_add_u32 s{T0}, s{T0}, {LO}
    v_add_u32 v2, s{T0}, v2
    s_waitcnt lgkmcnt(0)
    s_barrier""")
    a(f"ds_read_b128 v[96:99], v2", tag="o0")
    a(f"ds_read_b128 v[100:103], v2 offset:1024", tag="o1")
    for e in range(2):
        a.lgwait(f"o{e}")
        a(f"buffer_store_dwordx4 v[{96+4*e}:{99+4*e}], v{5+e}, s[{SW}:{SW+3}], 0 offen")
    a.dstamp("fin", 3)
    if a.prof: a.vmall()
    a.stamp(9)
    a.dump(10, SS, S_V, 0, tmp=32)

def fused(prof=False):
    a = Asm(); a.prof = prof
    prologue(a)
    a(f"""s_cmp_lt_u32 s{S_IDX}, 6
    s_cbranch_scc1 L_mlp
    s_sub_u32 s{S_IDX}, s{S_IDX}, 6
    s_cmp_lt_u32 s{S_IDX}, 2
    s_cbranch_scc1 L_dft
    s_add_u32 s{S_IDX}, s{S_IDX}, 4
    s_cmp_lt_u32 s{S_IDX}, 11
    s_cbranch_scc1 L_mlp
    s_sub_u32 s{S_IDX}, s{S_IDX}, 9
    s_branch L_dft""")
    mlp(a)
    dft(a)
    phase_c(a)
    a.label("L_end")
    a("s_endpgm")
    return a

if __name__ == "__main__":
    import sys
    from build import HEAD
    NAME = "recurrent_scan__spectral_gfnet__mixer_channel_mlp__prompt_kernel"
    a = fused("prof" in sys.argv)
    s = HEAD + "; @launch grid=(256,1,1) block=(512,1,1) lds=163840\n"
    s += '.amdgcn_target "amdgcn-amd-amdhsa--gfx950"\n.text\n'
    s += f".globl {NAME}\n.p2align 8\n.type {NAME},@function\n{NAME}:\n" + a.text()
    s += "CODE_END:\n    s_endpgm\n" + '.section .rodata,"a"\n' + kernel_desc(NAME, 256, sgpr=102)
    open(sys.argv[1], "w").write(s)
    print("nops", a.nops, "lines", len(a.lines))
```

```python
from asmlib import *
import os
OPT = dict(pfw2=1, sleep=2, rot=1, ntx="", ntw="", n0=1, pf=1)
for kv in os.environ.get("OPT", "").split(","):
    if "=" in kv:
        k, v = kv.split("="); OPT[k] = int(v) if v.lstrip("-").isdigit() else v

WS_H, WS_T, WS_Y, WS_P, WS_F = 0, 0x800000, 0xC00000, 0x1000000, 0x1B00000
WS_S = WS_F + 0x80000
F_CF, WS_CS = WS_F + 0x90000, WS_F + 0xA0000
WS_SIZE = 0x2000000
F_EP, F_TF, F_YF, F_HB, F_HA, F_PF = WS_F, WS_F + 0x1000, WS_F + 0x4000, WS_F + 0x20000, WS_F + 0x40000, WS_F + 0x60000
F_RF = WS_F + 0x90000
WS_W2 = 0x1400000
ST = "sc1"
K0 = -2.0 * 0.7978845608028654 * 1.4426950408889634
K1C = K0 * 0.044715
LOG2E = 1.4426950408889634
BIG = 0x7f000000
SPIN = 40000

SG, SX, SW, SB, SS = 4, 12, 16, 20, 24
S_TAG = 3
S_V, S_RB, S_IDX, S_ROT = 28, 29, 30, 31
S_SX, S_SBO = 32, 42
S_W, S_SET = 52, 53
T0, T1, T2, T3 = 54, 55, 56, 57
S_LA, S_LB, S_LC = 58, 59, 60
S_PG, S_B1, S_NP, S_M4, S_M2, S_MSK = 61, 66, 71, 72, 73, 74
S_DBG = 100
XSLOT = 81920
S_PK = 42

def srd(a, base, ptr, size):
    a(f"""s_mov_b32 s{base}, s{ptr}
    s_and_b32 s{base+1}, s{ptr+1}, 0xffff
    s_mov_b32 s{base+2}, {size}
    s_mov_b32 s{base+3}, 0x00020000""")

def stats_math(a, vsum, vssq, t0, t1, r1, rr=None):
    a(f"""v_mul_f32 v{vsum}, {fl(1/640)}, v{vsum}
    v_mul_f32 v{vssq}, {fl(1/640)}, v{vssq}
    v_fma_f32 v{t0}, -v{vsum}, v{vsum}, v{vssq}
    v_max_f32 v{t0}, 0, v{t0}
    v_add_f32 v{t1}, {fl(1e-5)}, v{t0}
    v_rsq_f32 v{r1}, v{t1}""")
    if rr is not None:
        a(f"""v_mul_f32 v{t1}, v{r1}, v{r1}
        v_mul_f32 v{t1}, v{t1}, v{t0}
        v_add_f32 v{t1}, {fl(1e-5)}, v{t1}
        v_rsq_f32 v{t1}, v{t1}
        v_mul_f32 v{rr}, v{r1}, v{t1}""")

_uid = [0]
def uid(p):
    _uid[0] += 1
    return f"{p}_{_uid[0]}"

def tag_issue(a, v, vz):
    a(f"v_mov_b32 v{vz}, 0")
    a(f"global_load_dword v{v}, v{vz}, s[{S_DBG}:{S_DBG+1}] sc1", tag="tag")
def tag_check(a, v, vz):
    L = uid("Ltag")
    a.vmwait("tag"); vm = list(a.vm)
    a(f"""s_mov_b32 s{T3}, 0
    {L}:
    v_readfirstlane_b32 s{S_TAG}, v{v}
    s_add_u32 s{T3}, s{T3}, 1
    s_cmp_lg_u32 s{S_TAG}, 0
    s_cbranch_scc1 {L}d
    s_cmp_ge_u32 s{T3}, {SPIN}
    s_cbranch_scc1 {L}d
    s_sleep {OPT['sleep']}
    global_load_dword v{v}, v{vz}, s[{S_DBG}:{S_DBG+1}] sc1
    s_waitcnt vmcnt(0)
    s_branch {L}
    {L}d:
    s_and_b32 s{S_TAG}, s{S_TAG}, -8""")
    a.vm = vm
def pad_op(a, vz):
    a(f"v_mov_b32 v{vz}, 0")
    a(f"global_load_dword v0, v{vz}, s[{S_DBG}:{S_DBG+1}]", tag="pad")
def keep_vm(f):
    def g(a, *x, **k):
        vm = list(a.vm); f(a, *x, **k); a.vm = vm
    return g

def publish(a, soff, cnt, v, vz):
    a(f"""s_or_b32 s{T3}, s{S_TAG}, {cnt}
    v_mov_b32 v{v}, s{T3}
    v_mov_b32 v{vz}, 0
    s_mov_b64 exec, 1""")
    a(f"buffer_store_dword v{v}, v{vz}, s[{SS}:{SS+3}], s{soff} offen {ST}", tag="flag")
    a("s_mov_b64 exec, -1")

def poll_issue(a, voff, soff, smask, v, nload=1, stride=256):
    a(f"s_mov_b64 exec, s[{smask}:{smask+1}]")
    for i in range(nload):
        a(f"buffer_load_dword v{v+i}, v{voff}, s[{SS}:{SS+3}], s{soff} offen offset:{i*stride} sc1", tag="poll")
    a("s_mov_b64 exec, -1")
def poll_check(a, voff, soff, need, smask, v, nload=1, stride=256):
    L = uid("Lpoll")
    a.vmwait("poll")
    vm = list(a.vm)
    a(f"""s_mov_b32 s{T2}, 0
    s_add_u32 s{T3}, s{S_TAG}, {need}
    s_mov_b64 exec, s[{smask}:{smask+1}]
    {L}:""")
    for i in range(nload): a(f"v_subrev_u32 v{v+i}, s{T3}, v{v+i}")
    for i in range(1, nload): a(f"v_max_u32 v{v}, v{v}, v{v+i}")
    a(f"""v_cmp_lt_u32 vcc, {7-need}, v{v}
    s_add_u32 s{T2}, s{T2}, 1
    s_cbranch_vccz {L}d
    s_cmp_ge_u32 s{T2}, {SPIN}
    s_cbranch_scc1 {L}d
    s_sleep {OPT['sleep']}""")
    for i in range(nload):
        a(f"buffer_load_dword v{v+i}, v{voff}, s[{SS}:{SS+3}], s{soff} offen offset:{i*stride} sc1")
    a(f"""s_waitcnt vmcnt(0)
    s_branch {L}
    {L}d:
    s_mov_b64 exec, -1""")
    a.vm = vm
def poll(a, voff, soff, need, smask, v, nload=1, stride=256):
    poll_issue(a, voff, soff, smask, v, nload, stride); poll_check(a, voff, soff, need, smask, v, nload, stride)

SPB = 8
def sp_base(off):
    return [f"s_add_u32 s{SPB}, s{SS}, s{off}", f"s_addc_u32 s{SPB+1}, s{SS+1}, 0"]
def sp_issue(a, offs, dst):
    for o, d in zip(offs, dst): a(f"s_load_dword s{d}, s[{SPB}:{SPB+1}], {o} glc")
def sp_check(a, offs, dst, needs):
    L = uid("Lsp")
    a(f"""s_mov_b32 s{T2}, 0
    s_add_u32 s{T3}, s{S_TAG}, {needs}
    {L}:
    s_waitcnt lgkmcnt(0)""")
    for d in dst: a(f"s_sub_u32 s{d}, s{d}, s{T3}")
    for d in dst[1:]: a(f"s_max_u32 s{dst[0]}, s{dst[0]}, s{d}")
    a(f"""s_cmp_le_u32 s{dst[0]}, {7-needs}
    s_cbranch_scc1 {L}d
    s_add_u32 s{T2}, s{T2}, 1
    s_cmp_ge_u32 s{T2}, {SPIN}
    s_cbranch_scc1 {L}d
    s_sleep {OPT['sleep']}""")
    sp_issue(a, offs, dst)
    a(f"""s_branch {L}
    {L}d:""")
L6 = [128*i for i in range(6)]
D6 = [10, 11, 48, 49, 50, 51]
D6A = [66, 67, 68, 69, 70, 96]

VXO = 2
def prologue(a):
    a.stamp(0)
    R = OPT["rot"]
    ROT = {1: f"s_mul_i32 s{T3}, s{T3}, 3\n s_add_u32 s{S_ROT}, s{T3}, s{T1}",
           2: f"s_add_u32 s{T3}, s{T3}, s{T1}\n s_and_b32 s{T3}, s{T3}, 1\n s_mul_i32 s{S_ROT}, s{T3}, 5",
           4: f"s_add_u32 s{T3}, s{T3}, s{T1}\n s_and_b32 s{S_ROT}, s{T3}, 1",
           0: f"s_mov_b32 s{S_ROT}, 0"}[R]
    a(f"""s_load_dwordx2 s[{SX}:{SX+1}], s[0:1], 0
    s_load_dwordx2 s[{SW}:{SW+1}], s[0:1], 32
    s_load_dwordx2 s[{SS}:{SS+1}], s[0:1], 80
    s_load_dwordx2 s[{SB}:{SB+1}], s[0:1], 40
    s_load_dwordx2 s[{S_DBG}:{S_DBG+1}], s[0:1], 72
    s_load_dwordx2 s[8:9], s[0:1], 48
    s_cmp_ge_u32 s2, 256
    s_cbranch_scc1 L_end
    v_lshrrev_b32 v2, 6, v0
    v_and_b32 v1, 63, v0
    v_readfirstlane_b32 s{S_V}, v2""")
    if OPT["pf"]:
        a(f"""s_getpc_b64 s[96:97]
        L_pc:
        s_bfe_u32 s{T0}, s2, 0x30003
        s_cmp_eq_u32 s{S_V}, 1
        s_cselect_b32 s{T0}, 0, s{T0}
        s_sub_u32 s{T1}, s{S_V}, 1
        s_cmp_ge_u32 s{T1}, 2
        s_cbranch_scc1 L_nopf
        s_lshl_b32 s{T0}, s{T0}, 13
        v_lshl_add_u32 v9, v1, 7, s{T0}
        v_min_u32 v9, CODE_END - L_pc - 128, v9
        global_load_dword v0, v9, s[96:97]
        L_nopf:""")
    a(f"""s_mov_b32 s{SX+2}, 2621440
    s_mov_b32 s{SX+3}, 0x00020000
    s_mov_b32 s{SW+2}, 2211840
    s_mov_b32 s{SW+3}, 0x00020000
    s_and_b32 s{T0}, s2, 7
    s_lshr_b32 s{T1}, s2, 3
    s_lshr_b32 s{T2}, s{T0}, 1
    s_lshl_b32 s{T2}, s{T2}, 2
    s_and_b32 s{T3}, s{T1}, 3
    s_add_u32 s{S_RB}, s{T2}, s{T3}
    s_lshr_b32 s{T1}, s{T1}, 2
    s_and_b32 s{T0}, s{T0}, 1
    {ROT}
    s_lshl_b32 s{S_IDX}, s{T0}, 3
    s_add_u32 s{S_IDX}, s{S_IDX}, s{T1}
    s_cmp_ge_u32 s{S_ROT}, 10
    s_cselect_b32 s{T2}, 10, 0
    s_sub_u32 s{S_ROT}, s{S_ROT}, s{T2}
    s_lshl_b32 s{S_SX}, s{S_ROT}, 7
    s_and_b32 s{S_W}, s{S_V}, 3
    s_lshr_b32 s{S_SET}, s{S_V}, 2
    s_lshl_b32 s{S_M4}, s{S_W}, 12
    s_lshl_b32 s{S_M2}, s{S_W}, 11
    v_lshrrev_b32 v6, 3, v1
    v_mul_u32_u24 v6, {64*1280}, v6
    s_lshl_b32 s{T1}, s{S_RB}, 2
    s_add_u32 s{T0}, s{S_W}, s{T1}
    s_mul_i32 s{T0}, s{T0}, 1280
    v_add_u32 v6, s{T0}, v6
    v_and_b32 v7, 7, v1
    v_lshrrev_b32 v8, 4, v1
    v_xor_b32 v7, v7, v8
    v_lshl_add_u32 v{VXO}, v7, 4, v6
    v_xor_b32 v7, 4, v7
    v_lshl_add_u32 v{VXO+1}, v7, 4, v6
    v_add_u32 v{VXO+1}, {8*64*1280}, v{VXO+1}
    v_add_u32 v{VXO+2}, {16*64*1280}, v{VXO}
    v_add_u32 v{VXO+3}, {16*64*1280}, v{VXO+1}
    s_mov_b32 s{SB+2}, 3456
    s_mov_b32 s{SB+3}, 0x00020000
    s_mov_b32 s{SS+2}, {WS_SIZE}
    s_mov_b32 s{SS+3}, 0x00020000""")
    a.vm = []
def sx_table(a):
    for c in range(1, 10):
        a(f"""s_add_u32 s{S_SX+c}, s{S_SX+c-1}, 128
        s_cmp_eq_u32 s{S_SX+c}, 1280
        s_cselect_b32 s{S_SX+c}, 0, s{S_SX+c}""")
def rec_issue(a, voff, v):
    a(f"buffer_load_dwordx4 v[{v}:{v+3}], v{voff}, s[{SS}:{SS+3}], 0 offen sc1", tag="rec")
def rec_check(a, voff, v):
    L = uid("Lrec")
    a.vmwait("rec"); vm = list(a.vm)
    a(f"""s_mov_b32 s{T2}, 0
    s_or_b32 s{T3}, s{S_TAG}, 7
    {L}:
    v_cmp_ne_u32 vcc, s{T3}, v{v+3}
    s_add_u32 s{T2}, s{T2}, 1
    s_cbranch_vccz {L}d
    s_cmp_ge_u32 s{T2}, {SPIN}
    s_cbranch_scc1 {L}d
    s_sleep {OPT['sleep']}
    buffer_load_dwordx4 v[{v}:{v+3}], v{voff}, s[{SS}:{SS+3}], 0 offen sc1
    s_waitcnt vmcnt(0)
    s_branch {L}
    {L}d:""")
    a.vm = vm
def rec_addr(a, v):
    a(f"""s_lshl_b32 s{T0}, s{S_RB}, 11
    s_lshl_b32 s{T1}, s{S_W}, 9
    s_add_u32 s{T0}, s{T0}, s{T1}
    s_add_u32 s{T0}, s{T0}, {WS_S}
    v_and_b32 v{v}, 31, v1
    v_lshl_add_u32 v{v}, v{v}, 4, s{T0}""")

def x_dma(a, c):
    slot = c % 5
    for e in range(4):
        a(f"s_add_u32 m0, s{S_M4}, {XSLOT + slot*16384 + e*1024}")
        a(f"buffer_load_dwordx4 v{VXO+e}, s[{SX}:{SX+3}], s{S_SX+c} offen {OPT['ntx']} lds", tag=f"x{c}")

def panel_order(kh):
    def pidx(P):
        cg, r = divmod(P, 5)
        return r if cg % 2 == 0 else (4 if r == 0 else r - 1)
    ps = sorted(range(27*kh, 27*kh + 27), key=lambda P: (pidx(P), P))
    for n, c in ((9, 1), (15, 2), (21, 3)): assert all(pidx(P) <= c for P in ps[:n])
    return ps
SLOT = [122880, 81920, 0]
S_HFA, S_HFB = 98, 99
VST = 240
def st_setup(a):
    def pack(ps, lo): return sum(p << (6*i) for i, p in enumerate(ps[lo:lo+5]))
    t = [panel_order(0), panel_order(1)]
    for j in range(6): a(f"s_mov_b32 s{S_PK+j}, {pack(t[0], 5*j)}")
    a("s_bitcmp1_b32 s2, 0")
    for j in range(6): a(f"s_cselect_b32 s{S_PK+j}, {pack(t[1], 5*j)}, s{S_PK+j}")
    a(f"""s_cselect_b32 s{S_HFA}, 640, 0
    s_lshl_b32 s{T0}, s{S_RB}, 2
    s_add_u32 s{T0}, s{T0}, s{S_W}
    s_lshl_b32 s{T1}, s{T0}, 11
    s_add_u32 s{S_HFA}, s{S_HFA}, s{T1}
    s_add_u32 s{S_HFB}, s{S_HFA}, {F_HA}
    s_add_u32 s{S_HFA}, s{S_HFA}, {F_HB}
    s_mul_i32 s{T0}, s{T0}, {54*2048}
    v_lshlrev_b32 v245, 4, v1
    v_add_u32 v{VST}, s{T0}, v245
    s_lshr_b32 s{T0}, s2, 5
    s_mul_i32 s{T0}, s{T0}, {1728*160}
    s_add_u32 s{T0}, s{T0}, {WS_W2}
    v_add_u32 v245, s{T0}, v245""")
    for m in range(4):
        a(f"""s_add_u32 s{T0}, s{S_W}, {4*m}
        s_mul_i32 s{T1}, s{T0}, 52
        s_lshr_b32 s{T1}, s{T1}, 8
        s_mul_i32 s{T1}, s{T1}, 5
        s_sub_u32 s{T1}, s{T0}, s{T1}
        s_lshl_b32 s{T1}, s{T1}, 10""")
        if m == 3: a(f"s_cmp_eq_u32 s{T0}, 15"); a(f"s_cselect_b32 s{T1}, {BIG}, s{T1}")
        a(f"v_add_u32 v{VST+1+m}, s{T1}, v245")
    a(f"""s_mul_i32 s97, s{S_W}, 6144
    s_lshl_b32 s7, s{S_W}, 10
    s_add_u32 s6, s7, 12288
    s_cmp_eq_u32 s{S_W}, 3
    s_cselect_b32 s6, 39936, s6""")
def st_h(a, s):
    base = SLOT[s % 3]
    for i in range(3):
        n = 3*s + i
        a(f"s_bfe_u32 s{T3}, s{S_PK + n//5}, {(6 << 16) | (6*(n % 5))}")
        a(f"s_add_u32 m0, s97, {base + 15360 + i*2048}")
        a(f"s_lshl_b32 s{T3}, s{T3}, 11")
        for e in range(2):
            a(f"buffer_load_dwordx4 v{VST}, s[{SS}:{SS+3}], s{T3} offen offset:{e*1024} sc1 lds", tag=f"st{s}")
def st_w(a, s):
    base = SLOT[s % 3]; P = [T0, T1, T2]; o = []
    pre = []
    for i in range(3):
        n = 3*s + i
        pre += [f"s_bfe_u32 s{P[i]}, s{S_PK + n//5}, {(6 << 16) | (6*(n % 5))}", f"s_mul_i32 s{P[i]}, s{P[i]}, 5120"]
    for m in range(4):
        g = pre if m == 0 else []
        g = g + [f"s_add_u32 m0, s7, {base + m*4096}" if m < 3 else f"s_add_u32 m0, s6, {base}"]
        if m == 1: g += [f"s_cmp_eq_u32 s{S_W}, 0", f"s_cselect_b32 s{T3}, s{T0}, s{T1}"]
        if m == 2: g += [f"s_cmp_lt_u32 s{S_W}, 2", f"s_cselect_b32 s{T3}, s{T1}, s{T2}"]
        g.append(lambda m=m: a(f"buffer_load_dwordx4 v{VST+1+m}, s[{SS}:{SS+3}], s{[T0, T3, T3, T2][m]} offen sc1 lds", tag=f"st{s}"))
        o.append(g)
    return o
def st_issue(a, s):
    st_h(a, s)
    for g in st_w(a, s): run(a, g)

XF = 96; ACC = (64, 80, 48); RING = 32
CSP = 0; B1L = 2560; RCL = 3072; TAGL = 5120; HB = 8192; SGL = 40960; CSW = 73728
V_XA, V_TR, V_L16, V_HO, V_J16 = 2, 6, 14, 18, 19
V_IRR, V_C0, V_C1 = 15, 16, 17
V_TRD = 24

def common_mlp_regs(a):
    a(f"""v_and_b32 v23, 31, v1
    v_lshrrev_b32 v21, 5, v1
    v_lshlrev_b32 v{V_J16}, 4, v23
    v_lshlrev_b32 v{V_HO}, 4, v1
    v_add_u32 v{V_L16}, s{S_M4}, v{V_HO}""")
def handoff_write(a, acc, buf, qs=range(4)):
    for q in qs:
        a(f"ds_write_b128 v{V_L16}, v[{acc+4*q}:{acc+4*q+3}] offset:{HB + buf*16384 + q*1024}", tag="pub")
def row_consts(a, vm, vrr, XE, t):
    a(f"""v_rcp_f32 v{V_IRR}, v{vrr}
    v_mul_f32 v{V_C0}, {fl(K0)}, v{vrr}
    v_mul_f32 v{V_C1}, v{vrr}, v{vrr}
    v_mul_f32 v{V_C1}, v{V_C1}, v{vrr}
    v_mul_f32 v{V_C1}, {fl(K1C)}, v{V_C1}""")
    if XE is None: return
    a(f"""v_sub_f32 v{vm}, 0, v{vm}
    v_cvt_pk_bf16_f32 v{XE}, v{vm}, v{vm}
    v_cvt_pk_bf16_f32 v{t+1}, v{V_IRR}, v{V_IRR}
    v_and_b32 v{t}, 0xffff0000, v{XE}
    v_and_b32 v{t+1}, 0xffff0000, v{t+1}
    v_sub_f32 v{t}, v{vm}, v{t}
    v_sub_f32 v{t+1}, v{V_IRR}, v{t+1}
    v_cvt_pk_bf16_f32 v{XE+1}, v{t}, v{V_IRR}
    v_cvt_pk_bf16_f32 v{XE+2}, v{t+1}, 0
    v_cmp_gt_u32 vcc, 32, v1
    v_mov_b32 v{XE+3}, 0
    v_cndmask_b32 v{XE}, 0, v{XE}, vcc
    v_cndmask_b32 v{XE+1}, 0, v{XE+1}, vcc
    v_cndmask_b32 v{XE+2}, 0, v{XE+2}, vcc""")
def epi_step(a, pidx, q, acc, U):
    P = acc + 4*q; o = []
    for t in range(4): o.append(f"v_mul_f32 v{U+t}, v{P+t}, v{P+t}")
    for t in range(4): o.append(f"v_fma_f32 v{U+t}, v{U+t}, v{V_C1}, v{V_C0}")
    for t in range(4): o.append(f"v_mul_f32 v{U+t}, v{U+t}, v{P+t}")
    for t in range(4): o.append(f"v_exp_f32 v{U+t}, v{U+t}")
    for t in range(4): o.append(f"v_fma_f32 v{U+t}, v{U+t}, v{V_IRR}, v{V_IRR}")
    for t in range(4): o.append(f"v_rcp_f32 v{U+t}, v{U+t}")
    for t in range(4): o.append(f"v_mul_f32 v{P+t}, v{P+t}, v{U+t}")
    d = P - 2*(q % 2)
    o += [f"v_cvt_pk_bf16_f32 v{d}, v{P}, v{P+1}", f"v_cvt_pk_bf16_f32 v{d+1}, v{P+2}, v{P+3}"]
    if q % 2 == 1:
        o.append(lambda: a(f"buffer_store_dwordx4 v[{P-4}:{P-1}], v{V_HO}, s[{SS}:{SS+3}], s{S_PG+pidx} offen offset:{1024*(q//2)} {ST}", tag=f"h{pidx}"))
    return o
def lines(t): return [x.strip() for x in t.strip().split("\n")]
def run(a, l):
    for x in l: x() if callable(x) else a(x)
def hf_addr(a, dst, second):
    a(f"""s_lshl_b32 s{dst}, s{S_RB}, 2
    s_add_u32 s{dst}, s{dst}, s{S_W}
    s_lshl_b32 s{dst}, s{dst}, 4
    s_add_u32 s{dst}, s{dst}, s{S_IDX}
    s_lshl_b32 s{dst}, s{dst}, 7
    s_add_u32 s{dst}, s{dst}, {F_HA if second else F_HB}""")

def mlp(a):
    a.label("L_mlp")
    a(f"""s_mul_i32 s{T0}, s{S_IDX}, 5
    s_add_u32 s{T0}, s{T0}, 1
    s_lshr_b32 s{T0}, s{T0}, 1
    s_lshl_b32 s{S_LA}, s{T0}, 7
    s_cmp_eq_u32 s{S_SET}, 0
    s_cbranch_scc1 L_mlpA""")
    def mlp_scalars():
        a(f"""s_add_u32 s{S_LB}, s{S_LA}, 128
        s_add_u32 s{S_LC}, s{S_LA}, 256
        s_sub_u32 s{T0}, s{S_LA}, 64
        s_bitcmp1_b32 s{S_IDX}, 0
        s_cselect_b32 s{S_LC}, s{T0}, s{S_LC}
        s_cmp_eq_u32 s{S_IDX}, 10
        s_cselect_b32 s{S_NP}, 4, 5""")
    COLS = ((S_LA, 0), (S_LA, 64), (S_LB, 0), (S_LB, 64), (S_LC, 0))
    def panel_scalars(ps):
        a(f"""s_lshl_b32 s{T2}, s{S_RB}, 2
        s_add_u32 s{T2}, s{T2}, s{S_W}
        s_mul_i32 s{T2}, s{T2}, {54*2048}""")
        for p in ps:
            base, add = COLS[p]
            a(f"""s_add_u32 s{T0}, s{base}, {add}
            s_lshl_b32 s{S_PG+p}, s{T0}, 5
            s_add_u32 s{S_PG+p}, s{S_PG+p}, s{T2}""")
    VBP, VBS, VB1 = 6, 8, 9
    a(f"""v_lshrrev_b32 v{VBP}, 3, v1
    s_lshl_b32 s{T0}, s{S_W}, 4
    v_add_u32 v{VBP}, s{T0}, v{VBP}
    v_mul_u32_u24 v{VBP}, 3456, v{VBP}
    v_bfe_u32 v23, v1, 4, 1
    v_lshlrev_b32 v23, 2, v23
    v_and_b32 v24, 7, v1
    v_xor_b32 v23, v23, v24
    v_lshl_add_u32 v{VBP}, v23, 4, v{VBP}
    v_add_u32 v{VBP+1}, {8*3456}, v{VBP}""")
    a.dstamp("st", 1)
    a("s_waitcnt lgkmcnt(0)")
    a.dstamp("st", 2)
    def b_dma(c, region, sline, tag):
        a(f"s_mul_i32 s{T0}, s{S_SX+c}, 1728")
        a(f"s_add_u32 s{T0}, s{T0}, s{sline}")
        for e in range(2):
            a(f"s_add_u32 m0, s{S_M2}, {region + c*8192 + e*1024}")
            a(f"buffer_load_dwordx4 v{VBP+e}, s[{SW}:{SW+3}], s{T0} offen {OPT['ntw']} lds", tag=tag)
    def chunk(c):
        x_dma(a, c); b_dma(c, 0, S_LA, f"x{c}")
    n0 = OPT["n0"]
    chunk(0)
    a.dstamp("st", 3)
    sx_table(a)
    for c in range(1, n0): chunk(c)
    a(f"""v_lshrrev_b32 v{VBS}, 2, v1
    s_lshl_b32 s{T0}, s{S_W}, 4
    v_add_u32 v{VBS}, s{T0}, v{VBS}
    v_mul_u32_u24 v{VBS}, 3456, v{VBS}
    v_and_b32 v23, 3, v1
    v_lshl_add_u32 v{VBS}, v23, 4, v{VBS}""")
    mlp_scalars()
    panel_scalars(range(1, 5))
    common_mlp_regs(a)
    hf_addr(a, 31, 0)
    a(f"""s_mul_i32 s{T0}, s{S_RB}, 10
    s_lshl_b32 s{T1}, s{S_RB}, 3
    s_cmp_eq_u32 s{S_IDX}, 10
    s_cselect_b32 s{T0}, s{T1}, s{T0}
    s_cselect_b32 s{T2}, 20, 40
    s_add_u32 s{T2}, s{T2}, 60
    s_mul_i32 s{T1}, s{S_IDX}, 160
    s_add_u32 s{T0}, s{T0}, s{T1}
    s_mul_i32 s66, s{T0}, 1280
    s_mul_i32 s67, s{T0}, 160
    s_add_u32 s67, s67, {WS_W2}
    s_mov_b32 s48, s8
    s_mov_b32 s49, s9
    s_mov_b32 s50, 2211840
    s_mov_b32 s51, 0x00020000
    s_lshl_b32 s{T3}, s{S_W}, 6
    s_mov_b32 s{T1}, {1728*160}
    v_add_u32 v176, s{T3}, v1
    v_mov_b32 v180, {BIG}""")
    for i in range(4):
        a(f"""v_add_u32 v177, {256*i}, v176
        v_mul_u32_u24 v178, 5243, v177
        v_lshrrev_b32 v178, 19, v178
        v_mul_u32_u24 v179, 100, v178
        v_sub_u32 v177, v177, v179
        v_cmp_gt_u32 vcc, s{T2}, v177
        v_lshlrev_b32 v179, 4, v177
        v_mad_u32_u24 v179, v178, s{T1}, v179
        v_cndmask_b32 v{188+i}, v180, v179, vcc
        v_mul_u32_u24 v179, 205, v177
        v_lshrrev_b32 v179, 11, v179
        v_mul_u32_u24 v181, 10, v179
        v_sub_u32 v177, v177, v181
        v_mul_u32_u24 v178, 80, v178
        v_sub_u32 v181, 1120, v178
        v_cmp_gt_u32 vcc, 5, v177
        v_cndmask_b32 v178, v181, v178, vcc
        v_lshl_add_u32 v178, v177, 4, v178
        v_mad_u32_u24 v{184+i}, v179, s{T2+100}, v178""".replace(f"s{T2+100}", "v182"))
    a.lines.insert(len(a.lines) - 4*19, "    v_mov_b32 v182, 1280")
    a(f"""s_cmp_eq_u32 s{S_W}, 0
    s_cselect_b32 vcc_lo, -1, 0
    s_mov_b32 vcc_hi, 0
    v_cndmask_b32 v187, v180, v187, vcc
    v_cndmask_b32 v191, v180, v191, vcc""")
    for i in range(4): a(f"buffer_load_dwordx4 v[{160+4*i}:{163+4*i}], v{184+i}, s[48:51], s66 offen", tag="rp")
    a(f"""s_lshl_b32 s69, s{S_IDX}, 4
    s_add_u32 s69, s69, s{S_RB}
    s_lshl_b32 s69, s69, 7
    s_add_u32 s69, s69, {F_RF}
    s_cmp_eq_u32 s{S_W}, 0
    s_cselect_b32 s69, s69, {BIG}
    s_lshl_b32 s30, s{S_IDX}, 11
    s_add_u32 s30, s30, {F_RF}
    s_mov_b64 s[{S_MSK}:{S_MSK+1}], 0xffff
    v_lshlrev_b32 v11, 7, v1""")
    st_setup(a)
    run(a, sp_base(S_HFA))
    nxt = n0
    a.dstamp("st", 4)
    for c in range(11):
        if 1 <= c <= 9: a.dstamp("bar", c)
        if c < 10: a.vmwait(f"x{c}")
        if 1 <= c <= 9: a.dstamp("bar2", c)
        if c == 10: a.dstamp("p", 1)
        if c < 4: a.dstamp("st", 5 + c)
        a("s_barrier")
        if c == 0: a.stamp(1)
        k = 0
        while nxt <= min(c + 4, 9) and k < 2:
            chunk(nxt); nxt += 1; k += 1
        if c >= 6:
            m = c - 6
            b_dma(2*m, XSLOT, S_LB, f"p{m}"); b_dma(2*m + 1, XSLOT, S_LB, f"p{m}")
        if c == 1:
            for i in range(4): a(f"buffer_store_dwordx4 v[{160+4*i}:{163+4*i}], v{188+i}, s[{SS}:{SS+3}], s67 offen {ST}", tag="rq")
    a(f"s_mov_b32 s{S_LA}, s31")
    a(f"""s_lshl_b32 s{T0}, s{S_W}, 9
    v_add_u32 v22, s{T0}, v{V_J16}""")
    a.vmwait(["p0", "p1", "p2", "p3"])
    a.dstamp("p", 2); a("s_barrier"); a.dstamp("p", 3)
    a.stamp(2)
    AR = {1: 80, 2: 96, 3: 112, 4: 128}
    def rd_acc(p, qs=range(4)):
        for q in qs:
            a(f"ds_read_b128 v[{AR[p]+4*q}:{AR[p]+4*q+3}], v{V_L16} offset:{HB + (p % 2)*16384 + q*1024}", tag=f"acc{p}_{q}")
    def sg(c):
        a(f"s_mul_i32 s{T0}, s{S_SX+c}, 1728")
        a(f"s_add_u32 s{T0}, s{T0}, s{S_LC}")
        a(f"s_add_u32 m0, s{T1}, {SGL + c*4096}")
        a(f"buffer_load_dwordx4 v{VBS}, s[{SW}:{SW+3}], s{T0} offen {OPT['ntw']} lds", tag="sg")
    def step(p, q):
        a.lgwait(f"acc{p}_{q}"); run(a, epi_step(a, p, q, AR[p], 60))
    a(f"ds_read_b128 v[24:27], v22 offset:{RCL}", tag="acc1_0")
    rd_acc(1)
    a(f"s_lshr_b32 s{T1}, s{S_M2}, 1")
    sg(0); sg(1)
    a.lgwait("acc1_0")
    a(f"""v_mov_b32 v{V_IRR}, v25
    v_mov_b32 v{V_C0}, v26
    v_mov_b32 v{V_C1}, v27
    v_readfirstlane_b32 s{S_TAG}, v24""")
    publish(a, 69, 5, 28, 29)
    step(1, 0); sg(2); sg(3); step(1, 1)
    a.vmwait("p4"); a.lgall(); a.dstamp("p", 4); a("s_barrier")
    sg(4); sg(5); step(1, 2); sg(6); sg(7); step(1, 3); sg(8); sg(9)
    a.dstamp("p", 5); a("s_barrier")
    rd_acc(2)
    poll_issue(a, 11, 30, S_MSK, 10)
    step(2, 0); step(2, 1); step(2, 2)
    poll_check(a, 11, 30, 5, S_MSK, 10)
    a.vmwait(["sg", "h1"]); a.dstamp("p", 6); a("s_barrier")
    publish(a, S_LA, 2, 28, 29)
    step(2, 3)
    a.dstamp("p", 7); a("s_barrier"); a.stamp(3)
    rd_acc(3, (2, 3))
    step(3, 2); sp_issue(a, L6, D6); step(3, 3)
    a.vmwait("h2"); publish(a, S_LA, 3, 28, 29)
    sp_check(a, L6, D6, 2)
    st_issue(a, 0)
    a(f"s_cmp_eq_u32 s{S_NP}, 4")
    a("s_cbranch_scc1 L_mlpB4")
    a.dstamp("p", 8); a("s_barrier")
    a.stamp(4)
    rd_acc(4, (2, 3)); step(4, 2); step(4, 3)
    a.label("L_mlpB4")
    st_issue(a, 1)
    a("s_branch L_CB")

    a.label("L_mlpA")
    a.vm = []; a.lg = []
    a(f"""s_setprio 1
    s_memrealtime s[44:45]
    s_or_b32 s{T1}, s2, s{S_V}
    s_cmp_lg_u32 s{T1}, 0
    s_waitcnt lgkmcnt(0)
    s_cbranch_scc1 L_notag
    s_lshl_b32 s44, s44, 3
    s_or_b32 s44, s44, 1
    v_mov_b32 v9, 0
    v_mov_b32 v8, s44
    global_store_dword v9, v8, s[{S_DBG}:{S_DBG+1}] sc1
    L_notag:
    s_lshl_b32 s{T3}, s{S_W}, 2
    v_and_b32 v13, 15, v1
    v_mov_b32 v180, {BIG}
    s_lshl_b32 s{T1}, s{S_IDX}, 4
    s_add_u32 s{S_PG+2}, s{T1}, s{T3}
    v_lshrrev_b32 v10, 4, v1
    v_add_u32 v10, s{S_PG+2}, v10              ; R = 16*cg + 4*w + l/16
    v_and_b32 v11, 31, v10
    v_mul_u32_u24 v11, {64*1280}, v11
    v_bfe_u32 v12, v10, 5, 2
    s_lshl_b32 s{T1}, s{S_RB}, 2
    v_add_u32 v12, s{T1}, v12
    v_mul_u32_u24 v12, 1280, v12
    v_lshl_add_u32 v12, v13, 4, v12
    v_add_u32 v204, v11, v12
    s_cmp_ge_u32 s{S_IDX}, 8
    s_cselect_b32 s31, {BIG}, 0
    s_mul_i32 s42, s{S_RB}, 40
    s_mul_i32 s{T1}, s{S_W}, 10
    s_add_u32 s42, s42, s{T1}
    s_mul_i32 s42, s42, 3456
    s_mul_i32 s{T1}, s{S_IDX}, 320
    s_add_u32 s42, s42, s{T1}
    v_lshrrev_b32 v21, 5, v1
    v_and_b32 v23, 31, v1
    v_mul_u32_u24 v12, 3456, v21
    v_lshl_add_u32 v205, v23, 4, v12""")
    a.vm = []
    mlp_scalars()
    panel_scalars([0, 3, 4])
    common_mlp_regs(a)
    a(f"""s_cmp_eq_u32 s{S_W}, 0
    s_cselect_b32 s{T0}, s{S_LA}, s{S_LB}
    s_cmp_ge_u32 s{S_W}, 2
    s_cselect_b32 s{T0}, s{S_LC}, s{T0}
    v_lshl_add_u32 v203, v1, 1, s{T0}""")
    a(f"""v_bfe_u32 v25, v1, 1, 3
    v_xor_b32 v25, v25, v21
    s_lshl_b32 s{T0}, s{S_W}, 5
    v_add_u32 v26, s{T0}, v23
    v_lshlrev_b32 v26, 7, v26
    v_lshl_add_u32 v26, v25, 4, v26
    v_add_u32 v{V_XA}, {XSLOT}, v26
    v_xor_b32 v{V_XA+1}, 32, v{V_XA}
    v_xor_b32 v{V_XA+2}, 64, v{V_XA}
    v_xor_b32 v{V_XA+3}, 96, v{V_XA}
    v_bfe_u32 v25, v1, 2, 2
    v_lshl_add_u32 v27, v21, 3, v25
    v_bfe_u32 v28, v1, 4, 1
    v_lshlrev_b32 v28, 5, v28
    v_and_b32 v29, 3, v1
    v_lshl_add_u32 v28, v29, 3, v28
    v_lshl_add_u32 v{V_TRD}, v27, 6, v28
    v_add_u32 v{V_TRD}, {SGL}, v{V_TRD}
    v_lshl_add_u32 v27, v27, 7, v28
    v_lshrrev_b32 v25, 1, v25
    v_lshl_add_u32 v{V_TR}, v25, 6, v27
    v_xor_b32 v{V_TR+1}, 64, v{V_TR}
    v_lshlrev_b32 v9, 1, v23
    v_mov_b32 v8, 0x05040100
    v_mov_b32 v200, 0x3f80
    v_mov_b32 v201, 0x3f800000
    v_mov_b32 v202, 0x3f803f80
    s_lshl_b32 s{T1}, s{S_IDX}, 4
    s_add_u32 s{T2}, s{T1}, s{S_RB}
    s_mul_i32 s{T2}, s{T2}, 896
    s_add_u32 s{T2}, s{T2}, {WS_CS}
    s_cmp_eq_u32 s{S_W}, 0
    s_cselect_b32 s{S_PG+1}, s{T2}, {BIG}
    s_lshl_b32 s{T0}, s{S_W}, 2
    s_mul_i32 s{S_PG+2}, s{S_PG+2}, 896
    s_add_u32 s{S_PG+2}, s{S_PG+2}, {WS_CS}
    s_and_b32 s{T1}, s{T1}, 16
    s_mul_i32 s{T1}, s{T1}, 128
    v_mul_u32_u24 v12, 48, v1
    v_add_u32 v12, s{T1}, v12""")
    for i in range(3):
        a(f"""v_add_u32 v{25+i}, {16*i}, v12
        v_subrev_u32 v28, 2560, v{25+i}
        v_min_u32 v{25+i}, v{25+i}, v28
        v_add_u32 v{25+i}, s{T0}, v{25+i}""")
    a(f"""s_lshl_b32 s{T0}, s{S_RB}, 11
    s_add_u32 s{T0}, s{T0}, {WS_S}
    s_add_u32 s{T0}, s{T0}, s31
    v_lshl_add_u32 v10, v10, 4, s{T0}
    v_cmp_eq_u32 vcc, 0, v13
    v_cndmask_b32 v16, v180, v10, vcc
    v_mul_u32_u24 v21, 12, v1
    v_add_u32 v21, {CSW}, v21
    s_mul_i32 s{T0}, s{S_W}, 640
    v_lshl_add_u32 v22, v1, 5, s{T0}
    v_add_u32 v22, {CSW}, v22
    s_lshl_b32 s{T0}, s{S_W}, 7
    v_lshl_add_u32 v23, v1, 1, s{T0}
    v_mov_b32 v10, 0
    v_mov_b32 v11, 0""")
    for i in range(8): a(f"v_mov_b32 v{248+i}, 0")
    hf_addr(a, S_LA, 1)
    rec_addr(a, 15)
    a.dstamp("st", 3)
    for it in range(5): a(f"buffer_load_dwordx4 v[{228+4*it}:{231+4*it}], v204, s[{SX}:{SX+3}], s31 offen offset:{256*it}", tag="sx")
    a("s_mov_b32 exec_lo, 0xfffff"); a("s_mov_b32 exec_hi, 0xfffff")
    for it in range(5):
        a(f"buffer_load_dwordx4 v[{208+4*it}:{211+4*it}], v205, s[{SW}:{SW+3}], s42 offen", tag="cx")
        if it < 4: a(f"s_add_u32 s42, s42, {2*3456}")
    a("s_mov_b64 exec, -1")
    a(f"buffer_load_ushort v20, v203, s[{SB}:{SB+3}], 0 offen", tag="b1")
    tag_issue(a, 13, 17)
    def job_cs():
        a.vmwait("cx")
        for r in range(20):
            a(f"v_dot2c_f32_bf16 v{248+2*(r%4)}, v{208+r}, v200"); a(f"v_dot2c_f32_bf16 v{249+2*(r%4)}, v{208+r}, v201")
        for i in range(8): a(f"v_mov_b32 v{192+i}, v{248+i}")
        for i in range(8): a(f"v_permlane32_swap_b32 v{192+i}, v{248+i}")
        for i in range(8): a(f"v_add_f32 v{248+i}, v{248+i}, v{192+i}")
        a("s_mov_b64 exec, 0xfffff")
        a("ds_write_b128 v22, v[248:251]", tag="cw"); a("ds_write_b128 v22, v[252:255] offset:16", tag="cw")
        a("s_mov_b64 exec, -1")
        a.lgwait("cw")
    def job_st():
        a.vmwait("sx")
        for r in range(20):
            a(f"v_dot2c_f32_bf16 v10, v{228+r}, v202"); a(f"v_dot2c_f32_bf16 v11, v{228+r}, v{228+r}")
        for sh in (8, 4, 2, 1):
            for r in (10, 11): a(f"v_add_f32_dpp v{r}, v{r}, v{r} row_ror:{sh} row_mask:0xf bank_mask:0xf")
        stats_math(a, 10, 11, 192, 193, 12, 11)
        tag_check(a, 13, 17)
        a(f"v_or_b32 v13, 7, v13")
        a(f"buffer_store_dwordx4 v[10:13], v16, s[{SS}:{SS+3}], 0 offen {ST}")
    CR = 240
    def sum4():
        for i in range(3):
            a(f"v_add_f32 v{CR+i}, v{CR+i}, v{CR+4+i}"); a(f"v_add_f32 v{CR+8+i}, v{CR+8+i}, v{CR+12+i}")
        for i in range(3): a(f"v_add_f32 v{CR+i}, v{CR+i}, v{CR+8+i}")
    def csi():
        for i in range(4): a(f"buffer_load_dwordx4 v[{CR+4*i}:{CR+3+4*i}], v{V_HO}, s[{SS}:{SS+3}], s{S_PG+2} offen offset:{896*i} sc1", tag="csi")
    def job_in():
        L = uid("Lcs")
        a.vmwait("csi"); vm = list(a.vm)
        a(f"""s_mov_b32 s{T2}, 0
        s_or_b32 s{T3}, s{S_TAG}, 7
        s_mov_b32 exec_hi, 0x3fffff
        {L}:
        v_xor_b32 v{CR+3}, s{T3}, v{CR+3}
        v_xor_b32 v{CR+7}, s{T3}, v{CR+7}
        v_xor_b32 v{CR+11}, s{T3}, v{CR+11}
        v_xor_b32 v{CR+15}, s{T3}, v{CR+15}
        v_or3_b32 v{CR+3}, v{CR+3}, v{CR+7}, v{CR+11}
        v_or_b32 v{CR+3}, v{CR+3}, v{CR+15}
        v_cmp_ne_u32 vcc, 0, v{CR+3}
        s_add_u32 s{T2}, s{T2}, 1
        s_cbranch_vccz {L}d
        s_cmp_ge_u32 s{T2}, {SPIN}
        s_cbranch_scc1 {L}d
        s_sleep {OPT['sleep']}""")
        csi()
        a(f"""s_waitcnt vmcnt(0)
        s_branch {L}
        {L}d:""")
        a.vm = vm
        sum4()
        for i in range(3):
            if i == 1: a("s_mov_b32 exec_hi, 0x1fffff")
            a(f"ds_write_b32 v{25+i}, v{CR+i} offset:{CSP}")
        a("s_mov_b64 exec, -1")
    def we_read(p, T, t):
        a(f"ds_read_b128 v[{T}:{T+3}], v{V_J16} offset:{CSP + 512*p}", tag=f"we{p}")
        a(f"ds_read_u16 v{t}, v9 offset:{B1L + 64*p}", tag=f"we{p}")
    def we_build(p, T, t):
        return [lambda: a.lgwait(f"we{p}")] + lines(f"""v_add_f32 v{T}, v{T}, v{T+1}
        v_add_f32 v{T+2}, v{T+2}, v{T+3}
        v_add_f32 v{T}, v{T}, v{T+2}
        v_cvt_pk_bf16_f32 v{T+1}, v{T}, v{T}
        v_and_b32 v{T+2}, 0xffff0000, v{T+1}
        v_sub_f32 v{T+2}, v{T}, v{T+2}
        v_cvt_pk_bf16_f32 v{T}, v{T}, v{T+2}
        v_perm_b32 v{T+1}, v{t}, v{T+1}, v8
        v_mov_b32 v{T+2}, v{t}
        v_mov_b32 v{T+3}, 0""")
    def X(c):
        slot = c % 5
        if slot == 4:
            for s in range(4): a(f"v_add_u32 v{V_XA+s}, 16384, v{V_XA+s}")
        for s in range(4):
            k = 4*c + s
            a(f"ds_read_b128 v[{XF+4*k}:{XF+4*k+3}], v{V_XA+s} offset:{min(slot,3)*16384}", tag=f"X{c}")
        if slot == 4 and c < 9:
            for s in range(4): a(f"v_subrev_u32 v{V_XA+s}, 16384, v{V_XA+s}")
    def R(k):
        if k == 32:
            a(f"v_add_u32 v{V_TR}, 65536, v{V_TR}"); a(f"v_add_u32 v{V_TR+1}, 65536, v{V_TR+1}")
        off = (k % 32) * 2048
        b = RING + 8*(k % 4)
        for hf in range(2):
            a(f"ds_read_b64_tr_b16 v[{b+4*hf}:{b+4*hf+1}], v{V_TR+hf} offset:{off}", tag=f"R{k}")
            a(f"ds_read_b64_tr_b16 v[{b+4*hf+2}:{b+4*hf+3}], v{V_TR+hf} offset:{off+512}", tag=f"R{k}")
    def MM(acc, A, B, src): a(f"v_mfma_f32_32x32x16_bf16 v[{acc}:{acc+15}], v[{A}:{A+3}], v[{B}:{B+3}], " + ("0" if src == 0 else f"v[{acc}:{acc+15}]"))
    XEA = 2
    a.dstamp("st", 4)
    a("s_barrier")
    a.stamp(1)
    X(0); R(0); R(1); R(2)
    a.lgwait("X0")
    for c in range(1, 11):
        if c <= 9: a.dstamp("bar", c); a.dstamp("bar2", c)
        if c == 10: a.dstamp("p", 1)
        a("s_barrier")
        if c <= 9: X(c)
        if c == 3:
            for i in range(4):
                for j in range(3): a(f"ds_read_b32 v{CR+4*i+j}, v21 offset:{i*640 + 4*j}", tag="co")
        if c == 10:
            we_read(1, 28, 26); we_read(0, 20, 25)
        for s in range(4):
            k = 4*(c - 1) + s
            a.lgwait(f"R{k}")
            b = RING + 8*s
            for hf in range(2): MM(ACC[hf], b + 4*hf, XF + 4*k, k)
            if k + 3 < 40: R(k + 3)
            if c == 1 and s == 3: job_st()
            if c == 2 and s == 3: job_cs()
            if c == 3 and s == 1:
                a.lgwait("co"); sum4()
                a(f"v_mov_b32 v{CR+3}, v13"); a("s_mov_b32 exec_hi, 0x3fffff")
                a(f"buffer_store_dwordx4 v[{CR}:{CR+3}], v{V_HO}, s[{SS}:{SS+3}], s{S_PG+1} offen {ST}")
                a("s_mov_b64 exec, -1")
            if c == 6 and s == 0:
                a("s_mov_b32 exec_hi, 0x3fffff"); csi(); a("s_mov_b64 exec, -1")
                rec_issue(a, 15, 10)
            if c == 7 and s == 0: a(f"ds_write_b16 v23, v20 offset:{B1L}")
            if c == 8 and s == 3: job_in()
            if c == 9 and s == 1:
                rec_check(a, 15, 10); row_consts(a, 10, 11, XEA, 12)
                a(f"""s_lshl_b32 s{T0}, s{S_W}, 9
                v_add_u32 v12, s{T0}, v{V_J16}
                v_mov_b32 v13, s{S_TAG}
                ds_write_b128 v12, v[14:17] offset:{RCL}
                ds_write_b32 v12, v13 offset:{RCL}""")
            if c == 10 and s == 0: run(a, we_build(1, 28, 26))
            if c == 10 and s == 1:
                run(a, we_build(0, 20, 25))
                for hf in range(2): a(f"v_add_u32 v{V_TR+hf}, {XSLOT - 65536}, v{V_TR+hf}")
            if c == 10 and s == 2:
                MM(ACC[1], 28, XEA, 1); MM(ACC[0], 20, XEA, 1)
                we_read(2, 28, 26)
    run(a, we_build(2, 28, 26))
    handoff_write(a, ACC[1], 1)
    a.lgall()
    a.dstamp("p", 2); a("s_barrier"); a.dstamp("p", 3)
    a.stamp(2)
    SL = [32, 36, 40, 44, 20]
    def R2(n):
        p, k = divmod(n, 40)
        b = SL[n % 5]
        if p < 2:
            vb = V_TR + p
            if k == 32: a(f"v_add_u32 v{vb}, 65536, v{vb}")
            off = (k % 32) * 2048; d = 512
        else:
            vb = V_TRD; off = k * 1024; d = 256
        a(f"ds_read_b64_tr_b16 v[{b}:{b+1}], v{vb} offset:{off}", tag=f"Q{n}")
        a(f"ds_read_b64_tr_b16 v[{b+2}:{b+3}], v{vb} offset:{off+d}", tag=f"Q{n}")
    for n in range(4): R2(n)
    PA = [ACC[1], ACC[2], ACC[0]]
    own0 = sum([epi_step(a, 0, q, ACC[0], 10) for q in range(4)], [])
    own3 = sum([epi_step(a, 3, q, ACC[2], 10) for q in range(2)], [])
    n0 = n3 = 0
    wb = []
    for n in range(120):
        p, k = divmod(n, 40)
        if n in (46, 50, 54, 58, 62, 66, 70, 74, 78): a.dstamp("n1", 1 + (n - 46)//4)
        if n in (86, 90, 94, 98, 102, 106, 110, 114, 119): a.dstamp("n2", 1 + (n - 86)//4)
        if n in (0, 4, 8, 12, 16, 24, 30, 36, 42): a.dstamp("n0", 1 + [0, 4, 8, 12, 16, 24, 30, 36, 42].index(n))
        if n == 28: a.dstamp("p", 4); a("s_barrier")
        if k == 0: MM(PA[p], 28, XEA, 0)
        a.lgwait(f"Q{n}")
        MM(PA[p], SL[n % 5], XF + 4*k, 1)
        if n + 4 < 120: R2(n + 4)
        if n in (2, 56):
            we_read(3 + n//40, 28, 26); wb = we_build(3 + n//40, 28, 26)
        if n % 40 >= 20 and wb: run(a, wb[:1 + callable(wb[0])]); wb = wb[1 + callable(wb[0]):]
        if n < 44:
            m = (n + 1) * len(own0) // 44
            run(a, own0[n0:m]); n0 = m
        if 44 <= n < 48: handoff_write(a, ACC[1], 0, (n - 44,))
        if n == 51: a.lgwait("pub"); a.dstamp("p", 5); a("s_barrier")
        if n == 75: a.vmwait("h0"); a.dstamp("p", 6); a("s_barrier")
        if n == 79:
            a(f"s_cmp_eq_u32 s{S_NP}, 4")
            a("s_cbranch_scc1 L_np4")
        if n in (83, 84): handoff_write(a, ACC[2], 1, (n - 81,))
        if n == 88:
            a.lgwait("pub"); a.dstamp("p", 7); a("s_barrier"); a.stamp(3)
        if 85 <= n < 117:
            m = (n - 84) * len(own3) // 32
            run(a, own3[n3:m]); n3 = m
    handoff_write(a, ACC[0], 0, (2, 3))
    a.lgall(); a.dstamp("p", 8); a("s_barrier"); a.stamp(4)
    for q in (0, 1): run(a, epi_step(a, 4, q, ACC[0], 10))
    a(f"s_mov_b32 s{S_LB}, s{S_LA}")
    a("s_waitcnt vmcnt(1)")
    a("s_branch L_CA")
    a.label("L_np4")
    a("s_nop 15")
    handoff_write(a, ACC[2], 1, (2, 3))
    a.lgall(); a.dstamp("p", 7); a("s_barrier")
    run(a, own3)
    a(f"s_mov_b32 s{S_LB}, s{S_LA}")
    a("s_waitcnt vmcnt(0)")
    a("s_branch L_CA")

def run(a, l):
    for x in l: x() if callable(x) else a(x)
def merge(a, mf, va):
    n = len(mf); m = len(va); j = 0
    for i in range(n):
        a(mf[i])
        k = (i + 1) * m // n
        while j < k:
            x = va[j]; j += 1
            x() if callable(x) else a(x)

WPAR = 10240; LW = XSLOT; LT = 0; EXS = 122880; EXF = 131072
def dft(a):
    a.label("L_dft")
    a.vm = []; a.lg = []
    a(f"""s_cmp_eq_u32 s{S_SET}, 0
    s_cselect_b64 vcc, -1, 0
    v_cndmask_b32 v{VXO}, v{VXO+2}, v{VXO}, vcc
    v_cndmask_b32 v{VXO+1}, v{VXO+3}, v{VXO+1}, vcc
    s_lshl_b32 s{T0}, s{S_SET}, 11
    s_add_u32 s{S_LB}, s{S_M4}, s{T0}""")
    def xd(c, e):
        a(f"s_add_u32 m0, s{S_LB}, {XSLOT + (c % 5)*16384 + e*1024}")
        a(f"buffer_load_dwordx4 v{VXO+e}, s[{SX}:{SX+3}], s{S_SX+c} offen {OPT['ntx']} lds", tag=f"x{c}")
    n0 = 3
    a.dstamp("st", 1)
    a("s_waitcnt lgkmcnt(0)")
    a.dstamp("st", 2)
    xd(0, 0); xd(0, 1)
    a.dstamp("st", 3)
    sx_table(a)
    for c in range(1, n0): xd(c, 0); xd(c, 1)
    a("s_load_dwordx4 s[68:71], s[0:1], 8")
    VF, VFS, VD, VM, VMS, VW = 6, 7, 8, 9, 10, 11
    a(f"""s_lshl_b32 s{T0}, s{S_IDX}, 1
    s_add_u32 s{S_LA}, s{T0}, s{S_SET}      ; hg
    s_lshl_b32 s{T0}, s{S_LA}, 4
    v_and_b32 v12, 15, v1
    v_add_u32 v12, s{T0}, v12
    v_cmp_eq_u32 vcc, 0, v12
    v_mov_b32 v13, 160
    v_cndmask_b32 v13, v12, v13, vcc
    s_mov_b64 s[74:75], vcc
    v_cvt_f32_u32 v{VF}, v12
    v_cvt_f32_u32 v{VFS}, v13
    v_mul_f32 v{VF}, {fl(1/640)}, v{VF}
    v_mul_f32 v{VFS}, {fl(-1/640)}, v{VFS}
    s_and_b32 s{T0}, s{S_V}, 1
    s_bfe_u32 s{T1}, s{S_V}, 0x10001
    s_cmp_eq_u32 s{T1}, 0
    s_cselect_b32 s{T2}, s{S_SX}, s{S_SX+5}
    s_lshr_b32 s{T2}, s{T2}, 1
    s_add_u32 s{T2}, s{T2}, s{T0}
    v_lshrrev_b32 v{VD}, 4, v1
    v_lshlrev_b32 v{VD}, 3, v{VD}
    v_add_u32 v{VD}, s{T2}, v{VD}
    v_cvt_f32_u32 v{VD}, v{VD}
    v_add_f32 v{VD}, 0.5, v{VD}
    s_mul_i32 s{T2}, s{S_SET}, 40968
    s_mul_i32 s{T1}, s{T1}, 20480
    s_add_u32 s{T2}, s{T2}, s{T1}
    s_lshl_b32 s{T0}, s{T0}, 11
    s_add_u32 s{T2}, s{T2}, s{T0}
    v_lshl_add_u32 v{VW}, v1, 4, s{T2}
    v_xor_b32 v14, 8, v{VW}
    v_mul_f32 v{VM}, {fl(32.0)}, v{VF}
    v_mul_f32 v{VMS}, {fl(32.0)}, v{VFS}
    v_cos_f32 v{VM}, v{VM}
    v_cos_f32 v{VMS}, v{VMS}
    v_mul_f32 v12, v{VD}, v{VF}
    v_mul_f32 v13, v{VD}, v{VFS}
    v_add_f32 v{VM}, v{VM}, v{VM}
    v_add_f32 v{VMS}, v{VMS}, v{VMS}""")
    CC, SN = 64, 80
    for u in range(2):
        for e in range(4):
            dl = 32*u + 2*e
            if dl:
                a(f"v_fmamk_f32 v{CC+4*u+e}, v{VF}, {fl(dl)}, v12"); a(f"v_fmamk_f32 v{SN+4*u+e}, v{VFS}, {fl(dl)}, v13")
                a(f"v_cos_f32 v{CC+4*u+e}, v{CC+4*u+e}"); a(f"v_sin_f32 v{SN+4*u+e}, v{SN+4*u+e}")
            else:
                a(f"v_cos_f32 v{CC}, v12"); a(f"v_sin_f32 v{SN}, v13")
    for m in range(5):
        o = 96 + 8*(m % 2)
        for r in range(4):
            a(f"v_cvt_pk_bf16_f32 v{o+r}, v{CC+2*r}, v{CC+2*r+1}")
            a(f"v_cvt_pk_bf16_f32 v{o+4+r}, v{SN+2*r}, v{SN+2*r+1}")
        a(f"ds_write2st64_b64 v{VW}, v[{o}:{o+1}], v[{o+4}:{o+5}] offset0:{m*8} offset1:{m*8+2}")
        a(f"ds_write2st64_b64 v14, v[{o+2}:{o+3}], v[{o+6}:{o+7}] offset0:{m*8} offset1:{m*8+2}")
        if m < 4:
            for u in range(2):
                for e in range(4):
                    a(f"v_fma_f32 v{CC+4*u+e}, v{VM}, v{CC+4*(1-u)+e}, -v{CC+4*u+e}")
                    a(f"v_fma_f32 v{SN+4*u+e}, v{VMS}, v{SN+4*(1-u)+e}, -v{SN+4*u+e}")
    XA = 6; VB = 10; SE, SO = 11, 12; ON = 16
    a(f"""v_and_b32 v18, 15, v1
    v_lshrrev_b32 v19, 4, v1
    v_bfe_u32 v20, v1, 1, 3
    v_xor_b32 v20, v20, v19
    s_lshl_b32 s{T0}, s{S_SET}, 2
    v_xor_b32 v20, s{T0}, v20
    s_lshl_b32 s{T0}, s{S_W}, 5
    v_add_u32 v18, s{T0}, v18
    v_lshlrev_b32 v18, 7, v18
    v_lshl_add_u32 v{XA}, v20, 4, v18
    v_add_u32 v{XA}, {XSLOT}, v{XA}
    v_xor_b32 v{XA+1}, 64, v{XA}
    v_add_u32 v{XA+2}, 2048, v{XA}
    v_add_u32 v{XA+3}, 2048, v{XA+1}
    s_mul_i32 s{T0}, s{S_SET}, 40960
    v_lshl_add_u32 v{VB}, v1, 4, s{T0}
    v_mov_b32 v{SE}, 0x05040100
    v_mov_b32 v{SO}, 0x07060302
    s_lshl_b32 s{T0}, s{S_RB}, 2
    s_add_u32 s{S_LC}, s{T0}, s{S_W}        ; n2""")
    rec_addr(a, 16)
    FO = 40
    f1 = f"""v_lshrrev_b32 v20, 4, v1
    v_lshlrev_b32 v20, 8, v20
    v_add_u32 v20, s{S_LC}, v20
    v_cvt_f32_u32 v20, v20
    v_and_b32 v21, 1, v1
    s_lshl_b32 s{T0}, s{S_SET}, 4
    v_and_b32 v22, 15, v1
    v_add_u32 v22, s{T0}, v22
    v_lshrrev_b32 v23, 1, v22
    v_cvt_f32_u32 v23, v23
    v_cmp_eq_u32 vcc, 1, v21
    v_sub_f32 v21, 0, v23
    v_cndmask_b32 v23, v21, v23, vcc
    v_mov_b32 v21, 0.25
    v_cndmask_b32 v21, 0, v21, vcc
    v_cmp_eq_u32 vcc, 1, v22
    v_mov_b32 v22, {fl(-16.0)}
    v_cndmask_b32 v23, v23, v22, vcc
    v_mov_b32 v22, 0
    v_cndmask_b32 v21, v21, v22, vcc
    v_mul_f32 v23, {fl(1/2048)}, v23
    v_fma_f32 v21, v23, v20, v21""".split("\n")
    for jj in range(8):
        dn = 64*(16*(jj//4) + jj % 4)
        f1.append(f"v_mov_b32 v{24+jj}, v21" if dn == 0 else f"v_fmamk_f32 v{24+jj}, v23, {fl(dn)}, v21")
    for jj in range(8): f1 += [f"v_sin_f32 v{32+jj}, v{24+jj}", f"v_cos_f32 v{24+jj}, v{24+jj}"]
    for r in range(4): f1 += [f"v_cvt_pk_bf16_f32 v{FO+r}, v{24+2*r}, v{25+2*r}", f"v_cvt_pk_bf16_f32 v{FO+4+r}, v{32+2*r}, v{33+2*r}"]
    f1parts = {0: f1[:30], 1: f1[30:]}
    HP, F0, K1W, SGN, HG = 61, 62, 63, 64, 65
    wsc = {2: lines(f"""s_cmp_lt_u32 s{S_W}, 2
        s_cselect_b32 s{SW}, s68, s70
        s_cselect_b32 s{SW+1}, s69, s71
        s_mov_b32 s{SW+2}, {2048*642}
        s_and_b32 s{HG}, s{S_IDX}, 1
        s_lshl_b32 s{F0}, s{HG}, 6
        s_lshl_b32 s{HG}, s{HG}, 2
        s_add_u32 s{HG}, s{HG}, s{S_W}
        s_lshr_b32 s{SGN}, s{S_IDX}, 1
        s_sub_u32 s{T2}, 257, s{F0}
        s_cmp_eq_u32 s{SGN}, 0
        s_cselect_b32 s{F0}, s{F0}, s{T2}"""),
      3: lines(f"""s_and_b32 s{T0}, s{S_W}, 1
        s_add_u32 s{T1}, s{T0}, 8
        s_lshr_b32 s{T2}, s{S_W}, 1
        s_cmp_eq_u32 s{S_IDX}, 4
        s_cselect_b32 s{HG}, s{T1}, s{HG}
        s_cselect_b32 s{SGN}, s{T2}, s{SGN}
        s_cselect_b32 s{F0}, 128, s{F0}
        s_lshl_b32 s{HP}, s{HG}, 1
        s_add_u32 s{HP}, s{HP}, s{SGN}
        s_sub_u32 s{T2}, 0, s{S_RB}
        s_cmp_eq_u32 s{S_RB}, 0
        s_cselect_b32 s66, 16, s{T2}
        s_cmp_eq_u32 s{T0}, 0
        s_cselect_b32 s{K1W}, s{S_RB}, s66"""),
      4: lines(f"""s_mul_i32 s{T0}, s{K1W}, 642
        s_lshl_b32 s{T1}, s{F0}, 1
        s_add_u32 s{T1}, s{T1}, s{T0}
        s_and_b32 s{T1}, s{T1}, -16
        s_add_u32 s{T0}, s{T0}, 320
        s_and_b32 s{T0}, s{T0}, -16
        s_sub_u32 s{T0}, s{T0}, s{T1}
        s_sub_u32 s68, s{T0}, 144
        s_mul_i32 s{T0}, s{S_SET}, {32*20544}
        s_add_u32 s69, s{T1}, s{T0}
        s_lshl_b32 s{T0}, s{S_SET}, 7
        s_add_u32 s96, s{T1}, s{T0}"""),
      5: lines(f"""s_cmp_lt_i32 s{K1W}, 0
        s_cselect_b32 s97, {2048*642}, 0
        s_cmp_eq_u32 s{S_SET}, 0
        s_cselect_b32 s70, s97, 0
        s_mul_i32 s71, s{S_W}, {WPAR}
        s_mul_i32 s{T0}, s{S_SET}, 5120
        s_add_u32 s71, s71, s{T0}
        s_mov_b32 s67, 20544
        v_mov_b32 v56, s96
        v_mad_u32_u24 v56, v1, s67, v56
        v_add_u32 v57, s97, v56
        v_cmp_eq_u32 vcc, 0, v1
        v_cndmask_b32 v56, v56, v57, vcc""")}
    a.lgall()
    a.dstamp("st", 4)
    XRB = (64, 80); TBB = (96, 112); EOB = (128, 144); AC = 160; GS = 192
    nxt = n0
    for c in range(12):
        rd = []
        if c < 10:
            if c >= 1: a.dstamp("bar", c)
            a.vmwait(f"x{c}")
            if c >= 1: a.dstamp("bar2", c)
            if c < 4: a.dstamp("st", 5 + c)
            a("s_barrier")
            if c == 0: a.stamp(1)
            slot = c % 5
            XR = XRB[c % 2]
            for s in range(4):
                g = []
                if slot == 4: g.append(f"v_add_u32 v{XA+s}, 16384, v{XA+s}")
                g.append(f"ds_read_b128 v[{XR+4*s}:{XR+4*s+3}], v{XA+s} offset:{min(slot,3)*16384}")
                if slot == 4: g.append(f"v_subrev_u32 v{XA+s}, 16384, v{XA+s}")
                rd.append(g)
        if 1 <= c <= 10:
            TB = TBB[(c - 1) % 2]
            for ty in range(4):
                rd.append([f"ds_read_b128 v[{TB+4*ty}:{TB+4*ty+3}], v{VB} offset:{(c-1)*4096 + ty*1024}"])
        todo = []
        while nxt <= min(c + 4, 9) and len(todo) < 2: todo.append(nxt); nxt += 1
        for cc in todo:
            for e in range(2): rd.append([lambda cc=cc, e=e: xd(cc, e)])
        if c == 6:
            rd.append([lambda: tag_issue(a, 4, 5)])
            rd.append([lambda: a(f"buffer_load_dword v0, v56, s[{SW}:{SW+3}], 0 offen", tag="pf")])
        if c == 8: rd.append([lambda: rec_issue(a, 16, 20)])

        mf = []; va = []
        if c >= 2:
            EO, TB = EOB[c % 2], TBB[c % 2]
            for t in range(2):
                for ty in range(4):
                    acc = AC + 8*ty + 4*t; xs = EO + 8*t + 4*(ty // 2)
                    mf.append(f"v_mfma_f32_16x16x32_bf16 v[{acc}:{acc+3}], v[{xs}:{xs+3}], v[{TB+4*ty}:{TB+4*ty+3}], " + ("0" if c == 2 else f"v[{acc}:{acc+3}]"))
        if 1 <= c <= 10:
            XR, EO = XRB[(c - 1) % 2], EOB[(c - 1) % 2]
            for t in range(2):
                for ks in range(2):
                    for r in range(2):
                        lo = XR + 8*t + 4*ks + 2*r
                        va.append(f"v_perm_b32 v{EO+8*t+2*ks+r}, v{lo+1}, v{lo}, v{SE}")
                        va.append(f"v_perm_b32 v{EO+8*t+4+2*ks+r}, v{lo+1}, v{lo}, v{SO}")
        va += f1parts.get(c, [])
        n = max(len(mf), 1)
        for i in range(n):
            if mf: a(mf[i])
            for grp in (rd[i:i+1] if i < n - 1 else rd[i:]):
                for x in grp: x() if callable(x) else a(x)
            for x in va[i*len(va)//n:(i+1)*len(va)//n]: a(x)
        run(a, wsc.get(c, []))
        if c == 10:
            a(f"""s_lshl_b32 s{T0}, s{S_V}, 11
            s_add_u32 s{T0}, s{T0}, {EXF}
            v_lshl_add_u32 v18, v1, 4, s{T0}
            ds_write_b128 v18, v[{FO}:{FO+3}]
            ds_write_b128 v18, v[{FO+4}:{FO+7}] offset:1024
            v_xor_b32 v18, 8192, v18
            s_lshl_b32 s{T0}, s{S_V}, 7
            s_add_u32 s{T0}, s{T0}, {EXS}
            v_and_b32 v17, 31, v1
            v_lshl_add_u32 v17, v17, 2, s{T0}
            v_lshrrev_b32 v19, 4, v1
            v_lshl_add_u32 v19, v19, 4, s{T0}""")
        if c < 10: a.lgall()
        if c == 10:
            tag_check(a, 4, 5); a.lgall()
            a("s_barrier")
            a(f"ds_read_b128 v[48:51], v18", tag="f")
            a(f"ds_read_b128 v[52:55], v18 offset:1024", tag="f")
            rec_check(a, 16, 20)
            a(f"ds_write_b32 v17, v22")
            a(f"ds_read_b128 v[24:27], v19", tag="r")
            a(f"ds_read_b128 v[28:31], v19 offset:64", tag="r")
    a.stamp(2)
    a.lgwait("f")
    FRr, FIr, FNr = (40, 48), (44, 52), (56, 60)
    for u in range(2):
        for r in range(4): a(f"v_xor_b32 v{FNr[u]+r}, 0x80008000, v{FIr[u]+r}")
    a(f"""s_lshl_b32 s{T0}, s{S_V}, 12
    v_lshrrev_b32 v14, 4, v1
    v_lshlrev_b32 v14, 7, v14
    v_and_b32 v15, 15, v1
    v_lshl_add_u32 v14, v15, 2, v14
    v_add_u32 v14, s{T0}, v14
    s_lshl_b32 s{T1}, s{S_SET}, 9
    v_add_u32 v14, s{T1}, v14
    v_xor_b32 v13, 512, v14
    v_lshl_add_u32 v15, v1, 4, s{T0}
    v_lshrrev_b32 v16, 2, v1
    v_mul_u32_u24 v16, 163840, v16
    v_and_b32 v17, 3, v1
    v_lshl_add_u32 v16, v17, 4, v16
    s_lshl_b32 s{T0}, s{S_LA}, 14
    s_lshl_b32 s{T1}, s{S_LC}, 6
    s_add_u32 s{T0}, s{T0}, s{T1}
    s_add_u32 s{T0}, s{T0}, {WS_T}""")
    a.lgwait("r")
    for i in range(8):
        er, ei, orr, oi, rho = AC + i, AC + 8 + i, AC + 16 + i, AC + 24 + i, 24 + i
        a(f"""v_mul_f32 v20, v{orr}, v{rho}
        v_mul_f32 v21, v{oi}, v{rho}
        v_fma_f32 v{oi}, -v{er}, v{rho}, v20
        v_fma_f32 v{er}, v{er}, v{rho}, v20
        v_fma_f32 v{orr}, -v{ei}, v{rho}, v21
        v_fma_f32 v{ei}, v{ei}, v{rho}, v21""")
    a(f"s_cmp_lg_u32 s{S_LA}, 0")
    a("s_cbranch_scc1 L_dnsp")
    for i in range(8):
        a(f"v_cndmask_b32 v{AC+i}, v{AC+i}, v{AC+16+i}, s[74:75]")
        a(f"v_cndmask_b32 v{AC+16+i}, v{AC+16+i}, 0, s[74:75]")
    a.label("L_dnsp")
    XB = 64; OUT = 80
    def o(sgn, cc, u): return OUT + 16*sgn + 8*cc + 4*u
    for sgn in range(2):
        for ty in (2*sgn, 2*sgn + 1):
            for r in range(4):
                a(f"v_cvt_pk_bf16_f32 v{XB+4*ty+r}, v{AC+8*ty+2*r}, v{AC+8*ty+2*r+1}")
        xr, xi = XB + 8*sgn, XB + 8*sgn + 4
        for u in range(2):
            a(f"v_mfma_f32_16x16x32_bf16 v[{o(sgn,0,u)}:{o(sgn,0,u)+3}], v[{FRr[u]}:{FRr[u]+3}], v[{xr}:{xr+3}], 0")
            a(f"v_mfma_f32_16x16x32_bf16 v[{o(sgn,1,u)}:{o(sgn,1,u)+3}], v[{FIr[u]}:{FIr[u]+3}], v[{xr}:{xr+3}], 0")
        for u in range(2):
            a(f"v_mfma_f32_16x16x32_bf16 v[{o(sgn,0,u)}:{o(sgn,0,u)+3}], v[{FNr[u]}:{FNr[u]+3}], v[{xi}:{xi+3}], v[{o(sgn,0,u)}:{o(sgn,0,u)+3}]")
            a(f"v_mfma_f32_16x16x32_bf16 v[{o(sgn,1,u)}:{o(sgn,1,u)+3}], v[{FRr[u]}:{FRr[u]+3}], v[{xi}:{xi+3}], v[{o(sgn,1,u)}:{o(sgn,1,u)+3}]")
    for sgn in range(2):
        for cc in range(2):
            it = 2*sgn + cc
            for u in range(2):
                r = o(sgn, cc, u)
                a(f"v_cvt_pk_bf16_f32 v{r}, v{r}, v{r+1}")
                a(f"v_cvt_pk_bf16_f32 v{r+1}, v{r+2}, v{r+3}")
                a(f"ds_write_b32 v{14-u}, v{r} offset:{it*1024}")
                a(f"ds_write_b32 v{14-u}, v{r+1} offset:{it*1024+64}")
            a(f"ds_read_b128 v[{128+4*it}:{131+4*it}], v15 offset:{it*1024}", tag=f"r{it}")
    for it in range(4):
        a.lgwait(f"r{it}")
        a(f"s_add_u32 s{T1}, s{T0}, {it*4096}")
        a(f"buffer_store_dwordx4 v[{128+4*it}:{131+4*it}], v16, s[{SS}:{SS+3}], s{T1} offen {ST}", tag="T")
    a.stamp(3); a.dstamp("fft", 1)
    a(f"""s_lshl_b32 s{S_LA}, s{S_IDX}, 4
    s_add_u32 s{S_LA}, s{S_LA}, s{S_RB}
    s_lshl_b32 s{S_LA}, s{S_LA}, 7
    s_add_u32 s{S_LA}, s{S_LA}, {F_TF}""")
    WV = 48
    wv = []
    for i in range(5):
        wv += f"""v_add_u32 v56, {64*i}, v1
        v_mul_u32_u24 v57, 6554, v56
        v_lshrrev_b32 v57, 16, v57
        v_mul_u32_u24 v58, 10, v57
        v_sub_u32 v58, v56, v58
        v_cmp_eq_u32 vcc, 9, v58
        v_lshl_add_u32 v58, v58, 4, s69
        v_mad_u32_u24 v{WV+i}, v57, s67, v58
        v_mov_b32 v56, s68
        v_cndmask_b32 v56, 0, v56, vcc
        v_add_u32 v{WV+i}, v{WV+i}, v56""".split("\n")
    wv += f"""v_add_u32 v56, s70, v{WV}
    v_cmp_gt_u32 vcc, 10, v1
    v_cndmask_b32 v{WV}, v{WV}, v56, vcc""".split("\n")
    run(a, wv)
    def wd(i):
        a(f"s_add_u32 m0, s71, {LW + i*1024}")
        a(f"buffer_load_dwordx4 v{WV+i}, s[{SW}:{SW+3}], 0 offen lds", tag="w")

    for i in range(5): wd(i)
    a.dstamp("fft", 2)
    a.vmwait("T")
    a("s_barrier")
    a(f"s_cmp_lg_u32 s{S_V}, 4")
    a("s_cbranch_scc1 L_dnp")
    vm = list(a.vm); publish(a, S_LA, 5, 28, 29); a.vm = vm
    a.label("L_dnp")
    a.stamp(4)
    s_w, s_jp, s_g = S_W, S_RB, S_IDX
    PHI, MK = 63, 68
    a(f"""v_and_b32 v4, 1, v1
    v_bfe_u32 v5, v1, 1, 4
    s_lshl_b32 s{T0}, s{HG}, 4
    v_add_u32 v5, s{T0}, v5
    v_cmp_eq_u32 vcc, 0, v5
    s_cmp_eq_u32 s{SGN}, 0
    s_cselect_b64 s[{MK}:{MK+1}], vcc, 0
    v_sub_u32 v6, 320, v5
    s_cselect_b64 vcc, -1, 0
    v_cndmask_b32 v5, v6, v5, vcc
    v_subrev_u32 v5, s{F0}, v5
    v_lshlrev_b32 v5, 1, v5
    v_mov_b32 v6, s{s_jp}
    v_mov_b32 v7, s66
    v_cmp_eq_u32 vcc, 1, v4
    v_cndmask_b32 v6, v6, v7, vcc
    v_add_u32 v7, s{F0}, v6
    v_lshlrev_b32 v7, 1, v7
    v_and_b32 v7, 15, v7
    v_add_u32 v5, v5, v7
    v_lshlrev_b32 v6, 1, v6
    v_and_b32 v6, 15, v6
    v_add_u32 v6, 144, v6
    v_cndmask_b32 v5, v5, v6, s[{MK}:{MK+1}]
    v_mul_u32_u24 v4, {WPAR}, v4
    v_lshrrev_b32 v6, 5, v1
    v_mul_u32_u24 v6, 640, v6
    v_add3_u32 v15, v4, v5, v6
    s_mul_i32 s{T0}, s{S_SET}, 5120
    s_add_u32 s{T0}, s{T0}, {LW}
    v_add_u32 v15, s{T0}, v15""")
    C, SN = 16, 32
    a(f"""v_and_b32 v6, 31, v1
    s_lshl_b32 s{T0}, s{S_SET}, 5
    v_add_u32 v7, s{T0}, v6
    v_cvt_f32_u32 v7, v7
    v_mul_f32 v7, {fl(1/64)}, v7
    v_lshrrev_b32 v8, 5, v1
    v_lshl_add_u32 v8, v8, 2, s{T0}
    v_cvt_f32_u32 v8, v8
    v_mul_f32 v8, v8, v7
    v_and_b32 v6, 1, v6
    v_mov_b32 v9, 0x80008000
    v_cmp_eq_u32 vcc, 1, v6
    v_cndmask_b32 v9, 0, v9, vcc""")
    for u in range(2):
        for jj in range(8):
            b = 16*u + 8*(jj//4) + jj % 4
            if b: a(f"v_fmamk_f32 v{128+jj}, v7, {fl(b)}, v8")
            else: a(f"v_mov_b32 v{128+jj}, v8")
        for jj in range(8):
            a(f"v_sin_f32 v{136+jj}, v{128+jj}"); a(f"v_cos_f32 v{128+jj}, v{128+jj}")
        for r in range(4):
            a(f"v_cvt_pk_bf16_f32 v{C+4*u+r}, v{128+2*r}, v{129+2*r}")
            a(f"v_cvt_pk_bf16_f32 v{SN+4*u+r}, v{136+2*r}, v{137+2*r}")
    for base in (C, SN):
        for r in range(8): a(f"v_xor_b32 v{base+8+r}, v9, v{base+r}")
    a(f"""s_lshl_b32 s{T1}, s{s_w}, 13
    s_lshl_b32 s{T2}, s{S_SET}, 11
    v_lshrrev_b32 v6, 5, v1
    v_bfe_u32 v7, v1, 2, 2
    v_lshl_add_u32 v7, v6, 2, v7
    v_lshlrev_b32 v7, 6, v7
    v_bfe_u32 v8, v1, 4, 1
    v_lshl_add_u32 v7, v8, 5, v7
    v_and_b32 v8, 3, v1
    v_lshl_add_u32 v7, v8, 3, v7
    v_add_u32 v7, s{T1}, v7
    v_add_u32 v48, s{T2}, v7
    v_xor_b32 v49, 2048, v48
    s_lshr_b32 s{PHI}, s{s_jp}, 1
    s_and_b32 s{PHI}, s{PHI}, 2
    s_lshl_b32 s{T2}, s{S_SET}, 12
    s_add_u32 s{T1}, s{T1}, s{T2}
    v_and_b32 v7, 7, v1
    v_xor_b32 v7, v7, v6
    v_xor_b32 v7, s{PHI}, v7
    v_and_b32 v8, 31, v1
    v_lshlrev_b32 v8, 7, v8
    v_lshl_add_u32 v50, v7, 4, v8
    v_add_u32 v50, s{T1}, v50
    v_xor_b32 v51, 32, v50
    v_xor_b32 v52, 64, v50
    v_xor_b32 v53, 96, v50
    v_lshrrev_b32 v7, 3, v1
    v_and_b32 v8, 7, v1
    v_xor_b32 v54, v7, v8
    v_lshlrev_b32 v54, 4, v54
    v_lshl_add_u32 v54, v7, 7, v54
    v_add_u32 v54, s{T1}, v54
    v_mul_u32_u24 v55, 40960, v7
    v_lshl_add_u32 v55, v8, 4, v55
    v_lshlrev_b32 v56, 4, v1
    s_lshl_b32 s{T0}, s{S_V}, 12
    s_add_u32 s{T0}, s{T0}, 32768
    v_add_u32 v57, s{T0}, v56
    v_xor_b32 v58, 16384, v57
    v_lshlrev_b32 v59, 7, v1
    s_and_b32 s{T0}, s{s_g}, 1
    s_lshl_b32 s{T0}, s{T0}, 12
    s_cmp_eq_u32 s{s_g}, 4
    s_cselect_b32 s{T0}, 8192, s{T0}
    s_cselect_b32 s64, 0xffff, -1
    s_mov_b32 s65, 0
    s_add_u32 s{T0}, s{T0}, {F_TF}""")
    for i in range(5): a(f"v_mov_b32 v{VST+i}, 0")
    a(f"s_cmp_eq_u32 s{S_SET}, 0")
    a("s_cbranch_scc1 L_fnw")
    a(f"s_mov_b32 s60, s{T1}")
    st_setup(a)
    run(a, sp_base(S_HFA))
    a(f"s_mov_b32 s{T1}, s60")
    a.label("L_fnw")
    a.dstamp("fft", 3)
    a(f"s_cmp_lg_u32 s{S_V}, 0")
    a("s_cbranch_scc1 L_fnp")
    vm = list(a.vm); poll(a, 59, T0, 5, 64, 60); a.vm = vm
    a.label("L_fnp")
    a(f"""s_mul_i32 s{T0}, s{s_jp}, 20
    s_add_u32 s{T0}, s{T0}, s{HP}
    s_lshl_b32 s{T0}, s{T0}, 13
    s_lshl_b32 s{T2}, s{S_SET}, 12
    s_add_u32 s{T0}, s{T0}, s{T2}
    s_add_u32 s{T0}, s{T0}, {WS_T}
    s_mov_b32 m0, s{T1}""")
    a("s_barrier")
    a.stamp(5); a.dstamp("fft", 4)
    for i in range(4):
        a(f"buffer_load_dwordx4 v56, s[{SS}:{SS+3}], s{T0} offen offset:{i*1024} sc1 lds", tag="t")
    a(f"s_cmp_lg_u32 s{S_SET}, 0")
    a("s_cbranch_scc1 L_fnc")
    a("s_setprio 1")
    a.label("L_fnc")
    a.vmall()
    a("s_barrier")
    a.dstamp("fft", 5)
    BR, BI, NB, WR, WI, DR, DI = 64, 80, 128, 144, 160, 176, 192
    for u in range(4):
        for cc, b in ((0, BR), (1, BI)):
            a(f"ds_read_b64_tr_b16 v[{b+4*u}:{b+4*u+1}], v{48 + u//2} offset:{cc*4096 + (u%2)*1024}", tag=f"b{u}")
            a(f"ds_read_b64_tr_b16 v[{b+4*u+2}:{b+4*u+3}], v{48 + u//2} offset:{cc*4096 + (u%2)*1024 + 512}", tag=f"b{u}")
    def wread(r):
        q, tt = divmod(r, 4)
        off = (8*q + tt) * 160
        a(f"ds_read_u16_d16_hi v{WR+r}, v15 offset:{off}", tag=f"w{r}")
        a(f"ds_read_u16_d16_hi v{WI+r}, v15 offset:{off + 2*WPAR}", tag=f"w{r}")
    def M(d, A, B, first): return f"v_mfma_f32_32x32x16_bf16 v[{d}:{d+15}], v[{A}:{A+3}], v[{B}:{B+3}], " + ("0" if first else f"v[{d}:{d+15}]")
    for u in range(4):
        a.lgwait(f"b{u}")
        a(M(DR, C+4*u, BR+4*u, u == 0))
        for r in range(4): a(f"v_xor_b32 v{NB+4*u+r}, 0x80008000, v{BR+4*u+r}")
        a(M(DI, C+4*u, BI+4*u, u == 0)); wread(4*u); wread(4*u + 1)
        a(M(DR, SN+4*u, BI+4*u, False)); wread(4*u + 2); wread(4*u + 3)
        a(M(DI, SN+4*u, NB+4*u, False))
    a.dstamp("fft", 6)
    ZR, ZI, ZN = 64, 80, 208
    for g4 in range(4):
        rs = range(4*g4, 4*g4 + 4)
        a.lgwait(f"w{4*g4+3}")
        for i, r in enumerate(rs): a(f"v_mul_f32 v{6+i}, v{DR+r}, v{WR+r}")
        for i, r in enumerate(rs): a(f"v_mul_f32 v{DR+r}, v{DR+r}, v{WI+r}")
        for i, r in enumerate(rs): a(f"v_fma_f32 v{6+i}, -v{DI+r}, v{WI+r}, v{6+i}")
        for i, r in enumerate(rs): a(f"v_fmac_f32 v{DR+r}, v{DI+r}, v{WR+r}")
        for i, r in enumerate(rs): a(f"v_subrev_f32_dpp v{DI+r}, v{6+i}, v{DR+r} quad_perm:[1,0,3,2] row_mask:0xf bank_mask:0xf")
        for i, r in enumerate(rs): a(f"v_add_f32_dpp v{6+i}, v{DR+r}, v{6+i} quad_perm:[1,0,3,2] row_mask:0xf bank_mask:0xf")
        for k in range(2): a(f"v_cvt_pk_bf16_f32 v{ZI+2*g4+k}, v{DI+4*g4+2*k}, v{DI+4*g4+2*k+1}")
        for k in range(2): a(f"v_cvt_pk_bf16_f32 v{ZR+2*g4+k}, v{6+2*k}, v{7+2*k}")
        if g4 % 2:
            u = g4 // 2
            a(f"ds_write_b128 v57, v[{ZR+4*u}:{ZR+4*u+3}] offset:{u*1024}")
            a(f"ds_write_b128 v57, v[{ZI+4*u}:{ZI+4*u+3}] offset:{2048 + u*1024}")
    YR, YI = 144, 160
    def step3(u):
        a(M(YR, ZR+4*u, C+4*u, u == 0))
        for r in range(4): a(f"v_xor_b32 v{ZN+4*u+r}, 0x80008000, v{ZI+4*u+r}")
        a(M(YI, ZI+4*u, C+4*u, u == 0)); a(M(YI, ZR+4*u, SN+4*u, False)); a(M(YR, ZN+4*u, SN+4*u, False))
    step3(0)
    a.lgall()
    a("s_barrier")
    a.dstamp("fft", 7)
    for u in range(2):
        a(f"ds_read_b128 v[{ZR+8+4*u}:{ZR+11+4*u}], v58 offset:{u*1024}", tag=f"z{u}")
        a(f"ds_read_b128 v[{ZI+8+4*u}:{ZI+11+4*u}], v58 offset:{2048 + u*1024}", tag=f"z{u}")
    step3(1)
    for u in (2, 3):
        a.lgwait(f"z{u-2}"); step3(u)
    a(f"s_cmp_lg_u32 s{s_jp}, 0")
    a(f"s_cbranch_scc1 L_fns")
    a(f"""v_and_b32 v6, 31, v1
    s_lshl_b32 s{T0}, s{S_SET}, 5
    v_add_u32 v6, s{T0}, v6
    v_cvt_f32_u32 v6, v6
    v_mul_f32 v6, {fl(1/128)}, v6
    v_cos_f32 v7, v6
    v_sin_f32 v8, v6
    s_nop 7
    v_mul_f32 v7, 0.5, v7
    v_mul_f32 v8, 0.5, v8""")
    for pr in range(8):
        ar, br, ai, bi = YR+2*pr, YR+2*pr+1, YI+2*pr, YI+2*pr+1
        a(f"""v_sub_f32 v6, v{br}, v{ai}
        v_add_f32 v9, v{bi}, v{ar}
        v_sub_f32 v{ar}, v{ar}, v{bi}
        v_add_f32 v{ai}, v{ai}, v{br}
        v_mul_f32 v{br}, v7, v6
        v_mul_f32 v{bi}, v8, v6
        v_mul_f32 v{ar}, 0.5, v{ar}
        v_mul_f32 v{ai}, 0.5, v{ai}
        v_fma_f32 v{br}, -v8, v9, v{br}
        v_fmac_f32 v{bi}, v7, v9""")
    a.label("L_fns")
    a(f"""s_lshl_b32 s{T0}, s{HP}, 11
    s_lshl_b32 s{T1}, s{s_jp}, 7
    s_add_u32 s{T0}, s{T0}, s{T1}
    s_mul_i32 s{T1}, s{S_SET}, {32*40960}
    s_add_u32 s{T0}, s{T0}, s{T1}
    s_add_u32 s{T0}, s{T0}, {WS_Y}
    s_nop 7""")
    O = 176; k = 0
    for cc, src in ((1, YI), (0, YR)):
        for par in range(2):
            o = O + 4*k; k += 1
            for q in range(4): a(f"v_cvt_pk_bf16_f32 v{o+q}, v{src+4*q+par}, v{src+4*q+2+par}")
            a(f"ds_write_b128 v{50+2*par+cc}, v[{o}:{o+3}]")
    for it in range(4): a(f"ds_read_b128 v[{16+4*it}:{19+4*it}], v54 offset:{it*1024}", tag=f"r{it}")
    a.dstamp("fft", 8)
    for it in range(4):
        a.lgwait(f"r{it}")
        a(f"buffer_store_dwordx4 v[{16+4*it}:{19+4*it}], v55, s[{SS}:{SS+3}], s{T0} offen {ST}", tag="y")
        if it < 3: a(f"s_add_u32 s{T0}, s{T0}, {8*40960}")
    a(f"""s_mov_b32 s{S_LA}, {BIG}
    s_cmp_eq_u32 s{S_SET}, 0
    s_cbranch_scc1 L_fa""")
    sp_issue(a, L6, D6); sp_check(a, L6, D6, 2)
    st_issue(a, 0); st_issue(a, 1)
    a("s_branch L_CB")
    a.label("L_fa")
    a(f"""s_mul_i32 s{S_LB}, s{s_jp}, 5
    s_add_u32 s{S_LB}, s{S_LB}, s{s_g}
    s_lshl_b32 s{S_LB}, s{S_LB}, 7
    s_add_u32 s{S_LB}, s{S_LB}, {F_YF}
    s_cmp_eq_u32 s{S_V}, 0
    s_cselect_b32 s{S_LB}, s{S_LB}, {BIG}""")

YA, YB, LX, LH, LS = 40960, 122880, 81920, 92160, 102400
S_C8, S_KH, S_CB = 60, 61, 64
M_G0, M_G2 = 32, 34
FG, FL = 210, 211
GE, GO = 16, 56

def g_head(t):
    return lines(f"""v_add_u32 v{t+4}, s{S_CB}, v{FL}
    v_cvt_f32_u32 v{t+4}, v{t+4}
    v_add_f32 v{t+4}, 0.5, v{t+4}
    v_mul_f32 v{t+4}, {fl(1/640)}, v{t+4}
    v_and_b32 v{t}, 1, v{FG}
    v_lshlrev_b32 v{t}, 1, v{t}
    v_sub_u32 v{t+1}, 320, v{t}
    v_cmp_lt_u32 s[40:41], 31, v1
    v_cndmask_b32 v{t}, v{t}, v{t+1}, s[40:41]
    v_cvt_f32_u32 v{t}, v{t}
    v_mul_f32 v{t}, v{t}, v{t+4}
    v_sub_f32 v{t+1}, 0, v{t+4}
    v_cndmask_b32 v{t+1}, v{t+4}, v{t+1}, s[40:41]
    v_mul_f32 v{t+2}, {fl(16.0)}, v{t+4}
    v_cos_f32 v{t+2}, v{t+2}
    v_mul_f32 v{t+4}, {fl(160.0)}, v{t+4}
    v_sin_f32 v{t+5}, -v{t+4}
    v_cos_f32 v{t+4}, v{t+4}
    v_add_f32 v{t+2}, v{t+2}, v{t+2}
    v_sub_f32 v{t+3}, 0, v{t+2}""")
def g_seq(t, n, CV, SV, dst_e, dst_o, offs, special):
    o = []
    for m in range(2):
        for j in range(n):
            k = 16*m + offs[j]
            o.append(f"v_fmamk_f32 v{CV+n*m+j}, v{t+1}, {fl(k)}, v{t}" if k else f"v_mov_b32 v{CV+n*m+j}, v{t}")
        for j in range(n): o += [f"v_sin_f32 v{SV+n*m+j}, -v{CV+n*m+j}", f"v_cos_f32 v{CV+n*m+j}, v{CV+n*m+j}"]
    o += lines(f"""v_cndmask_b32 v{t+4}, v{CV}, v{t+4}, s[{special[0]}:{special[0]+1}]
    v_cndmask_b32 v{t+5}, v{SV}, v{t+5}, s[{special[0]}:{special[0]+1}]
    v_mul_f32 v{t}, 0.5, v{t+4}
    v_mul_f32 v{t+1}, 0.5, v{t+5}
    v_cndmask_b32 v{t+4}, v{t+4}, v{t}, s[{special[1]}:{special[1]+1}]
    v_cndmask_b32 v{t+5}, v{t+5}, v{t+1}, s[{special[1]}:{special[1]+1}]""")
    for m in range(10):
        u = n*(m % 2); sg = "-" if (m // 2) % 2 else ""
        for r in range(n // 2):
            c0 = t + 4 if (m == 0 and r == 0) else CV + u + 2*r
            s0 = t + 5 if (m == 0 and r == 0) else SV + u + 2*r
            o.append(f"v_cvt_pk_bf16_f32 v{dst_e(m, r)}, {sg}v{c0}, {sg}v{CV+u+2*r+1}")
            o.append(f"v_cvt_pk_bf16_f32 v{dst_o(m, r)}, {sg}v{s0}, {sg}v{SV+u+2*r+1}")
        if m + 2 < 10:
            M = t + 3 if m % 2 == 0 else t + 2
            for j in range(n):
                o += [f"v_fmac_f32 v{CV+u+j}, v{M}, v{CV+n-u+j}", f"v_fmac_f32 v{SV+u+j}, v{M}, v{SV+n-u+j}"]
    return o
def run(a, l):
    for x in l: x() if callable(x) else a(x)

def phase_c(a):
    a.label("L_CA")
    a.vm = []; a.lg = []
    a.stamp(6); a.dstamp("fft", 9); a.dstamp("p", 9)
    a("s_load_dwordx2 s[8:9], s[0:1], 56")
    publish(a, S_LA, 4, 6, 7)
    st_setup(a)
    HB_, WB_, AC2 = 16, 32, 80
    a(f"""v_lshrrev_b32 v{FG}, 4, v1
    v_and_b32 v{FL}, 15, v1
    v_lshrrev_b32 v2, 5, v1
    v_lshlrev_b32 v2, 4, v2
    v_bfe_u32 v3, v1, 4, 1
    v_lshl_add_u32 v2, v3, 2, v2
    v_bfe_u32 v3, v1, 2, 2
    v_add_u32 v2, v2, v3
    v_mul_u32_u24 v2, 160, v2
    v_and_b32 v3, 3, v1
    v_lshl_add_u32 v10, v3, 3, v2
    v_add_u32 v9, {SLOT[1]}, v10
    v_add_u32 v8, {SLOT[0]}, v10
    s_mul_i32 s{T0}, s{S_W}, 6144
    s_add_u32 s{T0}, s{T0}, 15360
    v_lshlrev_b32 v2, 9, v{FG}
    v_lshl_add_u32 v2, v{FL}, 4, v2
    v_add_u32 v13, s{T0}, v2
    v_add_u32 v12, {SLOT[1]}, v13
    v_add_u32 v11, {SLOT[0]}, v13
    s_lshr_b32 s{S_C8}, s2, 5
    s_and_b32 s{S_KH}, s2, 1""")
    def reads(n):
        s, i = divmod(n, 3); o = []
        for rt in range(2):
            b = HB_ + 8*(n % 2) + 4*rt
            o.append((f"ds_read_b128 v[{b}:{b+3}], v{11 + s % 3} offset:{i*2048 + rt*256}", f"H{n}"))
        for ct in range(5):
            b = WB_ + 20*(n % 2) + 4*ct
            o.append((f"ds_read_b64_tr_b16 v[{b}:{b+1}], v{8 + s % 3} offset:{i*5120 + ct*32}", f"W{n}_{ct}"))
            o.append((f"ds_read_b64_tr_b16 v[{b+2}:{b+3}], v{8 + s % 3} offset:{i*5120 + ct*32 + 8*160}", f"W{n}_{ct}"))
        return o
    B2 = 196; PV = 212
    fill = lines(f"""s_mul_i32 s36, s{S_C8}, 80
    s_lshl_b32 s37, s36, 1
    s_sub_u32 s37, 1120, s37
    v_lshl_add_u32 v2, v{FG}, 3, s36
    v_add_u32 v3, s37, v2
    v_cmp_gt_u32 vcc, 2, v{FG}
    v_cndmask_b32 v4, v3, v2, vcc
    s_mov_b32 s{SB}, s8
    s_mov_b32 s{SB+1}, s9
    s_mov_b32 s{SB+2}, 1280""")
    for ct in range(5):
        fill.append(lambda ct=ct: a(f"buffer_load_dwordx2 v[{B2+2*ct}:{B2+2*ct+1}], v{[2,2,4,3,3][ct]}, s[{SB}:{SB+3}], 0 offen offset:{32*ct}", tag="b2"))
    fill += lines(f"""s_lshr_b32 s38, s{S_W}, 1
    s_xor_b32 s38, s38, s{S_KH}
    s_and_b32 s39, s{S_W}, 1
    s_xor_b32 s40, s2, 1
    s_lshl_b32 s40, s40, 1
    s_add_u32 s40, s40, s39
    s_mul_i32 s41, s40, 6144
    s_add_u32 s41, s41, {WS_P}
    s_lshl_b32 s40, s40, 7
    s_add_u32 s40, s40, {F_PF}
    s_lshl_b32 s48, s2, 1
    s_add_u32 s48, s48, s39
    s_mul_i32 s49, s48, 6144
    s_mul_i32 s50, s38, 3072
    s_add_u32 s49, s49, s50
    s_add_u32 s49, s49, {WS_P}
    s_lshl_b32 s48, s48, 7
    s_add_u32 s48, s48, {F_PF}
    v_lshlrev_b32 v5, 4, v1
    s_mul_i32 s50, s39, 5120
    s_add_u32 s50, s50, {LH}
    v_add_u32 v14, s50, v5
    s_lshl_b32 s50, s39, 5
    s_lshl_b32 s51, s38, 4
    s_add_u32 s50, s50, s51
    v_add_u32 v15, s50, v{FL}
    v_mul_u32_u24 v208, 320, v15
    v_lshl_add_u32 v208, v{FG}, 4, v208
    v_add_u32 v208, {LS}, v208                  ; s image
    v_mul_u32_u24 v209, 160, v15
    v_lshl_add_u32 v209, v{FG}, 3, v209
    v_add_u32 v209, {LX}, v209""")
    a.lgall()
    a.dstamp("c", 1)
    a("s_barrier")
    a.stamp(7)
    for t, g in reads(0): a(t, tag=g)
    nf = 0
    for n in range(27):
        s, i = divmod(n, 3)
        nx = reads(n + 1) if n + 1 < 27 else []
        wl = []
        if n == 0: wl = st_w(a, 2)
        if i == 2 and s + 3 < 9: wl = st_w(a, s + 3)
        if i == 2 and n + 1 < 27:
            a.lgall()
            a.vmwait(f"st{s+1}")
            if s == 1: a.vmwait("b2")
            if s < 7: a.dstamp("c", s + 2)
            a("s_barrier")
            if s == 1: publish(a, S_LB, 5, 6, 7)
        a.lgwait(f"H{n}")
        for ct in range(5):
            a.lgwait(f"W{n}_{ct}")
            for rt in range(2):
                d = AC2 + (ct*2 + rt)*4; w = WB_ + 20*(n % 2) + 4*ct; h = HB_ + 8*(n % 2) + 4*rt
                a(f"v_mfma_f32_16x16x32_bf16 v[{d}:{d+3}], v[{w}:{w+3}], v[{h}:{h+3}], " + ("0" if n == 0 else f"v[{d}:{d+3}]"))
                k = 2*ct + rt
                for t, g in nx[(k*12)//10:((k+1)*12)//10]: a(t, tag=g)
                if wl and k in (1, 3, 5, 7): run(a, wl[k // 2])
        m = (n + 1) * len(fill) // 5 if n > 0 else 0
        run(a, fill[nf:m]); nf = max(nf, m)
    a.stamp(8); a.dstamp("c", 9)
    OV = 80
    a("s_cmp_eq_u32 s38, 0")
    a("s_cbranch_scc1 L_keep")
    for rt in range(2):
        for ct in range(5):
            d = AC2 + (ct*2 + rt)*4; o = 16 + 12*rt + 2*ct
            a(f"v_cvt_pk_bf16_f32 v{o}, v{d}, v{d+1}"); a(f"v_cvt_pk_bf16_f32 v{o+1}, v{d+2}, v{d+3}")
        for i in range(3):
            a(f"buffer_store_dwordx4 v[{16+12*rt+4*i}:{19+12*rt+4*i}], v5, s[{SS}:{SS+3}], s41 offen offset:{i*1024} {ST}", tag="P")
        if rt == 0: a("s_add_u32 s41, s41, 3072")
    a("s_barrier")
    for ct in range(5): a(f"ds_read_b128 v[{OV+8*ct}:{OV+8*ct+3}], v14 offset:{ct*1024}")
    a.vmall()
    publish(a, 40, 5, 6, 7)
    a("s_branch L_kept")
    a.label("L_keep")
    a("s_nop 7")
    for ct in range(5): a(f"ds_write_b128 v14, v[{AC2+8*ct+4}:{AC2+8*ct+7}] offset:{ct*1024}")
    a.lgall()
    a("s_barrier")
    a.label("L_kept")
    a.vm = []
    run(a, sp_base(48))
    sp_issue(a, [0], [10])
    a("v_mov_b32 v6, 0x3f80"); a("v_mov_b32 v7, 0x3f800000")
    a.lgall()
    for ct in range(5):
        for k in range(2):
            a(f"v_dot2c_f32_bf16 v{OV+8*ct+2*k}, v{B2+2*ct+k}, v6"); a(f"v_dot2c_f32_bf16 v{OV+8*ct+2*k+1}, v{B2+2*ct+k}, v7")
    a.dstamp("fin", 1)
    sp_check(a, [0], [10], 5)
    a.dstamp("fin", 2)
    for i in range(3): a(f"buffer_load_dwordx4 v[{PV+4*i}:{PV+4*i+3}], v5, s[{SS}:{SS+3}], s49 offen offset:{i*1024} sc1", tag=f"p{i}")
    a("s_barrier")
    SV_, XV, XFF, E = 16, 40, 56, 128
    for ct in range(5):
        a(f"ds_read_b128 v[{SV_+4*ct}:{SV_+4*ct+3}], v208 offset:{ct*64}", tag="s")
        a(f"ds_read_b64 v[{XV+2*ct}:{XV+2*ct+1}], v209 offset:{ct*32}", tag="x")
    a.lgwait("x")
    for i in range(10):
        a(f"v_lshlrev_b32 v{XFF+2*i}, 16, v{XV+i}"); a(f"v_and_b32 v{XFF+2*i+1}, 0xffff0000, v{XV+i}")
    def ov(i): return OV + 8*(i // 4) + i % 4
    for i in range(10):
        a.vmwait(f"p{i//4}")
        if i == 8: a.dstamp("fin", 3)
        a(f"v_dot2c_f32_bf16 v{ov(2*i)}, v{PV+i}, v6"); a(f"v_dot2c_f32_bf16 v{ov(2*i+1)}, v{PV+i}, v7")
    for i in range(20): a(f"v_mul_f32 v{E+i}, {fl(-LOG2E)}, v{ov(i)}")
    for i in range(20): a(f"v_exp_f32 v{E+i}, v{E+i}")
    for i in range(20): a(f"v_mul_f32 v{SV_+i}, v{SV_+i}, v{ov(i)}")
    for i in range(20): a(f"v_add_f32 v{E+i}, 1.0, v{E+i}")
    for i in range(20): a(f"v_rcp_f32 v{E+i}, v{E+i}")
    for ct in range(5):
        for i in range(4*ct, 4*ct + 4): a(f"v_fmac_f32 v{XFF+i}, v{SV_+i}, v{E+i}")
        a(f"v_cvt_pk_bf16_f32 v{XV+2*ct}, v{XFF+4*ct}, v{XFF+4*ct+1}")
        a(f"v_cvt_pk_bf16_f32 v{XV+2*ct+1}, v{XFF+4*ct+2}, v{XFF+4*ct+3}")
        a(f"ds_write_b64 v209, v[{XV+2*ct}:{XV+2*ct+1}] offset:{ct*32}")
    a.lgall()
    a.dstamp("fin", 4)
    a("s_barrier")
    a.stamp(9)
    a.dump(10, SS, S_V, 0, tmp=32)
    a("s_endpgm")

    a.label("L_CB")
    a.lg = []
    a.vm = ["st1"]*10
    a("s_load_dwordx2 s[4:5], s[0:1], 64")
    a("s_waitcnt vmcnt(10)")
    a.stamp(6); a.dstamp("c", 1); a.dstamp("fft", 9); a.dstamp("p", 9)
    a("s_barrier")
    a.stamp(7)
    publish(a, S_LA, 5, 28, 29)
    def bar(j):
        a.vmwait(f"st{j}")
        if j < 8: a.dstamp("c", j + 1)
        a("s_barrier")
    FX = 212; HF = 220
    t = 128
    setup = lines(f"""s_lshr_b32 s{S_C8}, s2, 5
    s_and_b32 s{S_KH}, s2, 1
    v_lshrrev_b32 v{FG}, 4, v1
    v_and_b32 v{FL}, 15, v1
    s_lshl_b32 s62, s{S_RB}, 2
    s_lshl_b32 s63, s{S_KH}, 1
    s_add_u32 s62, s62, s63
    s_mul_i32 s36, s{S_C8}, 80
    s_lshl_b32 s37, s36, 1
    s_sub_u32 s37, 1200, s37
    s_mul_i32 s38, s62, 1280
    s_add_u32 s36, s36, s38
    s_lshl_b32 s38, s{S_W}, 6
    s_mov_b32 s39, {64*1280}
    s_mul_i32 s{S_CB}, s{S_C8}, 40
    s_lshl_b32 s63, s{S_W}, 4
    s_add_u32 s{S_CB}, s{S_CB}, s63
    v_cmp_eq_u32 s[{M_G0}:{M_G0+1}], 0, v{FG}
    v_cmp_eq_u32 s[{M_G2}:{M_G2+1}], 2, v{FG}""")
    for e in range(3):
        setup += lines(f"""v_add_u32 v{t}, s38, v1
        v_add_u32 v{t}, {256*e}, v{t}
        v_mul_u32_u24 v{t+1}, 13108, v{t}
        v_lshrrev_b32 v{t+1}, 16, v{t+1}
        v_mul_u32_u24 v{t+2}, 5, v{t+1}
        v_sub_u32 v{t+2}, v{t}, v{t+2}
        v_bfe_u32 v{t+3}, v{t+1}, 1, 5
        v_mul_lo_u32 v{t+3}, v{t+3}, s39
        v_lshl_add_u32 v{t+3}, v{t+2}, 4, v{t+3}
        v_lshrrev_b32 v{t+2}, 6, v{t+1}
        v_mul_u32_u24 v{t+2}, 1280, v{t+2}
        v_and_b32 v{t+1}, 1, v{t+1}
        v_mul_u32_u24 v{t+1}, s37, v{t+1}
        v_add3_u32 v{t+3}, v{t+3}, v{t+1}, v{t+2}
        v_add_u32 v{FX+e}, s36, v{t+3}""")
    setup += lines(f"""v_mov_b32 v{t}, {BIG}
    v_cmp_gt_u32 vcc, 640, v{t}""".replace(f"v_cmp_gt_u32 vcc, 640, v{t}", f"s_cmp_lt_u32 s{S_W}, 2\n s_cselect_b64 vcc, -1, 0\n v_cndmask_b32 v{FX+2}, v{t}, v{FX+2}, vcc"))
    c = t + 4
    gen = setup + g_head(t) + g_seq(t, 8, 96, 112, lambda m, r: GE + 4*m + r, lambda m, r: GO + 4*m + r,
                                    [4*(j//2) + j % 2 for j in range(8)], (M_G0, M_G2))
    gen += lines(f"""v_lshlrev_b32 v{t}, 6, v{FL}
    v_add_u32 v{t}, s62, v{t}
    v_cvt_f32_u32 v{t}, v{t}
    v_mul_f32 v{t}, {fl(1/2048)}, v{t}
    v_lshlrev_b32 v{t+1}, 1, v{FG}
    v_cvt_f32_u32 v{t+1}, v{t+1}
    v_cvt_f32_u32 v{t+2}, v{FL}
    v_mul_f32 v{t+2}, 0.5, v{t+2}""")
    for y in range(2):
        for tt in range(2):
            if tt: gen.append(f"v_add_f32 v{t}, 0.5, v{t}")
            elif y: gen.append(f"v_add_f32 v{t}, {fl(1/2048 - 0.5)}, v{t}")
            gen.append(f"v_mul_f32 v{t+3}, v{t+1}, v{t}")
            for jj in range(8):
                jo = 8*(jj//4) + (jj % 4)//2
                if jj % 2: gen.append(f"v_add_f32 v{c+jj}, {fl(0.25)}, v{c+jj-1}")
                elif jo: gen.append(f"v_fmamk_f32 v{c+jj}, v{t}, {fl(jo)}, v{t+3}")
                else: gen.append(f"v_mov_b32 v{c+jj}, v{t+3}")
            gen.append(f"v_cndmask_b32 v{c+1}, v{c+1}, v{t+2}, s[{M_G0}:{M_G0+1}]")
            for jj in range(8): gen.append(f"v_cos_f32 v{c+jj}, v{c+jj}")
            for r in range(4): gen.append(f"v_cvt_pk_bf16_f32 v{HF+8*y+4*tt+r}, v{c+2*r}, v{c+2*r+1}")
    gen += lines(f"""v_mul_u32_u24 v6, 320, v{FL}
    s_lshl_b32 s38, s{S_W}, 6
    v_lshl_add_u32 v12, v{FG}, 4, s38
    v_add_u32 v6, {LS}, v6
    v_sub_u32 v13, 304, v12
    v_add_u32 v12, v6, v12
    v_add_u32 v13, v6, v13
    v_bfe_u32 v2, v1, 2, 2
    v_and_b32 v2, 2, v2
    v_and_b32 v3, 1, v{FG}
    v_xor_b32 v2, v2, v3
    v_lshlrev_b32 v2, 4, v2
    v_lshl_add_u32 v2, v{FL}, 6, v2
    v_lshrrev_b32 v3, 1, v{FG}
    v_lshl_add_u32 v2, v3, 11, v2
    v_add_u32 v4, {YB}, v2
    v_add_u32 v2, {YA}, v2
    v_xor_b32 v3, 32, v2
    v_xor_b32 v5, 32, v4""")
    ns = len(setup)
    cut = [0, ns] + [ns + (len(gen) - ns)*k//6 for k in range(1, 7)]
    def part(k): run(a, gen[cut[k]:cut[k+1]])
    def yload(y):
        a(f"""s_add_u32 s{T0}, s62, {y}
        s_mul_i32 s{T0}, s{T0}, 40960
        s_mul_i32 s{T1}, s{S_W}, 10240
        s_add_u32 s{T0}, s{T0}, s{T1}
        s_add_u32 s{T0}, s{T0}, {WS_Y}""")
        for i in range(10):
            if i % 4 == 0:
                a(f"s_add_u32 m0, s{T1}, {(YA, YB)[y] + i*1024}")
                if i: a(f"s_add_u32 s{T0}, s{T0}, 4096")
            a(f"buffer_load_dwordx4 v9, s[{SS}:{SS+3}], s{T0} offen offset:{(i%4)*1024} sc1 lds", tag=f"y{y}")
    st_h(a, 2)
    sp_issue(a, L6, D6)
    part(0)
    bar(1)
    sp_check(a, L6, D6, 3); st_h(a, 3); part(1)
    bar(2)
    st_h(a, 4)
    sp_issue(a, L6, D6); run(a, sp_base(S_HFB)); sp_issue(a, L6, D6A)
    part(2)
    bar(3)
    sp_check(a, L6, D6A, 4); run(a, sp_base(S_HFA)); sp_check(a, L6, D6, 4); st_h(a, 5); part(3)
    bar(4)
    st_h(a, 6)
    sp_issue(a, L6, D6); run(a, sp_base(S_HFB)); sp_issue(a, L6, D6A)
    part(4)
    bar(5)
    a(f"""s_mov_b64 s[{S_MSK}:{S_MSK+1}], 0xfffff
    s_mul_i32 s63, s{S_W}, 2560
    s_add_u32 s63, s63, {F_YF}
    v_lshlrev_b32 v7, 7, v1
    v_lshlrev_b32 v9, 4, v1""")
    poll_issue(a, 7, 63, S_MSK, 10)
    sp_check(a, L6, D6A, 5); run(a, sp_base(S_HFA)); sp_check(a, L6, D6, 5); st_h(a, 7); part(5)
    poll_check(a, 7, 63, 5, S_MSK, 10)
    bar(6)
    st_h(a, 8); yload(0)
    bar(7)
    yload(1); part(6)
    a.vmwait("y0")
    bar(8)
    for e in range(3):
        if e == 2: a(f"s_cmp_ge_u32 s{S_W}, 2"); a("s_cbranch_scc1 L_nx3")
        a(f"s_add_u32 m0, s7, {LX + e*4096}")
        a(f"buffer_load_dwordx4 v{FX+e}, s[{SX}:{SX+3}], 0 offen lds", tag="x")
    a.label("L_nx3")
    YF_ = 96; AC = 144
    def yread(y, m):
        for i in range(4):
            cc, rt = divmod(i, 2)
            b = YF_ + 16*(m % 2) + 4*i
            a(f"ds_read_b128 v[{b}:{b+3}], v{2+2*y+cc} offset:{m*4096 + rt*1024}", tag=f"y{y}_{m}_{i}")
    def idft(y):
        yread(y, 0); yread(y, 1)
        for m in range(10):
            for i in range(4):
                a.lgwait(f"y{y}_{m}_{i}")
                b = YF_ + 16*(m % 2) + 4*i; d = AC + 16*y + 4*i; g = (GE, GO)[i // 2] + 4*m
                a(f"v_mfma_f32_16x16x32_bf16 v[{d}:{d+3}], v[{b}:{b+3}], v[{g}:{g+3}], " + ("0" if m == 0 else f"v[{d}:{d+3}]"))
            if m + 2 < 10: yread(y, m + 2)
    idft(0)
    a.dstamp("fin", 1)
    a.vmall()
    a.stamp(8); a.dstamp("c", 9)
    a("s_barrier")
    a.dstamp("fin", 2)
    a(f"s_cmp_eq_u32 s{S_W}, 3")
    a("s_cbranch_scc1 L_nod")
    idft(1)
    SR = 176
    for y in range(2):
        for i in range(8):
            a(f"v_add_f32 v{96+i}, v{AC+16*y+i}, v{AC+16*y+8+i}")
            a(f"v_sub_f32 v{104+i}, v{AC+16*y+i}, v{AC+16*y+8+i}")
        for side in range(2):
            for r in range(4): a(f"v_cvt_pk_bf16_f32 v{112+8*y+4*side+r}, v{96+8*side+2*r}, v{97+8*side+2*r}")
        for side in range(2):
            for rt in range(2):
                d = SR + 16*y + (side*2 + rt)*4
                a(f"v_mfma_f32_16x16x32_bf16 v[{d}:{d+3}], v[{112+8*y+4*side}:{115+8*y+4*side}], v[{HF+8*y+4*rt}:{HF+8*y+4*rt+3}], 0")
    a(f"""s_cmp_eq_u32 s{S_W}, 2
    s_cselect_b32 exec_hi, 0, -1""")
    for y in range(2):
        for side in range(2):
            for rt in range(2):
                d = SR + 16*y + (side*2 + rt)*4; o = 16 + 4*((y*4 + side*2 + rt) % 8)
                for i in range(4): a(f"v_mul_f32 v{o+i}, {fl(2.0/(2048*640))}, v{d + (3 - i if side else i)}")
                a(f"ds_write_b128 v{12+side}, v[{o}:{o+3}] offset:{y*10240 + rt*5120}")
    a("s_mov_b64 exec, -1")
    a.label("L_nod")
    a(f"""v_add_u32 v9, s7, v9
    s_mov_b32 s6, 2621440
    s_mov_b32 s7, 0x00020000
    v_add_u32 v9, {LX}, v9
    s_waitcnt lgkmcnt(0)""")
    a.dstamp("fin", 3)
    a("s_barrier")
    a("s_barrier")
    a.dstamp("fin", 4)
    for e in range(3): a(f"ds_read_b128 v[{96+4*e}:{99+4*e}], v9 offset:{e*4096}", tag=f"o{e}")
    for e in range(3):
        a.lgwait(f"o{e}")
        a(f"buffer_store_dwordx4 v[{96+4*e}:{99+4*e}], v{FX+e}, s[4:7], 0 offen")
    if a.prof: a.vmall()
    a.dstamp("fin", 5)
    a.stamp(9)
    a.dump(10, SS, S_V, 0, tmp=32)

def fused(prof=False):
    a = Asm(); a.prof = prof
    prologue(a)
    a(f"""s_cmp_lt_u32 s{S_IDX}, 6
    s_cbranch_scc1 L_mlp
    s_sub_u32 s{S_IDX}, s{S_IDX}, 6
    s_cmp_lt_u32 s{S_IDX}, 2
    s_cbranch_scc1 L_dft
    s_add_u32 s{S_IDX}, s{S_IDX}, 4
    s_cmp_lt_u32 s{S_IDX}, 11
    s_cbranch_scc1 L_mlp
    s_sub_u32 s{S_IDX}, s{S_IDX}, 9
    s_branch L_dft""")
    mlp(a)
    dft(a)
    phase_c(a)
    a.label("L_end")
    a("s_endpgm")
    return a

if __name__ == "__main__":
    import sys
    from build import HEAD
    NAME = "recurrent_scan__spectral_gfnet__mixer_channel_mlp__prompt_kernel"
    a = fused("prof" in sys.argv)
    s = HEAD + "; @launch grid=(256,1,1) block=(512,1,1) lds=163840\n"
    s += '.amdgcn_target "amdgcn-amd-amdhsa--gfx950"\n.text\n'
    s += f".globl {NAME}\n.p2align 8\n.type {NAME},@function\n{NAME}:\n" + a.text()
    s += "CODE_END:\n    s_endpgm\n" + '.section .rodata,"a"\n' + kernel_desc(NAME, 256, sgpr=102)
    open(sys.argv[1], "w").write(s)
    print("nops", a.nops, "lines", len(a.lines))
```

```python
import re

TRANS = ("v_exp_f32", "v_log_f32", "v_rcp_f32", "v_rsq_f32", "v_sqrt_f32", "v_sin_f32", "v_cos_f32")

def _regs(tok):
    tok = tok.strip()
    neg = tok.lstrip('-')
    m = re.fullmatch(r"(?:abs\()?([vsa])(\d+)\)?", neg)
    if m: return [(m.group(1), int(m.group(2)))]
    m = re.fullmatch(r"([vsa])\[(\d+):(\d+)\]", neg)
    if m: return [(m.group(1), i) for i in range(int(m.group(2)), int(m.group(3)) + 1)]
    if neg == "vcc": return [('s', 106), ('s', 107)]
    if neg == "m0": return [('s', 124)]
    if neg == "exec": return [('s', 126), ('s', 127)]
    return []

class Ins:
    __slots__ = ("text", "op", "dst", "src", "kind", "passes", "srcA", "srcC", "dpp", "states")
    def __init__(self, text):
        self.text = text
        t = text.split(";")[0].strip()
        parts = t.split(None, 1)
        self.op = parts[0]
        ops = []
        if len(parts) > 1:
            cur = ""; depth = 0
            for ch in parts[1]:
                if ch == '[': depth += 1
                if ch == ']': depth -= 1
                if ch == ',' and depth == 0: ops.append(cur); cur = ""
                else: cur += ch
            ops.append(cur)
        ops = [o.strip() for o in ops]
        if ops:
            last = ops[-1].split()
            ops[-1] = last[0] if last else ""
        op = self.op
        self.dpp = ("dpp" in op) or ("quad_perm" in t) or ("row_" in t and op.startswith("v_"))
        self.passes = 0; self.srcA = []; self.srcC = []; self.states = 1
        self.dst = []; self.src = []
        if op == "s_nop":
            self.kind = "nop"; self.states = int(ops[0], 0) + 1
        elif op.startswith("v_mfma"):
            self.kind = "mfma"
            self.passes = 8 if "32x32x16" in op else (4 if "16x16x32" in op else 2)
            self.dst = _regs(ops[0]); self.srcA = _regs(ops[1]) + _regs(ops[2]); self.srcC = _regs(ops[3])
            self.src = self.srcA + self.srcC
        elif op.startswith("v_"):
            self.kind = "valu"
            if op.startswith("v_cmp"):
                self.dst = _regs(ops[0]); self.src = sum((_regs(o) for o in ops[1:]), [])
            elif op.startswith("v_permlane") :
                self.dst = _regs(ops[0]) + _regs(ops[1]); self.src = list(self.dst)
            elif op.startswith("v_readfirstlane") or op.startswith("v_readlane"):
                self.dst = _regs(ops[0]); self.src = sum((_regs(o) for o in ops[1:]), [])
            else:
                self.dst = _regs(ops[0]); self.src = sum((_regs(o) for o in ops[1:]), [])
                if "_co_" in op:
                    self.dst += _regs(ops[1]); self.src = sum((_regs(o) for o in ops[2:]), [])
                if op.startswith(("v_fmac", "v_dot2c", "v_writelane", "v_pk_fmac")): self.src += self.dst
                if op.startswith("v_cndmask") and len(ops) == 3: self.src += _regs("vcc")
        elif op.startswith(("buffer_", "global_", "flat_")):
            self.kind = "vmem"
            alls = sum((_regs(o) for o in ops), [])
            if "load" in op and " lds" not in t and "_lds_" not in op:
                self.dst = _regs(ops[0]); self.src = sum((_regs(o) for o in ops[1:]), [])
            else:
                self.src = alls
                if " lds" in t or "_lds_" in op: self.src += _regs("m0")
            if "atomic" in op and "sc0" in t: self.dst = _regs(ops[0])
        elif op.startswith("ds_"):
            self.kind = "ds"
            if op.startswith(("ds_read", "ds_bpermute", "ds_permute", "ds_swizzle")):
                self.dst = _regs(ops[0]); self.src = sum((_regs(o) for o in ops[1:]), [])
            else:
                self.src = sum((_regs(o) for o in ops), [])
        elif op.startswith("s_"):
            self.kind = "salu"
            if op.startswith(("s_cmp", "s_cbranch", "s_branch", "s_waitcnt", "s_barrier", "s_endpgm", "s_setprio", "s_sleep")):
                self.src = sum((_regs(o) for o in ops), [])
            else:
                self.dst = _regs(ops[0]) if ops else []
                self.src = sum((_regs(o) for o in ops[1:]), [])
        else:
            self.kind = "other"

def need(p, c):
    n = 0
    pd = set(p.dst)
    if p.kind == "valu":
        vd = {r for r in pd if r[0] in "va"}
        sd = {r for r in pd if r[0] == 's'}
        isdot = p.op.startswith("v_dot")
        if c.kind == "mfma" and vd & set(c.src): n = max(n, 3 if isdot else 2)
        if c.kind == "valu":
            if (c.dpp or c.op.startswith("v_permlane")) and vd & set(c.src): n = max(n, 2)
            if c.op.startswith(("v_readfirstlane", "v_readlane")) and vd & set(c.src): n = max(n, 1)
            if p.op.startswith(TRANS) and not c.op.startswith(TRANS) and vd & set(c.src): n = max(n, 1)
            if sd & set(c.src): n = max(n, 4 if c.op.startswith(("v_readlane", "v_writelane")) else 2)
            if isdot and (vd & (set(c.src) | set(c.dst))):
                same_c = (c.op == p.op and not (vd & set(c.src[:len(c.src) - len(c.dst)])))
                if not same_c: n = max(n, 3)
            if ("sdwa" in p.op or "op_sel" in p.text) and vd & set(c.src): n = max(n, 1)
        if isdot and c.kind in ("vmem", "ds") and vd & set(c.src): n = max(n, 3)
        if c.kind == "vmem" and sd & set(c.src): n = max(n, 5)
        if c.kind == "salu" and sd & set(c.src): n = max(n, 1)
        if ('s', 126) in sd and c.kind == "mfma": n = max(n, 4)
    if p.kind == "mfma":
        big = {2: 5, 4: 8, 8: 12}[p.passes]
        if c.kind == "mfma":
            if pd & set(c.srcA): n = max(n, big)
            if pd & set(c.srcC):
                if c.srcC == p.dst and c.passes == p.passes: n = max(n, 2 if p.passes == 2 else 0)
                else: n = max(n, {2: 4, 4: 6, 8: 10}[p.passes])
            elif pd & set(c.dst): n = max(n, {2: 4, 4: 6, 8: 10}[p.passes])
        elif c.kind in ("valu", "vmem", "ds"):
            if pd & (set(c.src) | set(c.dst)): n = max(n, big)
        if c.kind == "valu" and set(p.srcC) & set(c.dst): n = max(n, {2: 1, 4: 3, 8: 7}[p.passes])
    if p.kind == "salu" and ('s', 124) in pd and c.kind == "vmem" and ('s', 124) in c.src: n = max(n, 1)
    if p.kind == "vmem" and "store" in p.op and ("x4" in p.op or "x3" in p.op):
        data = set(_regs(p.text.split(None, 1)[1].split(",")[0])) if p.op.startswith("buffer") else set()
        if c.kind in ("valu", "mfma") and data & set(c.dst): n = max(n, 2)
        if c.kind in ("vmem", "ds") and data & set(c.dst): n = max(n, 1)
    return n

class Asm:
    def __init__(self):
        self.lines = []
        self.hist = []
        self.vm = []
        self.nops = 0
        import os
        self.detail = os.environ.get("DETAIL")
        self.skip = [k for k in os.environ.get("SKIP", "").split(",") if k]
        self.lg = []
    def raw(self, text):
        self.lines.append(text)
    def label(self, name):
        self.lines.append(name + ":")
    def c(self, text):
        self.lines.append("    ; " + text)
    def __call__(self, text, tag=None):
        for t in text.strip().split("\n"):
            t = t.strip()
            if not t or t.startswith(";"):
                continue
            if t.endswith(":"):
                self.label(t[:-1]); continue
            if any(t.startswith(k) or (k == "dma" and " lds" in t and t.startswith("buffer_load")) for k in self.skip):
                continue
            ins = Ins(t)
            dist = 0; req = 0
            for p in reversed(self.hist):
                req = max(req, need(p, ins) - dist)
                dist += p.states
                if dist >= 20: break
            while req > 0:
                k = min(req, 16)
                nop = Ins(f"s_nop {k-1}")
                self.lines.append(f"    s_nop {k-1}")
                self.hist.append(nop); self.nops += 1
                req -= k
            self.lines.append("    " + t)
            self.hist.append(ins)
            if len(self.hist) > 64: self.hist = self.hist[-32:]
            if ins.kind == "vmem":
                self.vm.append(tag)
            if ins.kind == "ds":
                self.lg.append(tag)
            if ins.op == "s_waitcnt":
                m = re.search(r"lgkmcnt\((\d+)\)", t)
                if m:
                    n = int(m.group(1)); self.lg = self.lg[max(0, len(self.lg) - n):] if n else []
                m = re.search(r"vmcnt\((\d+)\)", t)
                if m:
                    n = int(m.group(1)); self.vm = self.vm[max(0, len(self.vm) - n):] if n else []
    def fence(self):
        self("s_nop 15")
    def vmwait(self, tags):
        if not isinstance(tags, (list, tuple, set)): tags = [tags]
        last = -1
        for i, t in enumerate(self.vm):
            if t in tags: last = i
        if last < 0: return
        n = len(self.vm) - 1 - last
        assert n <= 63, n
        self(f"s_waitcnt vmcnt({n})")
    def lgwait(self, tags):
        if not isinstance(tags, (list, tuple, set)): tags = [tags]
        last = -1
        for i, t in enumerate(self.lg):
            if t in tags: last = i
        if last < 0: return
        n = len(self.lg) - 1 - last
        self(f"s_waitcnt lgkmcnt({min(n, 15)})")
    def lgall(self):
        self("s_waitcnt lgkmcnt(0)")
    def vmall(self):
        self("s_waitcnt vmcnt(0)")
    prof = False
    detail = None
    def stamp(self, i):
        if self.prof and (self.detail is None or i == 0): self._st(i)
    def dstamp(self, key, i):
        if self.prof and self.detail == key: self._st(i)
    def _st(self, i):
        if i < 7: self(f"s_memtime s[{76+2*i}:{77+2*i}]")
        else:
            self("s_memtime s[90:91]"); self.raw("    s_waitcnt lgkmcnt(0)"); self.lg = []
            self(f"s_mov_b32 s{77 + 2*(i-7)}, s90")
    def dump(self, n, srd, wave_sgpr, slot, tmp=90):
        if not self.prof: return
        if self.detail is not None: n = 10
        self(f"""s_memrealtime s[98:99]
        s_waitcnt lgkmcnt(0)
        s_lshl_b32 s96, s2, 3
        s_add_u32 s96, s96, s{wave_sgpr}
        s_lshl_b32 s96, s96, 6
        s_add_u32 s96, s96, {0x1C00000 + slot*0x40000}
        v_mov_b32 v{tmp+1}, 0""")
        for i in range(n):
            if i: self(f"s_sub_u32 s97, s{76+2*i if i < 7 else 77 + 2*(i-7)}, s76")
            self(f"v_mov_b32 v{tmp}, s{97 if i else 98}")
            self(f"buffer_store_dword v{tmp}, v{tmp+1}, s[{srd}:{srd+3}], s96 offen offset:{4*i}")
    def text(self):
        return "\n".join(self.lines) + "\n"

def kernel_desc(name, vgpr, sgpr=100, accum=None):
    accum = accum or ((vgpr + 3) // 4 * 4)
    return f""".p2align 6
.amdhsa_kernel {name}
  .amdhsa_next_free_vgpr {vgpr}
  .amdhsa_next_free_sgpr {sgpr}
  .amdhsa_accum_offset {accum}
  .amdhsa_group_segment_fixed_size 0
  .amdhsa_kernarg_size 88
  .amdhsa_user_sgpr_count 2
  .amdhsa_user_sgpr_kernarg_segment_ptr 1
  .amdhsa_system_sgpr_workgroup_id_x 1
.end_amdhsa_kernel
"""
def f2u(x):
    import struct
    return struct.unpack("<I", struct.pack("<f", x))[0]
def fl(x):
    return f"0x{f2u(x):08x}"
```

```python
from asmlib import *
import os
OPT = dict(tlb=0, tstride=19, pfw2=1, sleep=2, rot=1, ntx="", ntw="", n0=1, pf=1)
for kv in os.environ.get("OPT", "").split(","):
    if "=" in kv:
        k, v = kv.split("="); OPT[k] = int(v) if v.lstrip("-").isdigit() else v

WS_H, WS_T, WS_Y, WS_P, WS_F = 0, 0x800000, 0xC00000, 0x1000000, 0x1B00000
WS_S = WS_F + 0x80000
F_CF, WS_CS = WS_F + 0x90000, WS_F + 0xA0000
WS_SIZE = 0x2000000
F_EP, F_TF, F_YF, F_HB, F_HA, F_PF = WS_F, WS_F + 0x1000, WS_F + 0x4000, WS_F + 0x20000, WS_F + 0x40000, WS_F + 0x60000
F_RF = WS_F + 0x90000
WS_W2 = 0x1400000
ST = "sc1"
K0 = -2.0 * 0.7978845608028654 * 1.4426950408889634
K1C = K0 * 0.044715
LOG2E = 1.4426950408889634
BIG = 0x7f000000
SPIN = 40000

SG, SX, SW, SB, SS = 4, 12, 16, 20, 24
S_TAG = 3
S_V, S_RB, S_IDX, S_ROT = 28, 29, 30, 31
S_SX, S_SBO = 32, 42
S_W, S_SET = 52, 53
T0, T1, T2, T3 = 54, 55, 56, 57
S_LA, S_LB, S_LC = 58, 59, 60
S_PG, S_B1, S_NP, S_M4, S_M2, S_MSK = 61, 66, 71, 72, 73, 74
S_DBG = 100
XSLOT = 81920
S_PK = 42

def srd(a, base, ptr, size):
    a(f"""s_mov_b32 s{base}, s{ptr}
    s_and_b32 s{base+1}, s{ptr+1}, 0xffff
    s_mov_b32 s{base+2}, {size}
    s_mov_b32 s{base+3}, 0x00020000""")

def stats_math(a, vsum, vssq, t0, t1, r1, rr=None):
    a(f"""v_mul_f32 v{vsum}, {fl(1/640)}, v{vsum}
    v_mul_f32 v{vssq}, {fl(1/640)}, v{vssq}
    v_fma_f32 v{t0}, -v{vsum}, v{vsum}, v{vssq}
    v_max_f32 v{t0}, 0, v{t0}
    v_add_f32 v{t1}, {fl(1e-5)}, v{t0}
    v_rsq_f32 v{r1}, v{t1}""")
    if rr is not None:
        a(f"""v_mul_f32 v{t1}, v{r1}, v{r1}
        v_mul_f32 v{t1}, v{t1}, v{t0}
        v_add_f32 v{t1}, {fl(1e-5)}, v{t1}
        v_rsq_f32 v{t1}, v{t1}
        v_mul_f32 v{rr}, v{r1}, v{t1}""")

_uid = [0]
def uid(p):
    _uid[0] += 1
    return f"{p}_{_uid[0]}"

def tag_issue(a, v, vz):
    a(f"v_mov_b32 v{vz}, 0")
    a(f"global_load_dword v{v}, v{vz}, s[{S_DBG}:{S_DBG+1}] sc1", tag="tag")
def tag_check(a, v, vz):
    L = uid("Ltag")
    a.vmwait("tag"); vm = list(a.vm)
    a(f"""s_mov_b32 s{T3}, 0
    {L}:
    v_readfirstlane_b32 s{S_TAG}, v{v}
    s_add_u32 s{T3}, s{T3}, 1
    s_cmp_lg_u32 s{S_TAG}, 0
    s_cbranch_scc1 {L}d
    s_cmp_ge_u32 s{T3}, {SPIN}
    s_cbranch_scc1 {L}d
    s_sleep {OPT['sleep']}
    global_load_dword v{v}, v{vz}, s[{S_DBG}:{S_DBG+1}] sc1
    s_waitcnt vmcnt(0)
    s_branch {L}
    {L}d:
    s_and_b32 s{S_TAG}, s{S_TAG}, -8""")
    a.vm = vm
def pad_op(a, vz):
    a(f"v_mov_b32 v{vz}, 0")
    a(f"global_load_dword v0, v{vz}, s[{S_DBG}:{S_DBG+1}]", tag="pad")
def keep_vm(f):
    def g(a, *x, **k):
        vm = list(a.vm); f(a, *x, **k); a.vm = vm
    return g

def publish(a, soff, cnt, v, vz):
    a(f"""s_or_b32 s{T3}, s{S_TAG}, {cnt}
    v_mov_b32 v{v}, s{T3}
    v_mov_b32 v{vz}, 0
    s_mov_b64 exec, 1""")
    a(f"buffer_store_dword v{v}, v{vz}, s[{SS}:{SS+3}], s{soff} offen {ST}", tag="flag")
    a("s_mov_b64 exec, -1")

def poll_issue(a, voff, soff, smask, v, nload=1, stride=256):
    a(f"s_mov_b64 exec, s[{smask}:{smask+1}]")
    for i in range(nload):
        a(f"buffer_load_dword v{v+i}, v{voff}, s[{SS}:{SS+3}], s{soff} offen offset:{i*stride} sc1", tag="poll")
    a("s_mov_b64 exec, -1")
def poll_check(a, voff, soff, need, smask, v, nload=1, stride=256):
    L = uid("Lpoll")
    a.vmwait("poll")
    vm = list(a.vm)
    a(f"""s_mov_b32 s{T2}, 0
    s_add_u32 s{T3}, s{S_TAG}, {need}
    s_mov_b64 exec, s[{smask}:{smask+1}]
    {L}:""")
    for i in range(nload): a(f"v_subrev_u32 v{v+i}, s{T3}, v{v+i}")
    for i in range(1, nload): a(f"v_max_u32 v{v}, v{v}, v{v+i}")
    a(f"""v_cmp_lt_u32 vcc, {7-need}, v{v}
    s_add_u32 s{T2}, s{T2}, 1
    s_cbranch_vccz {L}d
    s_cmp_ge_u32 s{T2}, {SPIN}
    s_cbranch_scc1 {L}d
    s_sleep {OPT['sleep']}""")
    for i in range(nload):
        a(f"buffer_load_dword v{v+i}, v{voff}, s[{SS}:{SS+3}], s{soff} offen offset:{i*stride} sc1")
    a(f"""s_waitcnt vmcnt(0)
    s_branch {L}
    {L}d:
    s_mov_b64 exec, -1""")
    a.vm = vm
def poll(a, voff, soff, need, smask, v, nload=1, stride=256):
    poll_issue(a, voff, soff, smask, v, nload, stride); poll_check(a, voff, soff, need, smask, v, nload, stride)

SPB = 8
def sp_base(off):
    return [f"s_add_u32 s{SPB}, s{SS}, s{off}", f"s_addc_u32 s{SPB+1}, s{SS+1}, 0"]
def sp_issue(a, offs, dst):
    for o, d in zip(offs, dst): a(f"s_load_dword s{d}, s[{SPB}:{SPB+1}], {o} glc")
def sp_check(a, offs, dst, needs):
    L = uid("Lsp")
    a(f"""s_mov_b32 s{T2}, 0
    s_add_u32 s{T3}, s{S_TAG}, {needs}
    {L}:
    s_waitcnt lgkmcnt(0)""")
    for d in dst: a(f"s_sub_u32 s{d}, s{d}, s{T3}")
    for d in dst[1:]: a(f"s_max_u32 s{dst[0]}, s{dst[0]}, s{d}")
    a(f"""s_cmp_le_u32 s{dst[0]}, {7-needs}
    s_cbranch_scc1 {L}d
    s_add_u32 s{T2}, s{T2}, 1
    s_cmp_ge_u32 s{T2}, {SPIN}
    s_cbranch_scc1 {L}d
    s_sleep {OPT['sleep']}""")
    sp_issue(a, offs, dst)
    a(f"""s_branch {L}
    {L}d:""")
L6 = [128*i for i in range(6)]
D6 = [10, 11, 48, 49, 50, 51]
D6A = [66, 67, 68, 69, 70, 96]

VXO = 2
def prologue(a):
    a.stamp(0)
    R = OPT["rot"]
    ROT = {1: f"s_mul_i32 s{T3}, s{T3}, 3\n s_add_u32 s{S_ROT}, s{T3}, s{T1}",
           2: f"s_add_u32 s{T3}, s{T3}, s{T1}\n s_and_b32 s{T3}, s{T3}, 1\n s_mul_i32 s{S_ROT}, s{T3}, 5",
           4: f"s_add_u32 s{T3}, s{T3}, s{T1}\n s_and_b32 s{S_ROT}, s{T3}, 1",
           0: f"s_mov_b32 s{S_ROT}, 0"}[R]
    a(f"""s_load_dwordx2 s[{SX}:{SX+1}], s[0:1], 0
    s_load_dwordx2 s[{SW}:{SW+1}], s[0:1], 32
    s_load_dwordx2 s[{SS}:{SS+1}], s[0:1], 80
    s_load_dwordx2 s[{SB}:{SB+1}], s[0:1], 40
    s_load_dwordx2 s[{S_DBG}:{S_DBG+1}], s[0:1], 72
    s_load_dwordx2 s[8:9], s[0:1], 48
    s_cmp_ge_u32 s2, 256
    s_cbranch_scc1 L_end
    v_lshrrev_b32 v2, 6, v0
    v_and_b32 v1, 63, v0
    v_readfirstlane_b32 s{S_V}, v2""")
    if OPT["pf"]:
        a(f"""s_getpc_b64 s[96:97]
        L_pc:
        s_bfe_u32 s{T0}, s2, 0x30003
        s_cmp_eq_u32 s{S_V}, 1
        s_cselect_b32 s{T0}, 0, s{T0}
        s_sub_u32 s{T1}, s{S_V}, 1
        s_cmp_ge_u32 s{T1}, 2
        s_cbranch_scc1 L_nopf
        s_lshl_b32 s{T0}, s{T0}, 13
        v_lshl_add_u32 v9, v1, 7, s{T0}
        v_min_u32 v9, CODE_END - L_pc - 128, v9
        global_load_dword v0, v9, s[96:97]
        L_nopf:""")
    a(f"""s_mov_b32 s{SX+2}, 2621440
    s_mov_b32 s{SX+3}, 0x00020000
    s_mov_b32 s{SW+2}, 2211840
    s_mov_b32 s{SW+3}, 0x00020000
    s_and_b32 s{T0}, s2, 7
    s_lshr_b32 s{T1}, s2, 3
    s_lshr_b32 s{T2}, s{T0}, 1
    s_lshl_b32 s{T2}, s{T2}, 2
    s_and_b32 s{T3}, s{T1}, 3
    s_add_u32 s{S_RB}, s{T2}, s{T3}
    s_lshr_b32 s{T1}, s{T1}, 2
    s_and_b32 s{T0}, s{T0}, 1
    {ROT}
    s_lshl_b32 s{S_IDX}, s{T0}, 3
    s_add_u32 s{S_IDX}, s{S_IDX}, s{T1}
    s_cmp_ge_u32 s{S_ROT}, 10
    s_cselect_b32 s{T2}, 10, 0
    s_sub_u32 s{S_ROT}, s{S_ROT}, s{T2}
    s_lshl_b32 s{S_SX}, s{S_ROT}, 7
    s_and_b32 s{S_W}, s{S_V}, 3
    s_lshr_b32 s{S_SET}, s{S_V}, 2
    s_lshl_b32 s{S_M4}, s{S_W}, 12
    s_lshl_b32 s{S_M2}, s{S_W}, 11
    v_lshrrev_b32 v6, 3, v1
    v_mul_u32_u24 v6, {64*1280}, v6
    s_lshl_b32 s{T1}, s{S_RB}, 2
    s_add_u32 s{T0}, s{S_W}, s{T1}
    s_mul_i32 s{T0}, s{T0}, 1280
    v_add_u32 v6, s{T0}, v6
    v_and_b32 v7, 7, v1
    v_lshrrev_b32 v8, 4, v1
    v_xor_b32 v7, v7, v8
    v_lshl_add_u32 v{VXO}, v7, 4, v6
    v_xor_b32 v7, 4, v7
    v_lshl_add_u32 v{VXO+1}, v7, 4, v6
    v_add_u32 v{VXO+1}, {8*64*1280}, v{VXO+1}
    v_add_u32 v{VXO+2}, {16*64*1280}, v{VXO}
    v_add_u32 v{VXO+3}, {16*64*1280}, v{VXO+1}
    s_mov_b32 s{SB+2}, 3456
    s_mov_b32 s{SB+3}, 0x00020000
    s_mov_b32 s{SS+2}, {WS_SIZE}
    s_mov_b32 s{SS+3}, 0x00020000""")
    a.vm = []
def sx_table(a):
    for c in range(1, 10):
        a(f"""s_add_u32 s{S_SX+c}, s{S_SX+c-1}, 128
        s_cmp_eq_u32 s{S_SX+c}, 1280
        s_cselect_b32 s{S_SX+c}, 0, s{S_SX+c}""")
def rec_issue(a, voff, v):
    a(f"buffer_load_dwordx4 v[{v}:{v+3}], v{voff}, s[{SS}:{SS+3}], 0 offen sc1", tag="rec")
def rec_check(a, voff, v):
    L = uid("Lrec")
    a.vmwait("rec"); vm = list(a.vm)
    a(f"""s_mov_b32 s{T2}, 0
    s_or_b32 s{T3}, s{S_TAG}, 7
    {L}:
    v_cmp_ne_u32 vcc, s{T3}, v{v+3}
    s_add_u32 s{T2}, s{T2}, 1
    s_cbranch_vccz {L}d
    s_cmp_ge_u32 s{T2}, {SPIN}
    s_cbranch_scc1 {L}d
    s_sleep {OPT['sleep']}
    buffer_load_dwordx4 v[{v}:{v+3}], v{voff}, s[{SS}:{SS+3}], 0 offen sc1
    s_waitcnt vmcnt(0)
    s_branch {L}
    {L}d:""")
    a.vm = vm
def rec_addr(a, v):
    a(f"""s_lshl_b32 s{T0}, s{S_RB}, 11
    s_lshl_b32 s{T1}, s{S_W}, 9
    s_add_u32 s{T0}, s{T0}, s{T1}
    s_add_u32 s{T0}, s{T0}, {WS_S}
    v_and_b32 v{v}, 31, v1
    v_lshl_add_u32 v{v}, v{v}, 4, s{T0}""")

def x_dma(a, c):
    slot = c % 5
    for e in range(4):
        a(f"s_add_u32 m0, s{S_M4}, {XSLOT + slot*16384 + e*1024}")
        a(f"buffer_load_dwordx4 v{VXO+e}, s[{SX}:{SX+3}], s{S_SX+c} offen {OPT['ntx']} lds", tag=f"x{c}")

def panel_order(kh):
    def pidx(P):
        cg, r = divmod(P, 5)
        return r if cg % 2 == 0 else (4 if r == 0 else r - 1)
    ps = sorted(range(27*kh, 27*kh + 27), key=lambda P: (pidx(P), P))
    for n, c in ((9, 1), (15, 2), (21, 3)): assert all(pidx(P) <= c for P in ps[:n])
    return ps
SLOT = [122880, 81920, 0]
S_HFA, S_HFB = 98, 99
VST = 240
def st_setup(a):
    def pack(ps, lo): return sum(p << (6*i) for i, p in enumerate(ps[lo:lo+5]))
    t = [panel_order(0), panel_order(1)]
    for j in range(6): a(f"s_mov_b32 s{S_PK+j}, {pack(t[0], 5*j)}")
    a("s_bitcmp1_b32 s2, 0")
    for j in range(6): a(f"s_cselect_b32 s{S_PK+j}, {pack(t[1], 5*j)}, s{S_PK+j}")
    a(f"""s_cselect_b32 s{S_HFA}, 640, 0
    s_lshl_b32 s{T0}, s{S_RB}, 2
    s_add_u32 s{T0}, s{T0}, s{S_W}
    s_lshl_b32 s{T1}, s{T0}, 11
    s_add_u32 s{S_HFA}, s{S_HFA}, s{T1}
    s_add_u32 s{S_HFB}, s{S_HFA}, {F_HA}
    s_add_u32 s{S_HFA}, s{S_HFA}, {F_HB}
    s_mul_i32 s{T0}, s{T0}, {54*2048}
    v_lshlrev_b32 v245, 4, v1
    v_add_u32 v{VST}, s{T0}, v245
    s_lshr_b32 s{T0}, s2, 5
    s_mul_i32 s{T0}, s{T0}, {1728*160}
    s_add_u32 s{T0}, s{T0}, {WS_W2}
    v_add_u32 v245, s{T0}, v245""")
    for m in range(4):
        a(f"""s_add_u32 s{T0}, s{S_W}, {4*m}
        s_mul_i32 s{T1}, s{T0}, 52
        s_lshr_b32 s{T1}, s{T1}, 8
        s_mul_i32 s{T1}, s{T1}, 5
        s_sub_u32 s{T1}, s{T0}, s{T1}
        s_lshl_b32 s{T1}, s{T1}, 10""")
        if m == 3: a(f"s_cmp_eq_u32 s{T0}, 15"); a(f"s_cselect_b32 s{T1}, {BIG}, s{T1}")
        a(f"v_add_u32 v{VST+1+m}, s{T1}, v245")
    a(f"""s_mul_i32 s97, s{S_W}, 6144
    s_lshl_b32 s7, s{S_W}, 10
    s_add_u32 s6, s7, 12288
    s_cmp_eq_u32 s{S_W}, 3
    s_cselect_b32 s6, 39936, s6""")
def st_h(a, s):
    base = SLOT[s % 3]
    for i in range(3):
        n = 3*s + i
        a(f"s_bfe_u32 s{T3}, s{S_PK + n//5}, {(6 << 16) | (6*(n % 5))}")
        a(f"s_add_u32 m0, s97, {base + 15360 + i*2048}")
        a(f"s_lshl_b32 s{T3}, s{T3}, 11")
        for e in range(2):
            a(f"buffer_load_dwordx4 v{VST}, s[{SS}:{SS+3}], s{T3} offen offset:{e*1024} sc1 lds", tag=f"st{s}")
def st_w(a, s):
    base = SLOT[s % 3]; P = [T0, T1, T2]; o = []
    pre = []
    for i in range(3):
        n = 3*s + i
        pre += [f"s_bfe_u32 s{P[i]}, s{S_PK + n//5}, {(6 << 16) | (6*(n % 5))}", f"s_mul_i32 s{P[i]}, s{P[i]}, 5120"]
    for m in range(4):
        g = pre if m == 0 else []
        g = g + [f"s_add_u32 m0, s7, {base + m*4096}" if m < 3 else f"s_add_u32 m0, s6, {base}"]
        if m == 1: g += [f"s_cmp_eq_u32 s{S_W}, 0", f"s_cselect_b32 s{T3}, s{T0}, s{T1}"]
        if m == 2: g += [f"s_cmp_lt_u32 s{S_W}, 2", f"s_cselect_b32 s{T3}, s{T1}, s{T2}"]
        g.append(lambda m=m: a(f"buffer_load_dwordx4 v{VST+1+m}, s[{SS}:{SS+3}], s{[T0, T3, T3, T2][m]} offen sc1 lds", tag=f"st{s}"))
        o.append(g)
    return o
def st_issue(a, s):
    st_h(a, s)
    for g in st_w(a, s): run(a, g)

XF = 96; ACC = (64, 80, 48); RING = 32
CSP = 0; B1L = 2560; RCL = 3072; TAGL = 5120; HB = 8192; SGL = 40960; CSW = 73728
V_XA, V_TR, V_L16, V_HO, V_J16 = 2, 6, 14, 18, 19
V_IRR, V_C0, V_C1 = 15, 16, 17
V_TRD = 24

def common_mlp_regs(a):
    a(f"""v_and_b32 v23, 31, v1
    v_lshrrev_b32 v21, 5, v1
    v_lshlrev_b32 v{V_J16}, 4, v23
    v_lshlrev_b32 v{V_HO}, 4, v1
    v_add_u32 v{V_L16}, s{S_M4}, v{V_HO}""")
def handoff_write(a, acc, buf, qs=range(4)):
    for q in qs:
        a(f"ds_write_b128 v{V_L16}, v[{acc+4*q}:{acc+4*q+3}] offset:{HB + buf*16384 + q*1024}", tag="pub")
def row_consts(a, vm, vrr, XE, t):
    a(f"""v_rcp_f32 v{V_IRR}, v{vrr}
    v_mul_f32 v{V_C0}, {fl(K0)}, v{vrr}
    v_mul_f32 v{V_C1}, v{vrr}, v{vrr}
    v_mul_f32 v{V_C1}, v{V_C1}, v{vrr}
    v_mul_f32 v{V_C1}, {fl(K1C)}, v{V_C1}""")
    if XE is None: return
    a(f"""v_sub_f32 v{vm}, 0, v{vm}
    v_cvt_pk_bf16_f32 v{XE}, v{vm}, v{vm}
    v_cvt_pk_bf16_f32 v{t+1}, v{V_IRR}, v{V_IRR}
    v_and_b32 v{t}, 0xffff0000, v{XE}
    v_and_b32 v{t+1}, 0xffff0000, v{t+1}
    v_sub_f32 v{t}, v{vm}, v{t}
    v_sub_f32 v{t+1}, v{V_IRR}, v{t+1}
    v_cvt_pk_bf16_f32 v{XE+1}, v{t}, v{V_IRR}
    v_cvt_pk_bf16_f32 v{XE+2}, v{t+1}, 0
    v_cmp_gt_u32 vcc, 32, v1
    v_mov_b32 v{XE+3}, 0
    v_cndmask_b32 v{XE}, 0, v{XE}, vcc
    v_cndmask_b32 v{XE+1}, 0, v{XE+1}, vcc
    v_cndmask_b32 v{XE+2}, 0, v{XE+2}, vcc""")
def epi_step(a, pidx, q, acc, U):
    P = acc + 4*q; o = []
    for t in range(4): o.append(f"v_mul_f32 v{U+t}, v{P+t}, v{P+t}")
    for t in range(4): o.append(f"v_fma_f32 v{U+t}, v{U+t}, v{V_C1}, v{V_C0}")
    for t in range(4): o.append(f"v_mul_f32 v{U+t}, v{U+t}, v{P+t}")
    for t in range(4): o.append(f"v_exp_f32 v{U+t}, v{U+t}")
    for t in range(4): o.append(f"v_fma_f32 v{U+t}, v{U+t}, v{V_IRR}, v{V_IRR}")
    for t in range(4): o.append(f"v_rcp_f32 v{U+t}, v{U+t}")
    for t in range(4): o.append(f"v_mul_f32 v{P+t}, v{P+t}, v{U+t}")
    d = P - 2*(q % 2)
    o += [f"v_cvt_pk_bf16_f32 v{d}, v{P}, v{P+1}", f"v_cvt_pk_bf16_f32 v{d+1}, v{P+2}, v{P+3}"]
    if q % 2 == 1:
        o.append(lambda: a(f"buffer_store_dwordx4 v[{P-4}:{P-1}], v{V_HO}, s[{SS}:{SS+3}], s{S_PG+pidx} offen offset:{1024*(q//2)} {ST}", tag=f"h{pidx}"))
    return o
def lines(t): return [x.strip() for x in t.strip().split("\n")]
def run(a, l):
    for x in l: x() if callable(x) else a(x)
def hf_addr(a, dst, second):
    a(f"""s_lshl_b32 s{dst}, s{S_RB}, 2
    s_add_u32 s{dst}, s{dst}, s{S_W}
    s_lshl_b32 s{dst}, s{dst}, 4
    s_add_u32 s{dst}, s{dst}, s{S_IDX}
    s_lshl_b32 s{dst}, s{dst}, 7
    s_add_u32 s{dst}, s{dst}, {F_HA if second else F_HB}""")

def mlp(a):
    a.label("L_mlp")
    a(f"""s_mul_i32 s{T0}, s{S_IDX}, 5
    s_add_u32 s{T0}, s{T0}, 1
    s_lshr_b32 s{T0}, s{T0}, 1
    s_lshl_b32 s{S_LA}, s{T0}, 7
    s_cmp_eq_u32 s{S_SET}, 0
    s_cbranch_scc1 L_mlpA""")
    def mlp_scalars():
        a(f"""s_add_u32 s{S_LB}, s{S_LA}, 128
        s_add_u32 s{S_LC}, s{S_LA}, 256
        s_sub_u32 s{T0}, s{S_LA}, 64
        s_bitcmp1_b32 s{S_IDX}, 0
        s_cselect_b32 s{S_LC}, s{T0}, s{S_LC}
        s_cmp_eq_u32 s{S_IDX}, 10
        s_cselect_b32 s{S_NP}, 4, 5""")
    COLS = ((S_LA, 0), (S_LA, 64), (S_LB, 0), (S_LB, 64), (S_LC, 0))
    def panel_scalars(ps):
        a(f"""s_lshl_b32 s{T2}, s{S_RB}, 2
        s_add_u32 s{T2}, s{T2}, s{S_W}
        s_mul_i32 s{T2}, s{T2}, {54*2048}""")
        for p in ps:
            base, add = COLS[p]
            a(f"""s_add_u32 s{T0}, s{base}, {add}
            s_lshl_b32 s{S_PG+p}, s{T0}, 5
            s_add_u32 s{S_PG+p}, s{S_PG+p}, s{T2}""")
    VBP, VBS, VB1 = 6, 8, 9
    a(f"""v_lshrrev_b32 v{VBP}, 3, v1
    s_lshl_b32 s{T0}, s{S_W}, 4
    v_add_u32 v{VBP}, s{T0}, v{VBP}
    v_mul_u32_u24 v{VBP}, 3456, v{VBP}
    v_bfe_u32 v23, v1, 4, 1
    v_lshlrev_b32 v23, 2, v23
    v_and_b32 v24, 7, v1
    v_xor_b32 v23, v23, v24
    v_lshl_add_u32 v{VBP}, v23, 4, v{VBP}
    v_add_u32 v{VBP+1}, {8*3456}, v{VBP}""")
    a.dstamp("st", 1)
    a("s_waitcnt lgkmcnt(0)")
    a.dstamp("st", 2)
    def b_dma(c, region, sline, tag):
        a(f"s_mul_i32 s{T0}, s{S_SX+c}, 1728")
        a(f"s_add_u32 s{T0}, s{T0}, s{sline}")
        for e in range(2):
            a(f"s_add_u32 m0, s{S_M2}, {region + c*8192 + e*1024}")
            a(f"buffer_load_dwordx4 v{VBP+e}, s[{SW}:{SW+3}], s{T0} offen {OPT['ntw']} lds", tag=tag)
    def chunk(c):
        x_dma(a, c); b_dma(c, 0, S_LA, f"x{c}")
    n0 = OPT["n0"]
    chunk(0)
    a.dstamp("st", 3)
    sx_table(a)
    for c in range(1, n0): chunk(c)
    a(f"""v_lshrrev_b32 v{VBS}, 2, v1
    s_lshl_b32 s{T0}, s{S_W}, 4
    v_add_u32 v{VBS}, s{T0}, v{VBS}
    v_mul_u32_u24 v{VBS}, 3456, v{VBS}
    v_and_b32 v23, 3, v1
    v_lshl_add_u32 v{VBS}, v23, 4, v{VBS}""")
    mlp_scalars()
    panel_scalars(range(1, 5))
    common_mlp_regs(a)
    hf_addr(a, 31, 0)
    a(f"""s_mul_i32 s{T0}, s{S_RB}, 10
    s_lshl_b32 s{T1}, s{S_RB}, 3
    s_cmp_eq_u32 s{S_IDX}, 10
    s_cselect_b32 s{T0}, s{T1}, s{T0}
    s_cselect_b32 s{T2}, 20, 40
    s_add_u32 s{T2}, s{T2}, 60
    s_mul_i32 s{T1}, s{S_IDX}, 160
    s_add_u32 s{T0}, s{T0}, s{T1}
    s_mul_i32 s66, s{T0}, 1280
    s_mul_i32 s67, s{T0}, 160
    s_add_u32 s67, s67, {WS_W2}
    s_mov_b32 s48, s8
    s_mov_b32 s49, s9
    s_mov_b32 s50, 2211840
    s_mov_b32 s51, 0x00020000
    s_lshl_b32 s{T3}, s{S_W}, 6
    s_mov_b32 s{T1}, {1728*160}
    v_add_u32 v176, s{T3}, v1
    v_mov_b32 v180, {BIG}""")
    for i in range(4):
        a(f"""v_add_u32 v177, {256*i}, v176
        v_mul_u32_u24 v178, 5243, v177
        v_lshrrev_b32 v178, 19, v178
        v_mul_u32_u24 v179, 100, v178
        v_sub_u32 v177, v177, v179
        v_cmp_gt_u32 vcc, s{T2}, v177
        v_lshlrev_b32 v179, 4, v177
        v_mad_u32_u24 v179, v178, s{T1}, v179
        v_cndmask_b32 v{188+i}, v180, v179, vcc
        v_mul_u32_u24 v179, 205, v177
        v_lshrrev_b32 v179, 11, v179
        v_mul_u32_u24 v181, 10, v179
        v_sub_u32 v177, v177, v181
        v_mul_u32_u24 v178, 80, v178
        v_sub_u32 v181, 1120, v178
        v_cmp_gt_u32 vcc, 5, v177
        v_cndmask_b32 v178, v181, v178, vcc
        v_lshl_add_u32 v178, v177, 4, v178
        v_mad_u32_u24 v{184+i}, v179, s{T2+100}, v178""".replace(f"s{T2+100}", "v182"))
    a.lines.insert(len(a.lines) - 4*19, "    v_mov_b32 v182, 1280")
    a(f"""s_cmp_eq_u32 s{S_W}, 0
    s_cselect_b32 vcc_lo, -1, 0
    s_mov_b32 vcc_hi, 0
    v_cndmask_b32 v187, v180, v187, vcc
    v_cndmask_b32 v191, v180, v191, vcc""")
    for i in range(4): a(f"buffer_load_dwordx4 v[{160+4*i}:{163+4*i}], v{184+i}, s[48:51], s66 offen", tag="rp")
    a(f"""s_lshl_b32 s69, s{S_IDX}, 4
    s_add_u32 s69, s69, s{S_RB}
    s_lshl_b32 s69, s69, 7
    s_add_u32 s69, s69, {F_RF}
    s_cmp_eq_u32 s{S_W}, 0
    s_cselect_b32 s69, s69, {BIG}
    s_lshl_b32 s30, s{S_IDX}, 11
    s_add_u32 s30, s30, {F_RF}
    s_mov_b64 s[{S_MSK}:{S_MSK+1}], 0xffff
    v_lshlrev_b32 v11, 7, v1""")
    st_setup(a)
    run(a, sp_base(S_HFA))
    nxt = n0
    a.dstamp("st", 4)
    for c in range(11):
        if 1 <= c <= 9: a.dstamp("bar", c)
        if c < 10: a.vmwait(f"x{c}")
        if 1 <= c <= 9: a.dstamp("bar2", c)
        if c == 10: a.dstamp("p", 1)
        if c < 4: a.dstamp("st", 5 + c)
        a("s_barrier")
        if c == 0: a.stamp(1)
        k = 0
        while nxt <= min(c + 4, 9) and k < 2:
            chunk(nxt); nxt += 1; k += 1
        if c >= 6:
            m = c - 6
            b_dma(2*m, XSLOT, S_LB, f"p{m}"); b_dma(2*m + 1, XSLOT, S_LB, f"p{m}")
        if c == 1:
            for i in range(4): a(f"buffer_store_dwordx4 v[{160+4*i}:{163+4*i}], v{188+i}, s[{SS}:{SS+3}], s67 offen {ST}", tag="rq")
    a(f"s_mov_b32 s{S_LA}, s31")
    a(f"""s_lshl_b32 s{T0}, s{S_W}, 9
    v_add_u32 v22, s{T0}, v{V_J16}""")
    a.vmwait(["p0", "p1", "p2", "p3"])
    a.dstamp("p", 2); a("s_barrier"); a.dstamp("p", 3)
    a.stamp(2)
    AR = {1: 80, 2: 96, 3: 112, 4: 128}
    def rd_acc(p, qs=range(4)):
        for q in qs:
            a(f"ds_read_b128 v[{AR[p]+4*q}:{AR[p]+4*q+3}], v{V_L16} offset:{HB + (p % 2)*16384 + q*1024}", tag=f"acc{p}_{q}")
    def sg(c):
        a(f"s_mul_i32 s{T0}, s{S_SX+c}, 1728")
        a(f"s_add_u32 s{T0}, s{T0}, s{S_LC}")
        a(f"s_add_u32 m0, s{T1}, {SGL + c*4096}")
        a(f"buffer_load_dwordx4 v{VBS}, s[{SW}:{SW+3}], s{T0} offen {OPT['ntw']} lds", tag="sg")
    def step(p, q):
        a.lgwait(f"acc{p}_{q}"); run(a, epi_step(a, p, q, AR[p], 60))
    a(f"ds_read_b128 v[24:27], v22 offset:{RCL}", tag="acc1_0")
    rd_acc(1)
    a(f"s_lshr_b32 s{T1}, s{S_M2}, 1")
    sg(0); sg(1)
    a.lgwait("acc1_0")
    a(f"""v_mov_b32 v{V_IRR}, v25
    v_mov_b32 v{V_C0}, v26
    v_mov_b32 v{V_C1}, v27
    v_readfirstlane_b32 s{S_TAG}, v24""")
    publish(a, 69, 5, 28, 29)
    step(1, 0); sg(2); sg(3); step(1, 1)
    a.vmwait("p4"); a.lgall(); a.dstamp("p", 4); a("s_barrier")
    sg(4); sg(5); step(1, 2); sg(6); sg(7); step(1, 3); sg(8); sg(9)
    a.dstamp("p", 5); a("s_barrier")
    rd_acc(2)
    poll_issue(a, 11, 30, S_MSK, 10)
    step(2, 0); step(2, 1); step(2, 2)
    poll_check(a, 11, 30, 5, S_MSK, 10)
    a.vmwait(["sg", "h1"]); a.dstamp("p", 6); a("s_barrier")
    publish(a, S_LA, 2, 28, 29)
    step(2, 3)
    a.dstamp("p", 7); a("s_barrier"); a.stamp(3)
    rd_acc(3, (2, 3))
    step(3, 2); sp_issue(a, L6, D6); step(3, 3)
    a.vmwait("h2"); publish(a, S_LA, 3, 28, 29)
    sp_check(a, L6, D6, 2)
    st_issue(a, 0)
    a(f"s_cmp_eq_u32 s{S_NP}, 4")
    a("s_cbranch_scc1 L_mlpB4")
    a.dstamp("p", 8); a("s_barrier")
    a.stamp(4)
    rd_acc(4, (2, 3)); step(4, 2); step(4, 3)
    a.label("L_mlpB4")
    st_issue(a, 1)
    a("s_branch L_CB")

    a.label("L_mlpA")
    a.vm = []; a.lg = []
    a(f"""s_setprio 1
    s_memrealtime s[44:45]
    s_or_b32 s{T1}, s2, s{S_V}
    s_cmp_lg_u32 s{T1}, 0
    s_waitcnt lgkmcnt(0)
    s_cbranch_scc1 L_notag
    s_lshl_b32 s44, s44, 3
    s_or_b32 s44, s44, 1
    v_mov_b32 v9, 0
    v_mov_b32 v8, s44
    global_store_dword v9, v8, s[{S_DBG}:{S_DBG+1}] sc1
    L_notag:
    s_lshl_b32 s{T3}, s{S_W}, 2
    v_and_b32 v13, 15, v1
    v_mov_b32 v180, {BIG}
    s_lshl_b32 s{T1}, s{S_IDX}, 4
    s_add_u32 s{S_PG+2}, s{T1}, s{T3}
    v_lshrrev_b32 v10, 4, v1
    v_add_u32 v10, s{S_PG+2}, v10              ; R = 16*cg + 4*w + l/16
    v_and_b32 v11, 31, v10
    v_mul_u32_u24 v11, {64*1280}, v11
    v_bfe_u32 v12, v10, 5, 2
    s_lshl_b32 s{T1}, s{S_RB}, 2
    v_add_u32 v12, s{T1}, v12
    v_mul_u32_u24 v12, 1280, v12
    v_lshl_add_u32 v12, v13, 4, v12
    v_add_u32 v204, v11, v12
    s_cmp_ge_u32 s{S_IDX}, 8
    s_cselect_b32 s31, {BIG}, 0
    s_mul_i32 s42, s{S_RB}, 40
    s_mul_i32 s{T1}, s{S_W}, 10
    s_add_u32 s42, s42, s{T1}
    s_mul_i32 s42, s42, 3456
    s_mul_i32 s{T1}, s{S_IDX}, 320
    s_add_u32 s42, s42, s{T1}
    v_lshrrev_b32 v21, 5, v1
    v_and_b32 v23, 31, v1
    v_mul_u32_u24 v12, 3456, v21
    v_lshl_add_u32 v205, v23, 4, v12""")
    if OPT["tlb"]:
        st = OPT["tstride"]
        a(f"""s_load_dwordx4 s[32:35], s[0:1], 8
        s_load_dwordx4 s[36:39], s[0:1], 56
        s_bfe_u32 s{T0}, s2, 0x30003
        v_and_b32 v30, 7, v1
        v_lshlrev_b32 v31, {st}, v30
        s_lshl_b32 s{T0}, s{T0}, {st + 3}
        s_mov_b64 exec, 0xff
        buffer_load_dword v0, v31, s[{SS}:{SS+3}], s{T0} offen
        v_lshlrev_b32 v31, 18, v30
        v_min_u32 v30, {2048*642 - 4}, v31
        s_waitcnt lgkmcnt(0)
        global_load_dword v0, v30, s[32:33]
        global_load_dword v0, v30, s[34:35]
        global_load_dword v0, v31, s[38:39]
        global_load_dword v0, v31, s[8:9]
        v_add_u32 v31, {1 << 19}, v31
        global_load_dword v0, v31, s[38:39]
        v_mov_b32 v31, 0
        global_load_dword v0, v31, s[36:37]
        s_mov_b64 exec, -1""")
    a.vm = []
    mlp_scalars()
    panel_scalars([0, 3, 4])
    common_mlp_regs(a)
    a(f"""s_cmp_eq_u32 s{S_W}, 0
    s_cselect_b32 s{T0}, s{S_LA}, s{S_LB}
    s_cmp_ge_u32 s{S_W}, 2
    s_cselect_b32 s{T0}, s{S_LC}, s{T0}
    v_lshl_add_u32 v203, v1, 1, s{T0}""")
    a(f"""v_bfe_u32 v25, v1, 1, 3
    v_xor_b32 v25, v25, v21
    s_lshl_b32 s{T0}, s{S_W}, 5
    v_add_u32 v26, s{T0}, v23
    v_lshlrev_b32 v26, 7, v26
    v_lshl_add_u32 v26, v25, 4, v26
    v_add_u32 v{V_XA}, {XSLOT}, v26
    v_xor_b32 v{V_XA+1}, 32, v{V_XA}
    v_xor_b32 v{V_XA+2}, 64, v{V_XA}
    v_xor_b32 v{V_XA+3}, 96, v{V_XA}
    v_bfe_u32 v25, v1, 2, 2
    v_lshl_add_u32 v27, v21, 3, v25
    v_bfe_u32 v28, v1, 4, 1
    v_lshlrev_b32 v28, 5, v28
    v_and_b32 v29, 3, v1
    v_lshl_add_u32 v28, v29, 3, v28
    v_lshl_add_u32 v{V_TRD}, v27, 6, v28
    v_add_u32 v{V_TRD}, {SGL}, v{V_TRD}
    v_lshl_add_u32 v27, v27, 7, v28
    v_lshrrev_b32 v25, 1, v25
    v_lshl_add_u32 v{V_TR}, v25, 6, v27
    v_xor_b32 v{V_TR+1}, 64, v{V_TR}
    v_lshlrev_b32 v9, 1, v23
    v_mov_b32 v8, 0x05040100
    v_mov_b32 v200, 0x3f80
    v_mov_b32 v201, 0x3f800000
    v_mov_b32 v202, 0x3f803f80
    s_lshl_b32 s{T1}, s{S_IDX}, 4
    s_add_u32 s{T2}, s{T1}, s{S_RB}
    s_mul_i32 s{T2}, s{T2}, 896
    s_add_u32 s{T2}, s{T2}, {WS_CS}
    s_cmp_eq_u32 s{S_W}, 0
    s_cselect_b32 s{S_PG+1}, s{T2}, {BIG}
    s_lshl_b32 s{T0}, s{S_W}, 2
    s_mul_i32 s{S_PG+2}, s{S_PG+2}, 896
    s_add_u32 s{S_PG+2}, s{S_PG+2}, {WS_CS}
    s_and_b32 s{T1}, s{T1}, 16
    s_mul_i32 s{T1}, s{T1}, 128
    v_mul_u32_u24 v12, 48, v1
    v_add_u32 v12, s{T1}, v12""")
    for i in range(3):
        a(f"""v_add_u32 v{25+i}, {16*i}, v12
        v_subrev_u32 v28, 2560, v{25+i}
        v_min_u32 v{25+i}, v{25+i}, v28
        v_add_u32 v{25+i}, s{T0}, v{25+i}""")
    a(f"""s_lshl_b32 s{T0}, s{S_RB}, 11
    s_add_u32 s{T0}, s{T0}, {WS_S}
    s_add_u32 s{T0}, s{T0}, s31
    v_lshl_add_u32 v10, v10, 4, s{T0}
    v_cmp_eq_u32 vcc, 0, v13
    v_cndmask_b32 v16, v180, v10, vcc
    v_mul_u32_u24 v21, 12, v1
    v_add_u32 v21, {CSW}, v21
    s_mul_i32 s{T0}, s{S_W}, 640
    v_lshl_add_u32 v22, v1, 5, s{T0}
    v_add_u32 v22, {CSW}, v22
    s_lshl_b32 s{T0}, s{S_W}, 7
    v_lshl_add_u32 v23, v1, 1, s{T0}
    v_mov_b32 v10, 0
    v_mov_b32 v11, 0""")
    for i in range(8): a(f"v_mov_b32 v{248+i}, 0")
    hf_addr(a, S_LA, 1)
    rec_addr(a, 15)
    a.dstamp("st", 3)
    for it in range(5): a(f"buffer_load_dwordx4 v[{228+4*it}:{231+4*it}], v204, s[{SX}:{SX+3}], s31 offen offset:{256*it}", tag="sx")
    a("s_mov_b32 exec_lo, 0xfffff"); a("s_mov_b32 exec_hi, 0xfffff")
    for it in range(5):
        a(f"buffer_load_dwordx4 v[{208+4*it}:{211+4*it}], v205, s[{SW}:{SW+3}], s42 offen", tag="cx")
        if it < 4: a(f"s_add_u32 s42, s42, {2*3456}")
    a("s_mov_b64 exec, -1")
    a(f"buffer_load_ushort v20, v203, s[{SB}:{SB+3}], 0 offen", tag="b1")
    tag_issue(a, 13, 17)
    def job_cs():
        a.vmwait("cx")
        for r in range(20):
            a(f"v_dot2c_f32_bf16 v{248+2*(r%4)}, v{208+r}, v200"); a(f"v_dot2c_f32_bf16 v{249+2*(r%4)}, v{208+r}, v201")
        for i in range(8): a(f"v_mov_b32 v{192+i}, v{248+i}")
        for i in range(8): a(f"v_permlane32_swap_b32 v{192+i}, v{248+i}")
        for i in range(8): a(f"v_add_f32 v{248+i}, v{248+i}, v{192+i}")
        a("s_mov_b64 exec, 0xfffff")
        a("ds_write_b128 v22, v[248:251]", tag="cw"); a("ds_write_b128 v22, v[252:255] offset:16", tag="cw")
        a("s_mov_b64 exec, -1")
        a.lgwait("cw")
    def job_st():
        a.vmwait("sx")
        for r in range(20):
            a(f"v_dot2c_f32_bf16 v10, v{228+r}, v202"); a(f"v_dot2c_f32_bf16 v11, v{228+r}, v{228+r}")
        for sh in (8, 4, 2, 1):
            for r in (10, 11): a(f"v_add_f32_dpp v{r}, v{r}, v{r} row_ror:{sh} row_mask:0xf bank_mask:0xf")
        stats_math(a, 10, 11, 192, 193, 12, 11)
        tag_check(a, 13, 17)
        a(f"v_or_b32 v13, 7, v13")
        a(f"buffer_store_dwordx4 v[10:13], v16, s[{SS}:{SS+3}], 0 offen {ST}")
    CR = 240
    def sum4():
        for i in range(3):
            a(f"v_add_f32 v{CR+i}, v{CR+i}, v{CR+4+i}"); a(f"v_add_f32 v{CR+8+i}, v{CR+8+i}, v{CR+12+i}")
        for i in range(3): a(f"v_add_f32 v{CR+i}, v{CR+i}, v{CR+8+i}")
    def csi():
        for i in range(4): a(f"buffer_load_dwordx4 v[{CR+4*i}:{CR+3+4*i}], v{V_HO}, s[{SS}:{SS+3}], s{S_PG+2} offen offset:{896*i} sc1", tag="csi")
    def job_in():
        L = uid("Lcs")
        a.vmwait("csi"); vm = list(a.vm)
        a(f"""s_mov_b32 s{T2}, 0
        s_or_b32 s{T3}, s{S_TAG}, 7
        s_mov_b32 exec_hi, 0x3fffff
        {L}:
        v_xor_b32 v{CR+3}, s{T3}, v{CR+3}
        v_xor_b32 v{CR+7}, s{T3}, v{CR+7}
        v_xor_b32 v{CR+11}, s{T3}, v{CR+11}
        v_xor_b32 v{CR+15}, s{T3}, v{CR+15}
        v_or3_b32 v{CR+3}, v{CR+3}, v{CR+7}, v{CR+11}
        v_or_b32 v{CR+3}, v{CR+3}, v{CR+15}
        v_cmp_ne_u32 vcc, 0, v{CR+3}
        s_add_u32 s{T2}, s{T2}, 1
        s_cbranch_vccz {L}d
        s_cmp_ge_u32 s{T2}, {SPIN}
        s_cbranch_scc1 {L}d
        s_sleep {OPT['sleep']}""")
        csi()
        a(f"""s_waitcnt vmcnt(0)
        s_branch {L}
        {L}d:""")
        a.vm = vm
        sum4()
        for i in range(3):
            if i == 1: a("s_mov_b32 exec_hi, 0x1fffff")
            a(f"ds_write_b32 v{25+i}, v{CR+i} offset:{CSP}")
        a("s_mov_b64 exec, -1")
    def we_read(p, T, t):
        a(f"ds_read_b128 v[{T}:{T+3}], v{V_J16} offset:{CSP + 512*p}", tag=f"we{p}")
        a(f"ds_read_u16 v{t}, v9 offset:{B1L + 64*p}", tag=f"we{p}")
    def we_build(p, T, t):
        return [lambda: a.lgwait(f"we{p}")] + lines(f"""v_add_f32 v{T}, v{T}, v{T+1}
        v_add_f32 v{T+2}, v{T+2}, v{T+3}
        v_add_f32 v{T}, v{T}, v{T+2}
        v_cvt_pk_bf16_f32 v{T+1}, v{T}, v{T}
        v_and_b32 v{T+2}, 0xffff0000, v{T+1}
        v_sub_f32 v{T+2}, v{T}, v{T+2}
        v_cvt_pk_bf16_f32 v{T}, v{T}, v{T+2}
        v_perm_b32 v{T+1}, v{t}, v{T+1}, v8
        v_mov_b32 v{T+2}, v{t}
        v_mov_b32 v{T+3}, 0""")
    def X(c):
        slot = c % 5
        if slot == 4:
            for s in range(4): a(f"v_add_u32 v{V_XA+s}, 16384, v{V_XA+s}")
        for s in range(4):
            k = 4*c + s
            a(f"ds_read_b128 v[{XF+4*k}:{XF+4*k+3}], v{V_XA+s} offset:{min(slot,3)*16384}", tag=f"X{c}")
        if slot == 4 and c < 9:
            for s in range(4): a(f"v_subrev_u32 v{V_XA+s}, 16384, v{V_XA+s}")
    def R(k):
        if k == 32:
            a(f"v_add_u32 v{V_TR}, 65536, v{V_TR}"); a(f"v_add_u32 v{V_TR+1}, 65536, v{V_TR+1}")
        off = (k % 32) * 2048
        b = RING + 8*(k % 4)
        for hf in range(2):
            a(f"ds_read_b64_tr_b16 v[{b+4*hf}:{b+4*hf+1}], v{V_TR+hf} offset:{off}", tag=f"R{k}")
            a(f"ds_read_b64_tr_b16 v[{b+4*hf+2}:{b+4*hf+3}], v{V_TR+hf} offset:{off+512}", tag=f"R{k}")
    def MM(acc, A, B, src): a(f"v_mfma_f32_32x32x16_bf16 v[{acc}:{acc+15}], v[{A}:{A+3}], v[{B}:{B+3}], " + ("0" if src == 0 else f"v[{acc}:{acc+15}]"))
    XEA = 2
    a.dstamp("st", 4)
    a("s_barrier")
    a.stamp(1)
    X(0); R(0); R(1); R(2)
    a.lgwait("X0")
    for c in range(1, 11):
        if c <= 9: a.dstamp("bar", c); a.dstamp("bar2", c)
        if c == 10: a.dstamp("p", 1)
        a("s_barrier")
        if c <= 9: X(c)
        if c == 3:
            for i in range(4):
                for j in range(3): a(f"ds_read_b32 v{CR+4*i+j}, v21 offset:{i*640 + 4*j}", tag="co")
        if c == 10:
            we_read(1, 28, 26); we_read(0, 20, 25)
        for s in range(4):
            k = 4*(c - 1) + s
            a.lgwait(f"R{k}")
            b = RING + 8*s
            for hf in range(2): MM(ACC[hf], b + 4*hf, XF + 4*k, k)
            if k + 3 < 40: R(k + 3)
            if c == 1 and s == 3: job_st()
            if c == 2 and s == 3: job_cs()
            if c == 3 and s == 1:
                a.lgwait("co"); sum4()
                a(f"v_mov_b32 v{CR+3}, v13"); a("s_mov_b32 exec_hi, 0x3fffff")
                a(f"buffer_store_dwordx4 v[{CR}:{CR+3}], v{V_HO}, s[{SS}:{SS+3}], s{S_PG+1} offen {ST}")
                a("s_mov_b64 exec, -1")
            if c == 6 and s == 0:
                a("s_mov_b32 exec_hi, 0x3fffff"); csi(); a("s_mov_b64 exec, -1")
                rec_issue(a, 15, 10)
            if c == 7 and s == 0: a(f"ds_write_b16 v23, v20 offset:{B1L}")
            if c == 8 and s == 3: job_in()
            if c == 9 and s == 1:
                rec_check(a, 15, 10); row_consts(a, 10, 11, XEA, 12)
                a(f"""s_lshl_b32 s{T0}, s{S_W}, 9
                v_add_u32 v12, s{T0}, v{V_J16}
                v_mov_b32 v13, s{S_TAG}
                ds_write_b128 v12, v[14:17] offset:{RCL}
                ds_write_b32 v12, v13 offset:{RCL}""")
            if c == 10 and s == 0: run(a, we_build(1, 28, 26))
            if c == 10 and s == 1:
                run(a, we_build(0, 20, 25))
                for hf in range(2): a(f"v_add_u32 v{V_TR+hf}, {XSLOT - 65536}, v{V_TR+hf}")
            if c == 10 and s == 2:
                MM(ACC[1], 28, XEA, 1); MM(ACC[0], 20, XEA, 1)
                we_read(2, 28, 26)
    run(a, we_build(2, 28, 26))
    handoff_write(a, ACC[1], 1)
    a.lgall()
    a.dstamp("p", 2); a("s_barrier"); a.dstamp("p", 3)
    a.stamp(2)
    SL = [32, 36, 40, 44, 20]
    def R2(n):
        p, k = divmod(n, 40)
        b = SL[n % 5]
        if p < 2:
            vb = V_TR + p
            if k == 32: a(f"v_add_u32 v{vb}, 65536, v{vb}")
            off = (k % 32) * 2048; d = 512
        else:
            vb = V_TRD; off = k * 1024; d = 256
        a(f"ds_read_b64_tr_b16 v[{b}:{b+1}], v{vb} offset:{off}", tag=f"Q{n}")
        a(f"ds_read_b64_tr_b16 v[{b+2}:{b+3}], v{vb} offset:{off+d}", tag=f"Q{n}")
    for n in range(4): R2(n)
    PA = [ACC[1], ACC[2], ACC[0]]
    own0 = sum([epi_step(a, 0, q, ACC[0], 10) for q in range(4)], [])
    own3 = sum([epi_step(a, 3, q, ACC[2], 10) for q in range(2)], [])
    n0 = n3 = 0
    wb = []
    for n in range(120):
        p, k = divmod(n, 40)
        if n in (46, 50, 54, 58, 62, 66, 70, 74, 78): a.dstamp("n1", 1 + (n - 46)//4)
        if n in (86, 90, 94, 98, 102, 106, 110, 114, 119): a.dstamp("n2", 1 + (n - 86)//4)
        if n in (0, 4, 8, 12, 16, 24, 30, 36, 42): a.dstamp("n0", 1 + [0, 4, 8, 12, 16, 24, 30, 36, 42].index(n))
        if n == 28: a.dstamp("p", 4); a("s_barrier")
        if k == 0: MM(PA[p], 28, XEA, 0)
        a.lgwait(f"Q{n}")
        MM(PA[p], SL[n % 5], XF + 4*k, 1)
        if n + 4 < 120: R2(n + 4)
        if n in (2, 56):
            we_read(3 + n//40, 28, 26); wb = we_build(3 + n//40, 28, 26)
        if n % 40 >= 20 and wb: run(a, wb[:1 + callable(wb[0])]); wb = wb[1 + callable(wb[0]):]
        if n < 44:
            m = (n + 1) * len(own0) // 44
            run(a, own0[n0:m]); n0 = m
        if 44 <= n < 48: handoff_write(a, ACC[1], 0, (n - 44,))
        if n == 51: a.lgwait("pub"); a.dstamp("p", 5); a("s_barrier")
        if n == 75: a.vmwait("h0"); a.dstamp("p", 6); a("s_barrier")
        if n == 79:
            a(f"s_cmp_eq_u32 s{S_NP}, 4")
            a("s_cbranch_scc1 L_np4")
        if n in (83, 84): handoff_write(a, ACC[2], 1, (n - 81,))
        if n == 88:
            a.lgwait("pub"); a.dstamp("p", 7); a("s_barrier"); a.stamp(3)
        if 85 <= n < 117:
            m = (n - 84) * len(own3) // 32
            run(a, own3[n3:m]); n3 = m
    handoff_write(a, ACC[0], 0, (2, 3))
    a.lgall(); a.dstamp("p", 8); a("s_barrier"); a.stamp(4)
    for q in (0, 1): run(a, epi_step(a, 4, q, ACC[0], 10))
    a(f"s_mov_b32 s{S_LB}, s{S_LA}")
    a("s_waitcnt vmcnt(1)")
    a("s_branch L_CA")
    a.label("L_np4")
    a("s_nop 15")
    handoff_write(a, ACC[2], 1, (2, 3))
    a.lgall(); a.dstamp("p", 7); a("s_barrier")
    run(a, own3)
    a(f"s_mov_b32 s{S_LB}, s{S_LA}")
    a("s_waitcnt vmcnt(0)")
    a("s_branch L_CA")

def run(a, l):
    for x in l: x() if callable(x) else a(x)
def merge(a, mf, va):
    n = len(mf); m = len(va); j = 0
    for i in range(n):
        a(mf[i])
        k = (i + 1) * m // n
        while j < k:
            x = va[j]; j += 1
            x() if callable(x) else a(x)

WPAR = 10240; LW = XSLOT; LT = 0; EXS = 122880; EXF = 131072
def dft(a):
    a.label("L_dft")
    a.vm = []; a.lg = []
    a(f"""s_cmp_eq_u32 s{S_SET}, 0
    s_cselect_b64 vcc, -1, 0
    v_cndmask_b32 v{VXO}, v{VXO+2}, v{VXO}, vcc
    v_cndmask_b32 v{VXO+1}, v{VXO+3}, v{VXO+1}, vcc
    s_lshl_b32 s{T0}, s{S_SET}, 11
    s_add_u32 s{S_LB}, s{S_M4}, s{T0}""")
    def xd(c, e):
        a(f"s_add_u32 m0, s{S_LB}, {XSLOT + (c % 5)*16384 + e*1024}")
        a(f"buffer_load_dwordx4 v{VXO+e}, s[{SX}:{SX+3}], s{S_SX+c} offen {OPT['ntx']} lds", tag=f"x{c}")
    n0 = 3
    a.dstamp("st", 1)
    a("s_waitcnt lgkmcnt(0)")
    a.dstamp("st", 2)
    xd(0, 0); xd(0, 1)
    a.dstamp("st", 3)
    sx_table(a)
    for c in range(1, n0): xd(c, 0); xd(c, 1)
    a("s_load_dwordx4 s[68:71], s[0:1], 8")
    VF, VFS, VD, VM, VMS, VW = 6, 7, 8, 9, 10, 11
    a(f"""s_lshl_b32 s{T0}, s{S_IDX}, 1
    s_add_u32 s{S_LA}, s{T0}, s{S_SET}      ; hg
    s_lshl_b32 s{T0}, s{S_LA}, 4
    v_and_b32 v12, 15, v1
    v_add_u32 v12, s{T0}, v12
    v_cmp_eq_u32 vcc, 0, v12
    v_mov_b32 v13, 160
    v_cndmask_b32 v13, v12, v13, vcc
    s_mov_b64 s[74:75], vcc
    v_cvt_f32_u32 v{VF}, v12
    v_cvt_f32_u32 v{VFS}, v13
    v_mul_f32 v{VF}, {fl(1/640)}, v{VF}
    v_mul_f32 v{VFS}, {fl(-1/640)}, v{VFS}
    s_and_b32 s{T0}, s{S_V}, 1
    s_bfe_u32 s{T1}, s{S_V}, 0x10001
    s_cmp_eq_u32 s{T1}, 0
    s_cselect_b32 s{T2}, s{S_SX}, s{S_SX+5}
    s_lshr_b32 s{T2}, s{T2}, 1
    s_add_u32 s{T2}, s{T2}, s{T0}
    v_lshrrev_b32 v{VD}, 4, v1
    v_lshlrev_b32 v{VD}, 3, v{VD}
    v_add_u32 v{VD}, s{T2}, v{VD}
    v_cvt_f32_u32 v{VD}, v{VD}
    v_add_f32 v{VD}, 0.5, v{VD}
    s_mul_i32 s{T2}, s{S_SET}, 40968
    s_mul_i32 s{T1}, s{T1}, 20480
    s_add_u32 s{T2}, s{T2}, s{T1}
    s_lshl_b32 s{T0}, s{T0}, 11
    s_add_u32 s{T2}, s{T2}, s{T0}
    v_lshl_add_u32 v{VW}, v1, 4, s{T2}
    v_xor_b32 v14, 8, v{VW}
    v_mul_f32 v{VM}, {fl(32.0)}, v{VF}
    v_mul_f32 v{VMS}, {fl(32.0)}, v{VFS}
    v_cos_f32 v{VM}, v{VM}
    v_cos_f32 v{VMS}, v{VMS}
    v_mul_f32 v12, v{VD}, v{VF}
    v_mul_f32 v13, v{VD}, v{VFS}
    v_add_f32 v{VM}, v{VM}, v{VM}
    v_add_f32 v{VMS}, v{VMS}, v{VMS}""")
    CC, SN = 64, 80
    for u in range(2):
        for e in range(4):
            dl = 32*u + 2*e
            if dl:
                a(f"v_fmamk_f32 v{CC+4*u+e}, v{VF}, {fl(dl)}, v12"); a(f"v_fmamk_f32 v{SN+4*u+e}, v{VFS}, {fl(dl)}, v13")
                a(f"v_cos_f32 v{CC+4*u+e}, v{CC+4*u+e}"); a(f"v_sin_f32 v{SN+4*u+e}, v{SN+4*u+e}")
            else:
                a(f"v_cos_f32 v{CC}, v12"); a(f"v_sin_f32 v{SN}, v13")
    for m in range(5):
        o = 96 + 8*(m % 2)
        for r in range(4):
            a(f"v_cvt_pk_bf16_f32 v{o+r}, v{CC+2*r}, v{CC+2*r+1}")
            a(f"v_cvt_pk_bf16_f32 v{o+4+r}, v{SN+2*r}, v{SN+2*r+1}")
        a(f"ds_write2st64_b64 v{VW}, v[{o}:{o+1}], v[{o+4}:{o+5}] offset0:{m*8} offset1:{m*8+2}")
        a(f"ds_write2st64_b64 v14, v[{o+2}:{o+3}], v[{o+6}:{o+7}] offset0:{m*8} offset1:{m*8+2}")
        if m < 4:
            for u in range(2):
                for e in range(4):
                    a(f"v_fma_f32 v{CC+4*u+e}, v{VM}, v{CC+4*(1-u)+e}, -v{CC+4*u+e}")
                    a(f"v_fma_f32 v{SN+4*u+e}, v{VMS}, v{SN+4*(1-u)+e}, -v{SN+4*u+e}")
    XA = 6; VB = 10; SE, SO = 11, 12; ON = 16
    a(f"""v_and_b32 v18, 15, v1
    v_lshrrev_b32 v19, 4, v1
    v_bfe_u32 v20, v1, 1, 3
    v_xor_b32 v20, v20, v19
    s_lshl_b32 s{T0}, s{S_SET}, 2
    v_xor_b32 v20, s{T0}, v20
    s_lshl_b32 s{T0}, s{S_W}, 5
    v_add_u32 v18, s{T0}, v18
    v_lshlrev_b32 v18, 7, v18
    v_lshl_add_u32 v{XA}, v20, 4, v18
    v_add_u32 v{XA}, {XSLOT}, v{XA}
    v_xor_b32 v{XA+1}, 64, v{XA}
    v_add_u32 v{XA+2}, 2048, v{XA}
    v_add_u32 v{XA+3}, 2048, v{XA+1}
    s_mul_i32 s{T0}, s{S_SET}, 40960
    v_lshl_add_u32 v{VB}, v1, 4, s{T0}
    v_mov_b32 v{SE}, 0x05040100
    v_mov_b32 v{SO}, 0x07060302
    s_lshl_b32 s{T0}, s{S_RB}, 2
    s_add_u32 s{S_LC}, s{T0}, s{S_W}        ; n2""")
    rec_addr(a, 16)
    FO = 40
    f1 = f"""v_lshrrev_b32 v20, 4, v1
    v_lshlrev_b32 v20, 8, v20
    v_add_u32 v20, s{S_LC}, v20
    v_cvt_f32_u32 v20, v20
    v_and_b32 v21, 1, v1
    s_lshl_b32 s{T0}, s{S_SET}, 4
    v_and_b32 v22, 15, v1
    v_add_u32 v22, s{T0}, v22
    v_lshrrev_b32 v23, 1, v22
    v_cvt_f32_u32 v23, v23
    v_cmp_eq_u32 vcc, 1, v21
    v_sub_f32 v21, 0, v23
    v_cndmask_b32 v23, v21, v23, vcc
    v_mov_b32 v21, 0.25
    v_cndmask_b32 v21, 0, v21, vcc
    v_cmp_eq_u32 vcc, 1, v22
    v_mov_b32 v22, {fl(-16.0)}
    v_cndmask_b32 v23, v23, v22, vcc
    v_mov_b32 v22, 0
    v_cndmask_b32 v21, v21, v22, vcc
    v_mul_f32 v23, {fl(1/2048)}, v23
    v_fma_f32 v21, v23, v20, v21""".split("\n")
    for jj in range(8):
        dn = 64*(16*(jj//4) + jj % 4)
        f1.append(f"v_mov_b32 v{24+jj}, v21" if dn == 0 else f"v_fmamk_f32 v{24+jj}, v23, {fl(dn)}, v21")
    for jj in range(8): f1 += [f"v_sin_f32 v{32+jj}, v{24+jj}", f"v_cos_f32 v{24+jj}, v{24+jj}"]
    for r in range(4): f1 += [f"v_cvt_pk_bf16_f32 v{FO+r}, v{24+2*r}, v{25+2*r}", f"v_cvt_pk_bf16_f32 v{FO+4+r}, v{32+2*r}, v{33+2*r}"]
    f1parts = {0: f1[:30], 1: f1[30:]}
    HP, F0, K1W, SGN, HG = 61, 62, 63, 64, 65
    wsc = {2: lines(f"""s_cmp_lt_u32 s{S_W}, 2
        s_cselect_b32 s{SW}, s68, s70
        s_cselect_b32 s{SW+1}, s69, s71
        s_mov_b32 s{SW+2}, {2048*642}
        s_and_b32 s{HG}, s{S_IDX}, 1
        s_lshl_b32 s{F0}, s{HG}, 6
        s_lshl_b32 s{HG}, s{HG}, 2
        s_add_u32 s{HG}, s{HG}, s{S_W}
        s_lshr_b32 s{SGN}, s{S_IDX}, 1
        s_sub_u32 s{T2}, 257, s{F0}
        s_cmp_eq_u32 s{SGN}, 0
        s_cselect_b32 s{F0}, s{F0}, s{T2}"""),
      3: lines(f"""s_and_b32 s{T0}, s{S_W}, 1
        s_add_u32 s{T1}, s{T0}, 8
        s_lshr_b32 s{T2}, s{S_W}, 1
        s_cmp_eq_u32 s{S_IDX}, 4
        s_cselect_b32 s{HG}, s{T1}, s{HG}
        s_cselect_b32 s{SGN}, s{T2}, s{SGN}
        s_cselect_b32 s{F0}, 128, s{F0}
        s_lshl_b32 s{HP}, s{HG}, 1
        s_add_u32 s{HP}, s{HP}, s{SGN}
        s_sub_u32 s{T2}, 0, s{S_RB}
        s_cmp_eq_u32 s{S_RB}, 0
        s_cselect_b32 s66, 16, s{T2}
        s_cmp_eq_u32 s{T0}, 0
        s_cselect_b32 s{K1W}, s{S_RB}, s66"""),
      4: lines(f"""s_mul_i32 s{T0}, s{K1W}, 642
        s_lshl_b32 s{T1}, s{F0}, 1
        s_add_u32 s{T1}, s{T1}, s{T0}
        s_and_b32 s{T1}, s{T1}, -16
        s_add_u32 s{T0}, s{T0}, 320
        s_and_b32 s{T0}, s{T0}, -16
        s_sub_u32 s{T0}, s{T0}, s{T1}
        s_sub_u32 s68, s{T0}, 144
        s_mul_i32 s{T0}, s{S_SET}, {32*20544}
        s_add_u32 s69, s{T1}, s{T0}
        s_lshl_b32 s{T0}, s{S_SET}, 7
        s_add_u32 s96, s{T1}, s{T0}"""),
      5: lines(f"""s_cmp_lt_i32 s{K1W}, 0
        s_cselect_b32 s97, {2048*642}, 0
        s_cmp_eq_u32 s{S_SET}, 0
        s_cselect_b32 s70, s97, 0
        s_mul_i32 s71, s{S_W}, {WPAR}
        s_mul_i32 s{T0}, s{S_SET}, 5120
        s_add_u32 s71, s71, s{T0}
        s_mov_b32 s67, 20544
        v_mov_b32 v56, s96
        v_mad_u32_u24 v56, v1, s67, v56
        v_add_u32 v57, s97, v56
        v_cmp_eq_u32 vcc, 0, v1
        v_cndmask_b32 v56, v56, v57, vcc""")}
    a.lgall()
    a.dstamp("st", 4)
    XRB = (64, 80); TBB = (96, 112); EOB = (128, 144); AC = 160; GS = 192
    nxt = n0
    for c in range(12):
        rd = []
        if c < 10:
            if c >= 1: a.dstamp("bar", c)
            a.vmwait(f"x{c}")
            if c >= 1: a.dstamp("bar2", c)
            if c < 4: a.dstamp("st", 5 + c)
            a("s_barrier")
            if c == 0: a.stamp(1)
            slot = c % 5
            XR = XRB[c % 2]
            for s in range(4):
                g = []
                if slot == 4: g.append(f"v_add_u32 v{XA+s}, 16384, v{XA+s}")
                g.append(f"ds_read_b128 v[{XR+4*s}:{XR+4*s+3}], v{XA+s} offset:{min(slot,3)*16384}")
                if slot == 4: g.append(f"v_subrev_u32 v{XA+s}, 16384, v{XA+s}")
                rd.append(g)
        if 1 <= c <= 10:
            TB = TBB[(c - 1) % 2]
            for ty in range(4):
                rd.append([f"ds_read_b128 v[{TB+4*ty}:{TB+4*ty+3}], v{VB} offset:{(c-1)*4096 + ty*1024}"])
        todo = []
        while nxt <= min(c + 4, 9) and len(todo) < 2: todo.append(nxt); nxt += 1
        for cc in todo:
            for e in range(2): rd.append([lambda cc=cc, e=e: xd(cc, e)])
        if c == 6:
            rd.append([lambda: tag_issue(a, 4, 5)])
            rd.append([lambda: a(f"buffer_load_dword v0, v56, s[{SW}:{SW+3}], 0 offen", tag="pf")])
        if c == 8: rd.append([lambda: rec_issue(a, 16, 20)])

        mf = []; va = []
        if c >= 2:
            EO, TB = EOB[c % 2], TBB[c % 2]
            for t in range(2):
                for ty in range(4):
                    acc = AC + 8*ty + 4*t; xs = EO + 8*t + 4*(ty // 2)
                    mf.append(f"v_mfma_f32_16x16x32_bf16 v[{acc}:{acc+3}], v[{xs}:{xs+3}], v[{TB+4*ty}:{TB+4*ty+3}], " + ("0" if c == 2 else f"v[{acc}:{acc+3}]"))
        if 1 <= c <= 10:
            XR, EO = XRB[(c - 1) % 2], EOB[(c - 1) % 2]
            for t in range(2):
                for ks in range(2):
                    for r in range(2):
                        lo = XR + 8*t + 4*ks + 2*r
                        va.append(f"v_perm_b32 v{EO+8*t+2*ks+r}, v{lo+1}, v{lo}, v{SE}")
                        va.append(f"v_perm_b32 v{EO+8*t+4+2*ks+r}, v{lo+1}, v{lo}, v{SO}")
        va += f1parts.get(c, [])
        n = max(len(mf), 1)
        for i in range(n):
            if mf: a(mf[i])
            for grp in (rd[i:i+1] if i < n - 1 else rd[i:]):
                for x in grp: x() if callable(x) else a(x)
            for x in va[i*len(va)//n:(i+1)*len(va)//n]: a(x)
        run(a, wsc.get(c, []))
        if c == 10:
            a(f"""s_lshl_b32 s{T0}, s{S_V}, 11
            s_add_u32 s{T0}, s{T0}, {EXF}
            v_lshl_add_u32 v18, v1, 4, s{T0}
            ds_write_b128 v18, v[{FO}:{FO+3}]
            ds_write_b128 v18, v[{FO+4}:{FO+7}] offset:1024
            v_xor_b32 v18, 8192, v18
            s_lshl_b32 s{T0}, s{S_V}, 7
            s_add_u32 s{T0}, s{T0}, {EXS}
            v_and_b32 v17, 31, v1
            v_lshl_add_u32 v17, v17, 2, s{T0}
            v_lshrrev_b32 v19, 4, v1
            v_lshl_add_u32 v19, v19, 4, s{T0}""")
        if c < 10: a.lgall()
        if c == 10:
            tag_check(a, 4, 5); a.lgall()
            a("s_barrier")
            a(f"ds_read_b128 v[48:51], v18", tag="f")
            a(f"ds_read_b128 v[52:55], v18 offset:1024", tag="f")
            rec_check(a, 16, 20)
            a(f"ds_write_b32 v17, v22")
            a(f"ds_read_b128 v[24:27], v19", tag="r")
            a(f"ds_read_b128 v[28:31], v19 offset:64", tag="r")
    a.stamp(2)
    a.lgwait("f")
    FRr, FIr, FNr = (40, 48), (44, 52), (56, 60)
    for u in range(2):
        for r in range(4): a(f"v_xor_b32 v{FNr[u]+r}, 0x80008000, v{FIr[u]+r}")
    a(f"""s_lshl_b32 s{T0}, s{S_V}, 12
    v_lshrrev_b32 v14, 4, v1
    v_lshlrev_b32 v14, 7, v14
    v_and_b32 v15, 15, v1
    v_lshl_add_u32 v14, v15, 2, v14
    v_add_u32 v14, s{T0}, v14
    s_lshl_b32 s{T1}, s{S_SET}, 9
    v_add_u32 v14, s{T1}, v14
    v_xor_b32 v13, 512, v14
    v_lshl_add_u32 v15, v1, 4, s{T0}
    v_lshrrev_b32 v16, 2, v1
    v_mul_u32_u24 v16, 163840, v16
    v_and_b32 v17, 3, v1
    v_lshl_add_u32 v16, v17, 4, v16
    s_lshl_b32 s{T0}, s{S_LA}, 14
    s_lshl_b32 s{T1}, s{S_LC}, 6
    s_add_u32 s{T0}, s{T0}, s{T1}
    s_add_u32 s{T0}, s{T0}, {WS_T}""")
    a.lgwait("r")
    for i in range(8):
        er, ei, orr, oi, rho = AC + i, AC + 8 + i, AC + 16 + i, AC + 24 + i, 24 + i
        a(f"""v_mul_f32 v20, v{orr}, v{rho}
        v_mul_f32 v21, v{oi}, v{rho}
        v_fma_f32 v{oi}, -v{er}, v{rho}, v20
        v_fma_f32 v{er}, v{er}, v{rho}, v20
        v_fma_f32 v{orr}, -v{ei}, v{rho}, v21
        v_fma_f32 v{ei}, v{ei}, v{rho}, v21""")
    a(f"s_cmp_lg_u32 s{S_LA}, 0")
    a("s_cbranch_scc1 L_dnsp")
    for i in range(8):
        a(f"v_cndmask_b32 v{AC+i}, v{AC+i}, v{AC+16+i}, s[74:75]")
        a(f"v_cndmask_b32 v{AC+16+i}, v{AC+16+i}, 0, s[74:75]")
    a.label("L_dnsp")
    XB = 64; OUT = 80
    def o(sgn, cc, u): return OUT + 16*sgn + 8*cc + 4*u
    for sgn in range(2):
        for ty in (2*sgn, 2*sgn + 1):
            for r in range(4):
                a(f"v_cvt_pk_bf16_f32 v{XB+4*ty+r}, v{AC+8*ty+2*r}, v{AC+8*ty+2*r+1}")
        xr, xi = XB + 8*sgn, XB + 8*sgn + 4
        for u in range(2):
            a(f"v_mfma_f32_16x16x32_bf16 v[{o(sgn,0,u)}:{o(sgn,0,u)+3}], v[{FRr[u]}:{FRr[u]+3}], v[{xr}:{xr+3}], 0")
            a(f"v_mfma_f32_16x16x32_bf16 v[{o(sgn,1,u)}:{o(sgn,1,u)+3}], v[{FIr[u]}:{FIr[u]+3}], v[{xr}:{xr+3}], 0")
        for u in range(2):
            a(f"v_mfma_f32_16x16x32_bf16 v[{o(sgn,0,u)}:{o(sgn,0,u)+3}], v[{FNr[u]}:{FNr[u]+3}], v[{xi}:{xi+3}], v[{o(sgn,0,u)}:{o(sgn,0,u)+3}]")
            a(f"v_mfma_f32_16x16x32_bf16 v[{o(sgn,1,u)}:{o(sgn,1,u)+3}], v[{FRr[u]}:{FRr[u]+3}], v[{xi}:{xi+3}], v[{o(sgn,1,u)}:{o(sgn,1,u)+3}]")
    for sgn in range(2):
        for cc in range(2):
            it = 2*sgn + cc
            for u in range(2):
                r = o(sgn, cc, u)
                a(f"v_cvt_pk_bf16_f32 v{r}, v{r}, v{r+1}")
                a(f"v_cvt_pk_bf16_f32 v{r+1}, v{r+2}, v{r+3}")
                a(f"ds_write_b32 v{14-u}, v{r} offset:{it*1024}")
                a(f"ds_write_b32 v{14-u}, v{r+1} offset:{it*1024+64}")
            a(f"ds_read_b128 v[{128+4*it}:{131+4*it}], v15 offset:{it*1024}", tag=f"r{it}")
    for it in range(4):
        a.lgwait(f"r{it}")
        a(f"s_add_u32 s{T1}, s{T0}, {it*4096}")
        a(f"buffer_store_dwordx4 v[{128+4*it}:{131+4*it}], v16, s[{SS}:{SS+3}], s{T1} offen {ST}", tag="T")
    a.stamp(3); a.dstamp("fft", 1)
    a(f"""s_lshl_b32 s{S_LA}, s{S_IDX}, 4
    s_add_u32 s{S_LA}, s{S_LA}, s{S_RB}
    s_lshl_b32 s{S_LA}, s{S_LA}, 7
    s_add_u32 s{S_LA}, s{S_LA}, {F_TF}""")
    WV = 48
    wv = []
    for i in range(5):
        wv += f"""v_add_u32 v56, {64*i}, v1
        v_mul_u32_u24 v57, 6554, v56
        v_lshrrev_b32 v57, 16, v57
        v_mul_u32_u24 v58, 10, v57
        v_sub_u32 v58, v56, v58
        v_cmp_eq_u32 vcc, 9, v58
        v_lshl_add_u32 v58, v58, 4, s69
        v_mad_u32_u24 v{WV+i}, v57, s67, v58
        v_mov_b32 v56, s68
        v_cndmask_b32 v56, 0, v56, vcc
        v_add_u32 v{WV+i}, v{WV+i}, v56""".split("\n")
    wv += f"""v_add_u32 v56, s70, v{WV}
    v_cmp_gt_u32 vcc, 10, v1
    v_cndmask_b32 v{WV}, v{WV}, v56, vcc""".split("\n")
    run(a, wv)
    def wd(i):
        a(f"s_add_u32 m0, s71, {LW + i*1024}")
        a(f"buffer_load_dwordx4 v{WV+i}, s[{SW}:{SW+3}], 0 offen lds", tag="w")

    for i in range(5): wd(i)
    a.dstamp("fft", 2)
    a.vmwait("T")
    a("s_barrier")
    a(f"s_cmp_lg_u32 s{S_V}, 4")
    a("s_cbranch_scc1 L_dnp")
    vm = list(a.vm); publish(a, S_LA, 5, 28, 29); a.vm = vm
    a.label("L_dnp")
    a.stamp(4)
    s_w, s_jp, s_g = S_W, S_RB, S_IDX
    PHI, MK = 63, 68
    a(f"""v_and_b32 v4, 1, v1
    v_bfe_u32 v5, v1, 1, 4
    s_lshl_b32 s{T0}, s{HG}, 4
    v_add_u32 v5, s{T0}, v5
    v_cmp_eq_u32 vcc, 0, v5
    s_cmp_eq_u32 s{SGN}, 0
    s_cselect_b64 s[{MK}:{MK+1}], vcc, 0
    v_sub_u32 v6, 320, v5
    s_cselect_b64 vcc, -1, 0
    v_cndmask_b32 v5, v6, v5, vcc
    v_subrev_u32 v5, s{F0}, v5
    v_lshlrev_b32 v5, 1, v5
    v_mov_b32 v6, s{s_jp}
    v_mov_b32 v7, s66
    v_cmp_eq_u32 vcc, 1, v4
    v_cndmask_b32 v6, v6, v7, vcc
    v_add_u32 v7, s{F0}, v6
    v_lshlrev_b32 v7, 1, v7
    v_and_b32 v7, 15, v7
    v_add_u32 v5, v5, v7
    v_lshlrev_b32 v6, 1, v6
    v_and_b32 v6, 15, v6
    v_add_u32 v6, 144, v6
    v_cndmask_b32 v5, v5, v6, s[{MK}:{MK+1}]
    v_mul_u32_u24 v4, {WPAR}, v4
    v_lshrrev_b32 v6, 5, v1
    v_mul_u32_u24 v6, 640, v6
    v_add3_u32 v15, v4, v5, v6
    s_mul_i32 s{T0}, s{S_SET}, 5120
    s_add_u32 s{T0}, s{T0}, {LW}
    v_add_u32 v15, s{T0}, v15""")
    C, SN = 16, 32
    a(f"""v_and_b32 v6, 31, v1
    s_lshl_b32 s{T0}, s{S_SET}, 5
    v_add_u32 v7, s{T0}, v6
    v_cvt_f32_u32 v7, v7
    v_mul_f32 v7, {fl(1/64)}, v7
    v_lshrrev_b32 v8, 5, v1
    v_lshl_add_u32 v8, v8, 2, s{T0}
    v_cvt_f32_u32 v8, v8
    v_mul_f32 v8, v8, v7
    v_and_b32 v6, 1, v6
    v_mov_b32 v9, 0x80008000
    v_cmp_eq_u32 vcc, 1, v6
    v_cndmask_b32 v9, 0, v9, vcc""")
    for u in range(2):
        for jj in range(8):
            b = 16*u + 8*(jj//4) + jj % 4
            if b: a(f"v_fmamk_f32 v{128+jj}, v7, {fl(b)}, v8")
            else: a(f"v_mov_b32 v{128+jj}, v8")
        for jj in range(8):
            a(f"v_sin_f32 v{136+jj}, v{128+jj}"); a(f"v_cos_f32 v{128+jj}, v{128+jj}")
        for r in range(4):
            a(f"v_cvt_pk_bf16_f32 v{C+4*u+r}, v{128+2*r}, v{129+2*r}")
            a(f"v_cvt_pk_bf16_f32 v{SN+4*u+r}, v{136+2*r}, v{137+2*r}")
    for base in (C, SN):
        for r in range(8): a(f"v_xor_b32 v{base+8+r}, v9, v{base+r}")
    a(f"""s_lshl_b32 s{T1}, s{s_w}, 13
    s_lshl_b32 s{T2}, s{S_SET}, 11
    v_lshrrev_b32 v6, 5, v1
    v_bfe_u32 v7, v1, 2, 2
    v_lshl_add_u32 v7, v6, 2, v7
    v_lshlrev_b32 v7, 6, v7
    v_bfe_u32 v8, v1, 4, 1
    v_lshl_add_u32 v7, v8, 5, v7
    v_and_b32 v8, 3, v1
    v_lshl_add_u32 v7, v8, 3, v7
    v_add_u32 v7, s{T1}, v7
    v_add_u32 v48, s{T2}, v7
    v_xor_b32 v49, 2048, v48
    s_lshr_b32 s{PHI}, s{s_jp}, 1
    s_and_b32 s{PHI}, s{PHI}, 2
    s_lshl_b32 s{T2}, s{S_SET}, 12
    s_add_u32 s{T1}, s{T1}, s{T2}
    v_and_b32 v7, 7, v1
    v_xor_b32 v7, v7, v6
    v_xor_b32 v7, s{PHI}, v7
    v_and_b32 v8, 31, v1
    v_lshlrev_b32 v8, 7, v8
    v_lshl_add_u32 v50, v7, 4, v8
    v_add_u32 v50, s{T1}, v50
    v_xor_b32 v51, 32, v50
    v_xor_b32 v52, 64, v50
    v_xor_b32 v53, 96, v50
    v_lshrrev_b32 v7, 3, v1
    v_and_b32 v8, 7, v1
    v_xor_b32 v54, v7, v8
    v_lshlrev_b32 v54, 4, v54
    v_lshl_add_u32 v54, v7, 7, v54
    v_add_u32 v54, s{T1}, v54
    v_mul_u32_u24 v55, 40960, v7
    v_lshl_add_u32 v55, v8, 4, v55
    v_lshlrev_b32 v56, 4, v1
    s_lshl_b32 s{T0}, s{S_V}, 12
    s_add_u32 s{T0}, s{T0}, 32768
    v_add_u32 v57, s{T0}, v56
    v_xor_b32 v58, 16384, v57
    v_lshlrev_b32 v59, 7, v1
    s_and_b32 s{T0}, s{s_g}, 1
    s_lshl_b32 s{T0}, s{T0}, 12
    s_cmp_eq_u32 s{s_g}, 4
    s_cselect_b32 s{T0}, 8192, s{T0}
    s_cselect_b32 s64, 0xffff, -1
    s_mov_b32 s65, 0
    s_add_u32 s{T0}, s{T0}, {F_TF}""")
    for i in range(5): a(f"v_mov_b32 v{VST+i}, 0")
    a(f"s_cmp_eq_u32 s{S_SET}, 0")
    a("s_cbranch_scc1 L_fnw")
    a(f"s_mov_b32 s60, s{T1}")
    st_setup(a)
    run(a, sp_base(S_HFA))
    a(f"s_mov_b32 s{T1}, s60")
    a.label("L_fnw")
    a.dstamp("fft", 3)
    a(f"s_cmp_lg_u32 s{S_V}, 0")
    a("s_cbranch_scc1 L_fnp")
    vm = list(a.vm); poll(a, 59, T0, 5, 64, 60); a.vm = vm
    a.label("L_fnp")
    a(f"""s_mul_i32 s{T0}, s{s_jp}, 20
    s_add_u32 s{T0}, s{T0}, s{HP}
    s_lshl_b32 s{T0}, s{T0}, 13
    s_lshl_b32 s{T2}, s{S_SET}, 12
    s_add_u32 s{T0}, s{T0}, s{T2}
    s_add_u32 s{T0}, s{T0}, {WS_T}
    s_mov_b32 m0, s{T1}""")
    a("s_barrier")
    a.stamp(5); a.dstamp("fft", 4)
    for i in range(4):
        a(f"buffer_load_dwordx4 v56, s[{SS}:{SS+3}], s{T0} offen offset:{i*1024} sc1 lds", tag="t")
    a(f"s_cmp_lg_u32 s{S_SET}, 0")
    a("s_cbranch_scc1 L_fnc")
    a("s_setprio 1")
    a.label("L_fnc")
    a.vmall()
    a("s_barrier")
    a.dstamp("fft", 5)
    BR, BI, NB, WR, WI, DR, DI = 64, 80, 128, 144, 160, 176, 192
    for u in range(4):
        for cc, b in ((0, BR), (1, BI)):
            a(f"ds_read_b64_tr_b16 v[{b+4*u}:{b+4*u+1}], v{48 + u//2} offset:{cc*4096 + (u%2)*1024}", tag=f"b{u}")
            a(f"ds_read_b64_tr_b16 v[{b+4*u+2}:{b+4*u+3}], v{48 + u//2} offset:{cc*4096 + (u%2)*1024 + 512}", tag=f"b{u}")
    def wread(r):
        q, tt = divmod(r, 4)
        off = (8*q + tt) * 160
        a(f"ds_read_u16_d16_hi v{WR+r}, v15 offset:{off}", tag=f"w{r}")
        a(f"ds_read_u16_d16_hi v{WI+r}, v15 offset:{off + 2*WPAR}", tag=f"w{r}")
    def M(d, A, B, first): return f"v_mfma_f32_32x32x16_bf16 v[{d}:{d+15}], v[{A}:{A+3}], v[{B}:{B+3}], " + ("0" if first else f"v[{d}:{d+15}]")
    for u in range(4):
        a.lgwait(f"b{u}")
        a(M(DR, C+4*u, BR+4*u, u == 0))
        for r in range(4): a(f"v_xor_b32 v{NB+4*u+r}, 0x80008000, v{BR+4*u+r}")
        a(M(DI, C+4*u, BI+4*u, u == 0)); wread(4*u); wread(4*u + 1)
        a(M(DR, SN+4*u, BI+4*u, False)); wread(4*u + 2); wread(4*u + 3)
        a(M(DI, SN+4*u, NB+4*u, False))
    a.dstamp("fft", 6)
    ZR, ZI, ZN = 64, 80, 208
    for g4 in range(4):
        rs = range(4*g4, 4*g4 + 4)
        a.lgwait(f"w{4*g4+3}")
        for i, r in enumerate(rs): a(f"v_mul_f32 v{6+i}, v{DR+r}, v{WR+r}")
        for i, r in enumerate(rs): a(f"v_mul_f32 v{DR+r}, v{DR+r}, v{WI+r}")
        for i, r in enumerate(rs): a(f"v_fma_f32 v{6+i}, -v{DI+r}, v{WI+r}, v{6+i}")
        for i, r in enumerate(rs): a(f"v_fmac_f32 v{DR+r}, v{DI+r}, v{WR+r}")
        for i, r in enumerate(rs): a(f"v_subrev_f32_dpp v{DI+r}, v{6+i}, v{DR+r} quad_perm:[1,0,3,2] row_mask:0xf bank_mask:0xf")
        for i, r in enumerate(rs): a(f"v_add_f32_dpp v{6+i}, v{DR+r}, v{6+i} quad_perm:[1,0,3,2] row_mask:0xf bank_mask:0xf")
        for k in range(2): a(f"v_cvt_pk_bf16_f32 v{ZI+2*g4+k}, v{DI+4*g4+2*k}, v{DI+4*g4+2*k+1}")
        for k in range(2): a(f"v_cvt_pk_bf16_f32 v{ZR+2*g4+k}, v{6+2*k}, v{7+2*k}")
        if g4 % 2:
            u = g4 // 2
            a(f"ds_write_b128 v57, v[{ZR+4*u}:{ZR+4*u+3}] offset:{u*1024}")
            a(f"ds_write_b128 v57, v[{ZI+4*u}:{ZI+4*u+3}] offset:{2048 + u*1024}")
    YR, YI = 144, 160
    def step3(u):
        a(M(YR, ZR+4*u, C+4*u, u == 0))
        for r in range(4): a(f"v_xor_b32 v{ZN+4*u+r}, 0x80008000, v{ZI+4*u+r}")
        a(M(YI, ZI+4*u, C+4*u, u == 0)); a(M(YI, ZR+4*u, SN+4*u, False)); a(M(YR, ZN+4*u, SN+4*u, False))
    step3(0)
    a.lgall()
    a("s_barrier")
    a.dstamp("fft", 7)
    for u in range(2):
        a(f"ds_read_b128 v[{ZR+8+4*u}:{ZR+11+4*u}], v58 offset:{u*1024}", tag=f"z{u}")
        a(f"ds_read_b128 v[{ZI+8+4*u}:{ZI+11+4*u}], v58 offset:{2048 + u*1024}", tag=f"z{u}")
    step3(1)
    for u in (2, 3):
        a.lgwait(f"z{u-2}"); step3(u)
    a(f"s_cmp_lg_u32 s{s_jp}, 0")
    a(f"s_cbranch_scc1 L_fns")
    a(f"""v_and_b32 v6, 31, v1
    s_lshl_b32 s{T0}, s{S_SET}, 5
    v_add_u32 v6, s{T0}, v6
    v_cvt_f32_u32 v6, v6
    v_mul_f32 v6, {fl(1/128)}, v6
    v_cos_f32 v7, v6
    v_sin_f32 v8, v6
    s_nop 7
    v_mul_f32 v7, 0.5, v7
    v_mul_f32 v8, 0.5, v8""")
    for pr in range(8):
        ar, br, ai, bi = YR+2*pr, YR+2*pr+1, YI+2*pr, YI+2*pr+1
        a(f"""v_sub_f32 v6, v{br}, v{ai}
        v_add_f32 v9, v{bi}, v{ar}
        v_sub_f32 v{ar}, v{ar}, v{bi}
        v_add_f32 v{ai}, v{ai}, v{br}
        v_mul_f32 v{br}, v7, v6
        v_mul_f32 v{bi}, v8, v6
        v_mul_f32 v{ar}, 0.5, v{ar}
        v_mul_f32 v{ai}, 0.5, v{ai}
        v_fma_f32 v{br}, -v8, v9, v{br}
        v_fmac_f32 v{bi}, v7, v9""")
    a.label("L_fns")
    a(f"""s_lshl_b32 s{T0}, s{HP}, 11
    s_lshl_b32 s{T1}, s{s_jp}, 7
    s_add_u32 s{T0}, s{T0}, s{T1}
    s_mul_i32 s{T1}, s{S_SET}, {32*40960}
    s_add_u32 s{T0}, s{T0}, s{T1}
    s_add_u32 s{T0}, s{T0}, {WS_Y}
    s_nop 7""")
    O = 176; k = 0
    for cc, src in ((1, YI), (0, YR)):
        for par in range(2):
            o = O + 4*k; k += 1
            for q in range(4): a(f"v_cvt_pk_bf16_f32 v{o+q}, v{src+4*q+par}, v{src+4*q+2+par}")
            a(f"ds_write_b128 v{50+2*par+cc}, v[{o}:{o+3}]")
    for it in range(4): a(f"ds_read_b128 v[{16+4*it}:{19+4*it}], v54 offset:{it*1024}", tag=f"r{it}")
    a.dstamp("fft", 8)
    for it in range(4):
        a.lgwait(f"r{it}")
        a(f"buffer_store_dwordx4 v[{16+4*it}:{19+4*it}], v55, s[{SS}:{SS+3}], s{T0} offen {ST}", tag="y")
        if it < 3: a(f"s_add_u32 s{T0}, s{T0}, {8*40960}")
    a(f"""s_mov_b32 s{S_LA}, {BIG}
    s_cmp_eq_u32 s{S_SET}, 0
    s_cbranch_scc1 L_fa""")
    sp_issue(a, L6, D6); sp_check(a, L6, D6, 2)
    st_issue(a, 0); st_issue(a, 1)
    a("s_branch L_CB")
    a.label("L_fa")
    a(f"""s_mul_i32 s{S_LB}, s{s_jp}, 5
    s_add_u32 s{S_LB}, s{S_LB}, s{s_g}
    s_lshl_b32 s{S_LB}, s{S_LB}, 7
    s_add_u32 s{S_LB}, s{S_LB}, {F_YF}
    s_cmp_eq_u32 s{S_V}, 0
    s_cselect_b32 s{S_LB}, s{S_LB}, {BIG}""")

YA, YB, LX, LH, LS = 40960, 122880, 81920, 92160, 102400
S_C8, S_KH, S_CB = 60, 61, 64
M_G0, M_G2 = 32, 34
FG, FL = 210, 211
GE, GO = 16, 56

def g_head(t):
    return lines(f"""v_add_u32 v{t+4}, s{S_CB}, v{FL}
    v_cvt_f32_u32 v{t+4}, v{t+4}
    v_add_f32 v{t+4}, 0.5, v{t+4}
    v_mul_f32 v{t+4}, {fl(1/640)}, v{t+4}
    v_and_b32 v{t}, 1, v{FG}
    v_lshlrev_b32 v{t}, 1, v{t}
    v_sub_u32 v{t+1}, 320, v{t}
    v_cmp_lt_u32 s[40:41], 31, v1
    v_cndmask_b32 v{t}, v{t}, v{t+1}, s[40:41]
    v_cvt_f32_u32 v{t}, v{t}
    v_mul_f32 v{t}, v{t}, v{t+4}
    v_sub_f32 v{t+1}, 0, v{t+4}
    v_cndmask_b32 v{t+1}, v{t+4}, v{t+1}, s[40:41]
    v_mul_f32 v{t+2}, {fl(16.0)}, v{t+4}
    v_cos_f32 v{t+2}, v{t+2}
    v_mul_f32 v{t+4}, {fl(160.0)}, v{t+4}
    v_sin_f32 v{t+5}, -v{t+4}
    v_cos_f32 v{t+4}, v{t+4}
    v_add_f32 v{t+2}, v{t+2}, v{t+2}
    v_sub_f32 v{t+3}, 0, v{t+2}""")
def g_seq(t, n, CV, SV, dst_e, dst_o, offs, special):
    o = []
    for m in range(2):
        for j in range(n):
            k = 16*m + offs[j]
            o.append(f"v_fmamk_f32 v{CV+n*m+j}, v{t+1}, {fl(k)}, v{t}" if k else f"v_mov_b32 v{CV+n*m+j}, v{t}")
        for j in range(n): o += [f"v_sin_f32 v{SV+n*m+j}, -v{CV+n*m+j}", f"v_cos_f32 v{CV+n*m+j}, v{CV+n*m+j}"]
    o += lines(f"""v_cndmask_b32 v{t+4}, v{CV}, v{t+4}, s[{special[0]}:{special[0]+1}]
    v_cndmask_b32 v{t+5}, v{SV}, v{t+5}, s[{special[0]}:{special[0]+1}]
    v_mul_f32 v{t}, 0.5, v{t+4}
    v_mul_f32 v{t+1}, 0.5, v{t+5}
    v_cndmask_b32 v{t+4}, v{t+4}, v{t}, s[{special[1]}:{special[1]+1}]
    v_cndmask_b32 v{t+5}, v{t+5}, v{t+1}, s[{special[1]}:{special[1]+1}]""")
    for m in range(10):
        u = n*(m % 2); sg = "-" if (m // 2) % 2 else ""
        for r in range(n // 2):
            c0 = t + 4 if (m == 0 and r == 0) else CV + u + 2*r
            s0 = t + 5 if (m == 0 and r == 0) else SV + u + 2*r
            o.append(f"v_cvt_pk_bf16_f32 v{dst_e(m, r)}, {sg}v{c0}, {sg}v{CV+u+2*r+1}")
            o.append(f"v_cvt_pk_bf16_f32 v{dst_o(m, r)}, {sg}v{s0}, {sg}v{SV+u+2*r+1}")
        if m + 2 < 10:
            M = t + 3 if m % 2 == 0 else t + 2
            for j in range(n):
                o += [f"v_fmac_f32 v{CV+u+j}, v{M}, v{CV+n-u+j}", f"v_fmac_f32 v{SV+u+j}, v{M}, v{SV+n-u+j}"]
    return o
def run(a, l):
    for x in l: x() if callable(x) else a(x)

def phase_c(a):
    a.label("L_CA")
    a.vm = []; a.lg = []
    a.stamp(6); a.dstamp("fft", 9); a.dstamp("p", 9)
    a("s_load_dwordx2 s[8:9], s[0:1], 56")
    publish(a, S_LA, 4, 6, 7)
    st_setup(a)
    HB_, WB_, AC2 = 16, 32, 80
    a(f"""v_lshrrev_b32 v{FG}, 4, v1
    v_and_b32 v{FL}, 15, v1
    v_lshrrev_b32 v2, 5, v1
    v_lshlrev_b32 v2, 4, v2
    v_bfe_u32 v3, v1, 4, 1
    v_lshl_add_u32 v2, v3, 2, v2
    v_bfe_u32 v3, v1, 2, 2
    v_add_u32 v2, v2, v3
    v_mul_u32_u24 v2, 160, v2
    v_and_b32 v3, 3, v1
    v_lshl_add_u32 v10, v3, 3, v2
    v_add_u32 v9, {SLOT[1]}, v10
    v_add_u32 v8, {SLOT[0]}, v10
    s_mul_i32 s{T0}, s{S_W}, 6144
    s_add_u32 s{T0}, s{T0}, 15360
    v_lshlrev_b32 v2, 9, v{FG}
    v_lshl_add_u32 v2, v{FL}, 4, v2
    v_add_u32 v13, s{T0}, v2
    v_add_u32 v12, {SLOT[1]}, v13
    v_add_u32 v11, {SLOT[0]}, v13
    s_lshr_b32 s{S_C8}, s2, 5
    s_and_b32 s{S_KH}, s2, 1""")
    def reads(n):
        s, i = divmod(n, 3); o = []
        for rt in range(2):
            b = HB_ + 8*(n % 2) + 4*rt
            o.append((f"ds_read_b128 v[{b}:{b+3}], v{11 + s % 3} offset:{i*2048 + rt*256}", f"H{n}"))
        for ct in range(5):
            b = WB_ + 20*(n % 2) + 4*ct
            o.append((f"ds_read_b64_tr_b16 v[{b}:{b+1}], v{8 + s % 3} offset:{i*5120 + ct*32}", f"W{n}_{ct}"))
            o.append((f"ds_read_b64_tr_b16 v[{b+2}:{b+3}], v{8 + s % 3} offset:{i*5120 + ct*32 + 8*160}", f"W{n}_{ct}"))
        return o
    B2 = 196; PV = 212
    fill = lines(f"""s_mul_i32 s36, s{S_C8}, 80
    s_lshl_b32 s37, s36, 1
    s_sub_u32 s37, 1120, s37
    v_lshl_add_u32 v2, v{FG}, 3, s36
    v_add_u32 v3, s37, v2
    v_cmp_gt_u32 vcc, 2, v{FG}
    v_cndmask_b32 v4, v3, v2, vcc
    s_mov_b32 s{SB}, s8
    s_mov_b32 s{SB+1}, s9
    s_mov_b32 s{SB+2}, 1280""")
    for ct in range(5):
        fill.append(lambda ct=ct: a(f"buffer_load_dwordx2 v[{B2+2*ct}:{B2+2*ct+1}], v{[2,2,4,3,3][ct]}, s[{SB}:{SB+3}], 0 offen offset:{32*ct}", tag="b2"))
    fill += lines(f"""s_lshr_b32 s38, s{S_W}, 1
    s_xor_b32 s38, s38, s{S_KH}
    s_and_b32 s39, s{S_W}, 1
    s_xor_b32 s40, s2, 1
    s_lshl_b32 s40, s40, 1
    s_add_u32 s40, s40, s39
    s_mul_i32 s41, s40, 6144
    s_add_u32 s41, s41, {WS_P}
    s_lshl_b32 s40, s40, 7
    s_add_u32 s40, s40, {F_PF}
    s_lshl_b32 s48, s2, 1
    s_add_u32 s48, s48, s39
    s_mul_i32 s49, s48, 6144
    s_mul_i32 s50, s38, 3072
    s_add_u32 s49, s49, s50
    s_add_u32 s49, s49, {WS_P}
    s_lshl_b32 s48, s48, 7
    s_add_u32 s48, s48, {F_PF}
    v_lshlrev_b32 v5, 4, v1
    s_mul_i32 s50, s39, 5120
    s_add_u32 s50, s50, {LH}
    v_add_u32 v14, s50, v5
    s_lshl_b32 s50, s39, 5
    s_lshl_b32 s51, s38, 4
    s_add_u32 s50, s50, s51
    v_add_u32 v15, s50, v{FL}
    v_mul_u32_u24 v208, 320, v15
    v_lshl_add_u32 v208, v{FG}, 4, v208
    v_add_u32 v208, {LS}, v208                  ; s image
    v_mul_u32_u24 v209, 160, v15
    v_lshl_add_u32 v209, v{FG}, 3, v209
    v_add_u32 v209, {LX}, v209""")
    a.lgall()
    a.dstamp("c", 1)
    a("s_barrier")
    a.stamp(7)
    for t, g in reads(0): a(t, tag=g)
    nf = 0
    for n in range(27):
        s, i = divmod(n, 3)
        nx = reads(n + 1) if n + 1 < 27 else []
        wl = []
        if n == 0: wl = st_w(a, 2)
        if i == 2 and s + 3 < 9: wl = st_w(a, s + 3)
        if i == 2 and n + 1 < 27:
            a.lgall()
            a.vmwait(f"st{s+1}")
            if s == 1: a.vmwait("b2")
            if s < 7: a.dstamp("c", s + 2)
            a("s_barrier")
            if s == 1: publish(a, S_LB, 5, 6, 7)
        a.lgwait(f"H{n}")
        for ct in range(5):
            a.lgwait(f"W{n}_{ct}")
            for rt in range(2):
                d = AC2 + (ct*2 + rt)*4; w = WB_ + 20*(n % 2) + 4*ct; h = HB_ + 8*(n % 2) + 4*rt
                a(f"v_mfma_f32_16x16x32_bf16 v[{d}:{d+3}], v[{w}:{w+3}], v[{h}:{h+3}], " + ("0" if n == 0 else f"v[{d}:{d+3}]"))
                k = 2*ct + rt
                for t, g in nx[(k*12)//10:((k+1)*12)//10]: a(t, tag=g)
                if wl and k in (1, 3, 5, 7): run(a, wl[k // 2])
        m = (n + 1) * len(fill) // 5 if n > 0 else 0
        run(a, fill[nf:m]); nf = max(nf, m)
    a.stamp(8); a.dstamp("c", 9)
    OV = 80
    a("s_cmp_eq_u32 s38, 0")
    a("s_cbranch_scc1 L_keep")
    for rt in range(2):
        for ct in range(5):
            d = AC2 + (ct*2 + rt)*4; o = 16 + 12*rt + 2*ct
            a(f"v_cvt_pk_bf16_f32 v{o}, v{d}, v{d+1}"); a(f"v_cvt_pk_bf16_f32 v{o+1}, v{d+2}, v{d+3}")
        for i in range(3):
            a(f"buffer_store_dwordx4 v[{16+12*rt+4*i}:{19+12*rt+4*i}], v5, s[{SS}:{SS+3}], s41 offen offset:{i*1024} {ST}", tag="P")
        if rt == 0: a("s_add_u32 s41, s41, 3072")
    a("s_barrier")
    for ct in range(5): a(f"ds_read_b128 v[{OV+8*ct}:{OV+8*ct+3}], v14 offset:{ct*1024}")
    a.vmall()
    publish(a, 40, 5, 6, 7)
    a("s_branch L_kept")
    a.label("L_keep")
    a("s_nop 7")
    for ct in range(5): a(f"ds_write_b128 v14, v[{AC2+8*ct+4}:{AC2+8*ct+7}] offset:{ct*1024}")
    a.lgall()
    a("s_barrier")
    a.label("L_kept")
    a.vm = []
    run(a, sp_base(48))
    sp_issue(a, [0], [10])
    a("v_mov_b32 v6, 0x3f80"); a("v_mov_b32 v7, 0x3f800000")
    a.lgall()
    for ct in range(5):
        for k in range(2):
            a(f"v_dot2c_f32_bf16 v{OV+8*ct+2*k}, v{B2+2*ct+k}, v6"); a(f"v_dot2c_f32_bf16 v{OV+8*ct+2*k+1}, v{B2+2*ct+k}, v7")
    a.dstamp("fin", 1)
    sp_check(a, [0], [10], 5)
    a.dstamp("fin", 2)
    for i in range(3): a(f"buffer_load_dwordx4 v[{PV+4*i}:{PV+4*i+3}], v5, s[{SS}:{SS+3}], s49 offen offset:{i*1024} sc1", tag=f"p{i}")
    a("s_barrier")
    SV_, XV, XFF, E = 16, 40, 56, 128
    for ct in range(5):
        a(f"ds_read_b128 v[{SV_+4*ct}:{SV_+4*ct+3}], v208 offset:{ct*64}", tag="s")
        a(f"ds_read_b64 v[{XV+2*ct}:{XV+2*ct+1}], v209 offset:{ct*32}", tag="x")
    a.lgwait("x")
    for i in range(10):
        a(f"v_lshlrev_b32 v{XFF+2*i}, 16, v{XV+i}"); a(f"v_and_b32 v{XFF+2*i+1}, 0xffff0000, v{XV+i}")
    def ov(i): return OV + 8*(i // 4) + i % 4
    for i in range(10):
        a.vmwait(f"p{i//4}")
        if i == 8: a.dstamp("fin", 3)
        a(f"v_dot2c_f32_bf16 v{ov(2*i)}, v{PV+i}, v6"); a(f"v_dot2c_f32_bf16 v{ov(2*i+1)}, v{PV+i}, v7")
    for i in range(20): a(f"v_mul_f32 v{E+i}, {fl(-LOG2E)}, v{ov(i)}")
    for i in range(20): a(f"v_exp_f32 v{E+i}, v{E+i}")
    for i in range(20): a(f"v_mul_f32 v{SV_+i}, v{SV_+i}, v{ov(i)}")
    for i in range(20): a(f"v_add_f32 v{E+i}, 1.0, v{E+i}")
    for i in range(20): a(f"v_rcp_f32 v{E+i}, v{E+i}")
    for ct in range(5):
        for i in range(4*ct, 4*ct + 4): a(f"v_fmac_f32 v{XFF+i}, v{SV_+i}, v{E+i}")
        a(f"v_cvt_pk_bf16_f32 v{XV+2*ct}, v{XFF+4*ct}, v{XFF+4*ct+1}")
        a(f"v_cvt_pk_bf16_f32 v{XV+2*ct+1}, v{XFF+4*ct+2}, v{XFF+4*ct+3}")
        a(f"ds_write_b64 v209, v[{XV+2*ct}:{XV+2*ct+1}] offset:{ct*32}")
    a.lgall()
    a.dstamp("fin", 4)
    a("s_barrier")
    a.stamp(9)
    a.dump(10, SS, S_V, 0, tmp=32)
    a("s_endpgm")

    a.label("L_CB")
    a.lg = []
    a.vm = ["st1"]*10
    a("s_load_dwordx2 s[4:5], s[0:1], 64")
    a("s_waitcnt vmcnt(10)")
    a.stamp(6); a.dstamp("c", 1); a.dstamp("fft", 9); a.dstamp("p", 9)
    a("s_barrier")
    a.stamp(7)
    publish(a, S_LA, 5, 28, 29)
    def bar(j):
        a.vmwait(f"st{j}")
        if j < 8: a.dstamp("c", j + 1)
        a("s_barrier")
    FX = 212; HF = 220
    t = 128
    setup = lines(f"""s_lshr_b32 s{S_C8}, s2, 5
    s_and_b32 s{S_KH}, s2, 1
    v_lshrrev_b32 v{FG}, 4, v1
    v_and_b32 v{FL}, 15, v1
    s_lshl_b32 s62, s{S_RB}, 2
    s_lshl_b32 s63, s{S_KH}, 1
    s_add_u32 s62, s62, s63
    s_mul_i32 s36, s{S_C8}, 80
    s_lshl_b32 s37, s36, 1
    s_sub_u32 s37, 1200, s37
    s_mul_i32 s38, s62, 1280
    s_add_u32 s36, s36, s38
    s_lshl_b32 s38, s{S_W}, 6
    s_mov_b32 s39, {64*1280}
    s_mul_i32 s{S_CB}, s{S_C8}, 40
    s_lshl_b32 s63, s{S_W}, 4
    s_add_u32 s{S_CB}, s{S_CB}, s63
    v_cmp_eq_u32 s[{M_G0}:{M_G0+1}], 0, v{FG}
    v_cmp_eq_u32 s[{M_G2}:{M_G2+1}], 2, v{FG}""")
    for e in range(3):
        setup += lines(f"""v_add_u32 v{t}, s38, v1
        v_add_u32 v{t}, {256*e}, v{t}
        v_mul_u32_u24 v{t+1}, 13108, v{t}
        v_lshrrev_b32 v{t+1}, 16, v{t+1}
        v_mul_u32_u24 v{t+2}, 5, v{t+1}
        v_sub_u32 v{t+2}, v{t}, v{t+2}
        v_bfe_u32 v{t+3}, v{t+1}, 1, 5
        v_mul_lo_u32 v{t+3}, v{t+3}, s39
        v_lshl_add_u32 v{t+3}, v{t+2}, 4, v{t+3}
        v_lshrrev_b32 v{t+2}, 6, v{t+1}
        v_mul_u32_u24 v{t+2}, 1280, v{t+2}
        v_and_b32 v{t+1}, 1, v{t+1}
        v_mul_u32_u24 v{t+1}, s37, v{t+1}
        v_add3_u32 v{t+3}, v{t+3}, v{t+1}, v{t+2}
        v_add_u32 v{FX+e}, s36, v{t+3}""")
    setup += lines(f"""v_mov_b32 v{t}, {BIG}
    v_cmp_gt_u32 vcc, 640, v{t}""".replace(f"v_cmp_gt_u32 vcc, 640, v{t}", f"s_cmp_lt_u32 s{S_W}, 2\n s_cselect_b64 vcc, -1, 0\n v_cndmask_b32 v{FX+2}, v{t}, v{FX+2}, vcc"))
    c = t + 4
    gen = setup + g_head(t) + g_seq(t, 8, 96, 112, lambda m, r: GE + 4*m + r, lambda m, r: GO + 4*m + r,
                                    [4*(j//2) + j % 2 for j in range(8)], (M_G0, M_G2))
    gen += lines(f"""v_lshlrev_b32 v{t}, 6, v{FL}
    v_add_u32 v{t}, s62, v{t}
    v_cvt_f32_u32 v{t}, v{t}
    v_mul_f32 v{t}, {fl(1/2048)}, v{t}
    v_lshlrev_b32 v{t+1}, 1, v{FG}
    v_cvt_f32_u32 v{t+1}, v{t+1}
    v_cvt_f32_u32 v{t+2}, v{FL}
    v_mul_f32 v{t+2}, 0.5, v{t+2}""")
    for y in range(2):
        for tt in range(2):
            if tt: gen.append(f"v_add_f32 v{t}, 0.5, v{t}")
            elif y: gen.append(f"v_add_f32 v{t}, {fl(1/2048 - 0.5)}, v{t}")
            gen.append(f"v_mul_f32 v{t+3}, v{t+1}, v{t}")
            for jj in range(8):
                jo = 8*(jj//4) + (jj % 4)//2
                if jj % 2: gen.append(f"v_add_f32 v{c+jj}, {fl(0.25)}, v{c+jj-1}")
                elif jo: gen.append(f"v_fmamk_f32 v{c+jj}, v{t}, {fl(jo)}, v{t+3}")
                else: gen.append(f"v_mov_b32 v{c+jj}, v{t+3}")
            gen.append(f"v_cndmask_b32 v{c+1}, v{c+1}, v{t+2}, s[{M_G0}:{M_G0+1}]")
            for jj in range(8): gen.append(f"v_cos_f32 v{c+jj}, v{c+jj}")
            for r in range(4): gen.append(f"v_cvt_pk_bf16_f32 v{HF+8*y+4*tt+r}, v{c+2*r}, v{c+2*r+1}")
    gen += lines(f"""v_mul_u32_u24 v6, 320, v{FL}
    s_lshl_b32 s38, s{S_W}, 6
    v_lshl_add_u32 v12, v{FG}, 4, s38
    v_add_u32 v6, {LS}, v6
    v_sub_u32 v13, 304, v12
    v_add_u32 v12, v6, v12
    v_add_u32 v13, v6, v13
    v_bfe_u32 v2, v1, 2, 2
    v_and_b32 v2, 2, v2
    v_and_b32 v3, 1, v{FG}
    v_xor_b32 v2, v2, v3
    v_lshlrev_b32 v2, 4, v2
    v_lshl_add_u32 v2, v{FL}, 6, v2
    v_lshrrev_b32 v3, 1, v{FG}
    v_lshl_add_u32 v2, v3, 11, v2
    v_add_u32 v4, {YB}, v2
    v_add_u32 v2, {YA}, v2
    v_xor_b32 v3, 32, v2
    v_xor_b32 v5, 32, v4""")
    ns = len(setup)
    cut = [0, ns] + [ns + (len(gen) - ns)*k//6 for k in range(1, 7)]
    def part(k): run(a, gen[cut[k]:cut[k+1]])
    def yload(y):
        a(f"""s_add_u32 s{T0}, s62, {y}
        s_mul_i32 s{T0}, s{T0}, 40960
        s_mul_i32 s{T1}, s{S_W}, 10240
        s_add_u32 s{T0}, s{T0}, s{T1}
        s_add_u32 s{T0}, s{T0}, {WS_Y}""")
        for i in range(10):
            if i % 4 == 0:
                a(f"s_add_u32 m0, s{T1}, {(YA, YB)[y] + i*1024}")
                if i: a(f"s_add_u32 s{T0}, s{T0}, 4096")
            a(f"buffer_load_dwordx4 v9, s[{SS}:{SS+3}], s{T0} offen offset:{(i%4)*1024} sc1 lds", tag=f"y{y}")
    st_h(a, 2)
    sp_issue(a, L6, D6)
    part(0)
    bar(1)
    sp_check(a, L6, D6, 3); st_h(a, 3); part(1)
    bar(2)
    st_h(a, 4)
    sp_issue(a, L6, D6); run(a, sp_base(S_HFB)); sp_issue(a, L6, D6A)
    part(2)
    bar(3)
    sp_check(a, L6, D6A, 4); run(a, sp_base(S_HFA)); sp_check(a, L6, D6, 4); st_h(a, 5); part(3)
    bar(4)
    st_h(a, 6)
    sp_issue(a, L6, D6); run(a, sp_base(S_HFB)); sp_issue(a, L6, D6A)
    part(4)
    bar(5)
    a(f"""s_mov_b64 s[{S_MSK}:{S_MSK+1}], 0xfffff
    s_mul_i32 s63, s{S_W}, 2560
    s_add_u32 s63, s63, {F_YF}
    v_lshlrev_b32 v7, 7, v1
    v_lshlrev_b32 v9, 4, v1""")
    poll_issue(a, 7, 63, S_MSK, 10)
    sp_check(a, L6, D6A, 5); run(a, sp_base(S_HFA)); sp_check(a, L6, D6, 5); st_h(a, 7); part(5)
    poll_check(a, 7, 63, 5, S_MSK, 10)
    bar(6)
    st_h(a, 8); yload(0)
    bar(7)
    yload(1); part(6)
    a.vmwait("y0")
    bar(8)
    for e in range(3):
        if e == 2: a(f"s_cmp_ge_u32 s{S_W}, 2"); a("s_cbranch_scc1 L_nx3")
        a(f"s_add_u32 m0, s7, {LX + e*4096}")
        a(f"buffer_load_dwordx4 v{FX+e}, s[{SX}:{SX+3}], 0 offen lds", tag="x")
    a.label("L_nx3")
    YF_ = 96; AC = 144
    def yread(y, m):
        for i in range(4):
            cc, rt = divmod(i, 2)
            b = YF_ + 16*(m % 2) + 4*i
            a(f"ds_read_b128 v[{b}:{b+3}], v{2+2*y+cc} offset:{m*4096 + rt*1024}", tag=f"y{y}_{m}_{i}")
    def idft(y):
        yread(y, 0); yread(y, 1)
        for m in range(10):
            for i in range(4):
                a.lgwait(f"y{y}_{m}_{i}")
                b = YF_ + 16*(m % 2) + 4*i; d = AC + 16*y + 4*i; g = (GE, GO)[i // 2] + 4*m
                a(f"v_mfma_f32_16x16x32_bf16 v[{d}:{d+3}], v[{b}:{b+3}], v[{g}:{g+3}], " + ("0" if m == 0 else f"v[{d}:{d+3}]"))
            if m + 2 < 10: yread(y, m + 2)
    idft(0)
    a.dstamp("fin", 1)
    a.vmall()
    a.stamp(8); a.dstamp("c", 9)
    a("s_barrier")
    a.dstamp("fin", 2)
    a(f"s_cmp_eq_u32 s{S_W}, 3")
    a("s_cbranch_scc1 L_nod")
    idft(1)
    SR = 176
    for y in range(2):
        for i in range(8):
            a(f"v_add_f32 v{96+i}, v{AC+16*y+i}, v{AC+16*y+8+i}")
            a(f"v_sub_f32 v{104+i}, v{AC+16*y+i}, v{AC+16*y+8+i}")
        for side in range(2):
            for r in range(4): a(f"v_cvt_pk_bf16_f32 v{112+8*y+4*side+r}, v{96+8*side+2*r}, v{97+8*side+2*r}")
        for side in range(2):
            for rt in range(2):
                d = SR + 16*y + (side*2 + rt)*4
                a(f"v_mfma_f32_16x16x32_bf16 v[{d}:{d+3}], v[{112+8*y+4*side}:{115+8*y+4*side}], v[{HF+8*y+4*rt}:{HF+8*y+4*rt+3}], 0")
    a(f"""s_cmp_eq_u32 s{S_W}, 2
    s_cselect_b32 exec_hi, 0, -1""")
    for y in range(2):
        for side in range(2):
            for rt in range(2):
                d = SR + 16*y + (side*2 + rt)*4; o = 16 + 4*((y*4 + side*2 + rt) % 8)
                for i in range(4): a(f"v_mul_f32 v{o+i}, {fl(2.0/(2048*640))}, v{d + (3 - i if side else i)}")
                a(f"ds_write_b128 v{12+side}, v[{o}:{o+3}] offset:{y*10240 + rt*5120}")
    a("s_mov_b64 exec, -1")
    a.label("L_nod")
    a(f"""v_add_u32 v9, s7, v9
    s_mov_b32 s6, 2621440
    s_mov_b32 s7, 0x00020000
    v_add_u32 v9, {LX}, v9
    s_waitcnt lgkmcnt(0)""")
    a.dstamp("fin", 3)
    a("s_barrier")
    a("s_barrier")
    a.dstamp("fin", 4)
    for e in range(3): a(f"ds_read_b128 v[{96+4*e}:{99+4*e}], v9 offset:{e*4096}", tag=f"o{e}")
    for e in range(3):
        a.lgwait(f"o{e}")
        a(f"buffer_store_dwordx4 v[{96+4*e}:{99+4*e}], v{FX+e}, s[4:7], 0 offen")
    if a.prof: a.vmall()
    a.dstamp("fin", 5)
    a.stamp(9)
    a.dump(10, SS, S_V, 0, tmp=32)

def fused(prof=False):
    a = Asm(); a.prof = prof
    prologue(a)
    a(f"""s_cmp_lt_u32 s{S_IDX}, 6
    s_cbranch_scc1 L_mlp
    s_sub_u32 s{S_IDX}, s{S_IDX}, 6
    s_cmp_lt_u32 s{S_IDX}, 2
    s_cbranch_scc1 L_dft
    s_add_u32 s{S_IDX}, s{S_IDX}, 4
    s_cmp_lt_u32 s{S_IDX}, 11
    s_cbranch_scc1 L_mlp
    s_sub_u32 s{S_IDX}, s{S_IDX}, 9
    s_branch L_dft""")
    mlp(a)
    dft(a)
    phase_c(a)
    a.label("L_end")
    a("s_endpgm")
    return a

if __name__ == "__main__":
    import sys
    from build import HEAD
    NAME = "recurrent_scan__spectral_gfnet__mixer_channel_mlp__prompt_kernel"
    a = fused("prof" in sys.argv)
    s = HEAD + "; @launch grid=(256,1,1) block=(512,1,1) lds=163840\n"
    s += '.amdgcn_target "amdgcn-amd-amdhsa--gfx950"\n.text\n'
    s += f".globl {NAME}\n.p2align 8\n.type {NAME},@function\n{NAME}:\n" + a.text()
    s += "CODE_END:\n    s_endpgm\n" + '.section .rodata,"a"\n' + kernel_desc(NAME, 256, sgpr=102)
    open(sys.argv[1], "w").write(s)
    print("nops", a.nops, "lines", len(a.lines))
```

```python
from asmlib import *
import os
OPT = dict(recc=7, rpc=0, pfe=1, tpad=2176, ypad=384, ysleep=12, crot=1, stsc="sc1", ht=0, wt=0, sx0=1, outsc="", pfw2=1, sleep=2, rot=1, ntx="", ntw="", n0=1, pf=1)
for kv in os.environ.get("OPT", "").split(","):
    if "=" in kv:
        k, v = kv.split("="); OPT[k] = int(v) if v.lstrip("-").isdigit() else v

WS_H, WS_T, WS_Y, WS_P, WS_F = 0, 0x800000, 0xC00000, 0x1000000, 0x1B00000
WS_S = WS_F + 0x80000
F_CF, WS_CS = WS_F + 0x90000, WS_F + 0xA0000
TS = 163840 + OPT['tpad']; YS = 40960 + OPT['ypad']
WS_SIZE = 0x2000000
F_EP, F_TF, F_YF, F_HB, F_HA, F_PF = WS_F, WS_F + 0x1000, WS_F + 0x4000, WS_F + 0x20000, WS_F + 0x40000, WS_F + 0x60000
F_RF = WS_F + 0x90000
WS_W2 = 0x1400000
ST = "sc1"
K0 = -2.0 * 0.7978845608028654 * 1.4426950408889634
K1C = K0 * 0.044715
LOG2E = 1.4426950408889634
BIG = 0x7f000000
SPIN = 40000

SG, SX, SW, SB, SS = 4, 12, 16, 20, 24
S_TAG = 3
S_V, S_RB, S_IDX, S_ROT = 28, 29, 30, 31
S_SX, S_SBO = 32, 42
S_W, S_SET = 52, 53
T0, T1, T2, T3 = 54, 55, 56, 57
S_LA, S_LB, S_LC = 58, 59, 60
S_PG, S_B1, S_NP, S_M4, S_M2, S_MSK = 61, 66, 71, 72, 73, 74
S_DBG = 100
XSLOT = 81920
S_PK = 44

def srd(a, base, ptr, size):
    a(f"""s_mov_b32 s{base}, s{ptr}
    s_and_b32 s{base+1}, s{ptr+1}, 0xffff
    s_mov_b32 s{base+2}, {size}
    s_mov_b32 s{base+3}, 0x00020000""")

def stats_math(a, vsum, vssq, t0, t1, r1, rr=None):
    a(f"""v_mul_f32 v{vsum}, {fl(1/640)}, v{vsum}
    v_mul_f32 v{vssq}, {fl(1/640)}, v{vssq}
    v_fma_f32 v{t0}, -v{vsum}, v{vsum}, v{vssq}
    v_max_f32 v{t0}, 0, v{t0}
    v_add_f32 v{t1}, {fl(1e-5)}, v{t0}
    v_rsq_f32 v{r1}, v{t1}""")
    if rr is not None:
        a(f"""v_mul_f32 v{t1}, v{r1}, v{r1}
        v_mul_f32 v{t1}, v{t1}, v{t0}
        v_add_f32 v{t1}, {fl(1e-5)}, v{t1}
        v_rsq_f32 v{t1}, v{t1}
        v_mul_f32 v{rr}, v{r1}, v{t1}""")

_uid = [0]
def uid(p):
    _uid[0] += 1
    return f"{p}_{_uid[0]}"

def tag_issue(a, v, vz):
    a(f"v_mov_b32 v{vz}, 0")
    a(f"global_load_dword v{v}, v{vz}, s[{S_DBG}:{S_DBG+1}] sc1", tag="tag")
def tag_check(a, v, vz):
    L = uid("Ltag")
    a.vmwait("tag"); vm = list(a.vm)
    a(f"""s_mov_b32 s{T3}, 0
    {L}:
    v_readfirstlane_b32 s{S_TAG}, v{v}
    s_add_u32 s{T3}, s{T3}, 1
    s_cmp_lg_u32 s{S_TAG}, 0
    s_cbranch_scc1 {L}d
    s_cmp_ge_u32 s{T3}, {SPIN}
    s_cbranch_scc1 {L}d
    s_sleep {OPT['sleep']}
    global_load_dword v{v}, v{vz}, s[{S_DBG}:{S_DBG+1}] sc1
    s_waitcnt vmcnt(0)
    s_branch {L}
    {L}d:
    s_and_b32 s{S_TAG}, s{S_TAG}, -8""")
    a.vm = vm
def pad_op(a, vz):
    a(f"v_mov_b32 v{vz}, 0")
    a(f"global_load_dword v0, v{vz}, s[{S_DBG}:{S_DBG+1}]", tag="pad")
def keep_vm(f):
    def g(a, *x, **k):
        vm = list(a.vm); f(a, *x, **k); a.vm = vm
    return g

def publish(a, soff, cnt, v, vz, t=T3):
    a(f"""s_or_b32 s{t}, s{S_TAG}, {cnt}
    v_mov_b32 v{v}, s{t}
    v_mov_b32 v{vz}, 0
    s_mov_b64 exec, 1""")
    a(f"buffer_store_dword v{v}, v{vz}, s[{SS}:{SS+3}], s{soff} offen {ST}", tag="flag")
    a("s_mov_b64 exec, -1")

def poll_issue(a, voff, soff, smask, v, nload=1, stride=256):
    a(f"s_mov_b64 exec, s[{smask}:{smask+1}]")
    for i in range(nload):
        a(f"buffer_load_dword v{v+i}, v{voff}, s[{SS}:{SS+3}], s{soff} offen offset:{i*stride} sc1", tag="poll")
    a("s_mov_b64 exec, -1")
def poll_check(a, voff, soff, need, smask, v, nload=1, stride=256, sleep=None):
    L = uid("Lpoll")
    a.vmwait("poll")
    vm = list(a.vm)
    a(f"""s_mov_b32 s{T2}, 0
    s_add_u32 s{T3}, s{S_TAG}, {need}
    s_mov_b64 exec, s[{smask}:{smask+1}]
    {L}:""")
    for i in range(nload): a(f"v_subrev_u32 v{v+i}, s{T3}, v{v+i}")
    for i in range(1, nload): a(f"v_max_u32 v{v}, v{v}, v{v+i}")
    a(f"""v_cmp_lt_u32 vcc, {7-need}, v{v}
    s_add_u32 s{T2}, s{T2}, 1
    s_cbranch_vccz {L}d
    s_cmp_ge_u32 s{T2}, {SPIN}
    s_cbranch_scc1 {L}d
    s_sleep {sleep or OPT['sleep']}""")
    for i in range(nload):
        a(f"buffer_load_dword v{v+i}, v{voff}, s[{SS}:{SS+3}], s{soff} offen offset:{i*stride} sc1")
    a(f"""s_waitcnt vmcnt(0)
    s_branch {L}
    {L}d:
    s_mov_b64 exec, -1""")
    a.vm = vm
def poll(a, voff, soff, need, smask, v, nload=1, stride=256):
    poll_issue(a, voff, soff, smask, v, nload, stride); poll_check(a, voff, soff, need, smask, v, nload, stride)

SPB = 8
def sp_base(off):
    return [f"s_add_u32 s{SPB}, s{SS}, s{off}", f"s_addc_u32 s{SPB+1}, s{SS+1}, 0"]
def sp_issue(a, offs, dst):
    for o, d in zip(offs, dst): a(f"s_load_dword s{d}, s[{SPB}:{SPB+1}], {o} glc")
def sp_check(a, offs, dst, needs):
    L = uid("Lsp")
    a(f"""s_mov_b32 s{T2}, 0
    s_add_u32 s{T3}, s{S_TAG}, {needs}
    {L}:
    s_waitcnt lgkmcnt(0)""")
    for d in dst: a(f"s_sub_u32 s{d}, s{d}, s{T3}")
    for d in dst[1:]: a(f"s_max_u32 s{dst[0]}, s{dst[0]}, s{d}")
    a(f"""s_cmp_le_u32 s{dst[0]}, {7-needs}
    s_cbranch_scc1 {L}d
    s_add_u32 s{T2}, s{T2}, 1
    s_cmp_ge_u32 s{T2}, {SPIN}
    s_cbranch_scc1 {L}d
    s_sleep {OPT['sleep']}""")
    sp_issue(a, offs, dst)
    a(f"""s_branch {L}
    {L}d:""")
L6 = [128*i for i in range(6)]
D6 = [10, 11, 42, 43, 50, 51]
D6A = [66, 67, 68, 69, 70, 96]

VXO = 2
def prologue(a):
    a.label("L_first")
    a.stamp(0)
    R = OPT["rot"]
    ROT = {1: f"s_mul_i32 s{T3}, s{T3}, 3\n s_add_u32 s{S_ROT}, s{T3}, s{T1}",
           2: f"s_add_u32 s{T3}, s{T3}, s{T1}\n s_and_b32 s{T3}, s{T3}, 1\n s_mul_i32 s{S_ROT}, s{T3}, 5",
           4: f"s_add_u32 s{T3}, s{T3}, s{T1}\n s_and_b32 s{S_ROT}, s{T3}, 1",
           0: f"s_mov_b32 s{S_ROT}, 0"}[R]
    a(f"""s_load_dwordx2 s[{SX}:{SX+1}], s[0:1], 0
    s_load_dwordx2 s[{SW}:{SW+1}], s[0:1], 32
    s_load_dwordx2 s[{SS}:{SS+1}], s[0:1], 80
    s_load_dwordx2 s[{SB}:{SB+1}], s[0:1], 40
    s_load_dwordx2 s[{S_DBG}:{S_DBG+1}], s[0:1], 72
    s_load_dwordx2 s[8:9], s[0:1], 48
    s_cmp_ge_u32 s2, 256
    s_cbranch_scc1 L_end
    v_lshrrev_b32 v2, 6, v0
    v_and_b32 v1, 63, v0
    v_readfirstlane_b32 s{S_V}, v2""")
    if OPT["pfe"]:
        a(f"""s_and_b32 s{T0}, s2, 1
        s_lshl_b32 s{T0}, s{T0}, 3
        s_lshr_b32 s{T1}, s2, 5
        s_add_u32 s{T0}, s{T0}, s{T1}
        s_bitcmp0_b32 0xe0c0, s{T0}
        s_cbranch_scc1 L_npe
        s_sub_u32 s{T1}, s{S_V}, 1
        s_cmp_ge_u32 s{T1}, 2
        s_cbranch_scc1 L_npe
        s_getpc_b64 s[96:97]
        L_pe:
        s_bfe_u32 s{T0}, s2, 0x20003
        s_lshl_b32 s{T1}, s{T1}, 2
        s_add_u32 s{T0}, s{T0}, s{T1}
        s_lshl_b32 s{T0}, s{T0}, 13
        v_lshl_add_u32 v9, v1, 7, s{T0}
        v_min_u32 v9, CODE_END - L_pe + 384, v9
        global_load_dword v0, v9, s[96:97]
        L_npe:""")
    a(f"""s_mov_b32 s{SX+2}, 2621440
    s_mov_b32 s{SX+3}, 0x00020000
    s_mov_b32 s{SW+2}, 2211840
    s_mov_b32 s{SW+3}, 0x00020000
    s_and_b32 s{T0}, s2, 7
    s_lshr_b32 s{T1}, s2, 3
    s_lshr_b32 s{T2}, s{T0}, 1
    s_lshl_b32 s{T2}, s{T2}, 2
    s_and_b32 s{T3}, s{T1}, 3
    s_add_u32 s{S_RB}, s{T2}, s{T3}
    s_lshr_b32 s{T1}, s{T1}, 2
    s_and_b32 s{T0}, s{T0}, 1
    {ROT}
    s_lshl_b32 s{S_IDX}, s{T0}, 3
    s_add_u32 s{S_IDX}, s{S_IDX}, s{T1}
    s_cmp_ge_u32 s{S_ROT}, 10
    s_cselect_b32 s{T2}, 10, 0
    s_sub_u32 s{S_ROT}, s{S_ROT}, s{T2}
    s_lshl_b32 s{S_SX}, s{S_ROT}, 7
    s_and_b32 s{S_W}, s{S_V}, 3
    s_lshr_b32 s{S_SET}, s{S_V}, 2
    s_lshl_b32 s{S_M4}, s{S_W}, 12
    s_lshl_b32 s{S_M2}, s{S_W}, 11
    v_lshrrev_b32 v6, 3, v1
    v_mul_u32_u24 v6, {64*1280}, v6
    s_lshl_b32 s{T1}, s{S_RB}, 2
    s_add_u32 s{T0}, s{S_W}, s{T1}
    s_mul_i32 s{T0}, s{T0}, 1280
    v_add_u32 v6, s{T0}, v6
    v_and_b32 v7, 7, v1
    v_lshrrev_b32 v8, 4, v1
    v_xor_b32 v7, v7, v8
    v_lshl_add_u32 v{VXO}, v7, 4, v6
    v_xor_b32 v7, 4, v7
    v_lshl_add_u32 v{VXO+1}, v7, 4, v6
    v_add_u32 v{VXO+1}, {8*64*1280}, v{VXO+1}
    v_add_u32 v{VXO+2}, {16*64*1280}, v{VXO}
    v_add_u32 v{VXO+3}, {16*64*1280}, v{VXO+1}
    s_mov_b32 s{SB+2}, 3456
    s_mov_b32 s{SB+3}, 0x00020000
    s_mov_b32 s{SS+2}, {WS_SIZE}
    s_mov_b32 s{SS+3}, 0x00020000""")
    a.vm = []
def code_prefetch(a, v):
    if not OPT["pf"] or OPT["pfe"]: return
    L = uid("Lpf")
    a(f"""s_cmp_lg_u32 s{S_V}, 1
    s_cbranch_scc1 {L}
    s_getpc_b64 s[96:97]
    {L}p:
    s_sub_u32 s96, s96, {L}p - L_first
    s_subb_u32 s97, s97, 0
    s_bfe_u32 s{T0}, s2, 0x30003
    s_lshl_b32 s{T0}, s{T0}, 13
    v_lshl_add_u32 v{v}, v1, 7, s{T0}
    v_min_u32 v{v}, CODE_END - L_first - 128, v{v}""")
    vm = list(a.vm); a(f"global_load_dword v0, v{v}, s[96:97]"); a.vm = vm
    a.label(L)
def sx_table(a):
    for c in range(1, 10):
        a(f"""s_add_u32 s{S_SX+c}, s{S_SX+c-1}, 128
        s_cmp_eq_u32 s{S_SX+c}, 1280
        s_cselect_b32 s{S_SX+c}, 0, s{S_SX+c}""")
def rec_issue(a, voff, v):
    a(f"buffer_load_dwordx4 v[{v}:{v+3}], v{voff}, s[{SS}:{SS+3}], 0 offen sc1", tag="rec")
def rec_check(a, voff, v):
    L = uid("Lrec")
    a.vmwait("rec"); vm = list(a.vm)
    a(f"""s_mov_b32 s{T2}, 0
    s_or_b32 s{T3}, s{S_TAG}, 7
    {L}:
    v_cmp_ne_u32 vcc, s{T3}, v{v+3}
    s_add_u32 s{T2}, s{T2}, 1
    s_cbranch_vccz {L}d
    s_cmp_ge_u32 s{T2}, {SPIN}
    s_cbranch_scc1 {L}d
    s_sleep {OPT['sleep']}
    buffer_load_dwordx4 v[{v}:{v+3}], v{voff}, s[{SS}:{SS+3}], 0 offen sc1
    s_waitcnt vmcnt(0)
    s_branch {L}
    {L}d:""")
    a.vm = vm
def rec_addr(a, v):
    a(f"""s_lshl_b32 s{T0}, s{S_RB}, 11
    s_lshl_b32 s{T1}, s{S_W}, 9
    s_add_u32 s{T0}, s{T0}, s{T1}
    s_add_u32 s{T0}, s{T0}, {WS_S}
    v_and_b32 v{v}, 31, v1
    v_lshl_add_u32 v{v}, v{v}, 4, s{T0}""")

def x_dma(a, c):
    slot = c % 5
    for e in range(4):
        a(f"s_add_u32 m0, s{S_M4}, {XSLOT + slot*16384 + e*1024}")
        a(f"buffer_load_dwordx4 v{VXO+e}, s[{SX}:{SX+3}], s{S_SX+c} offen {OPT['ntx']} lds", tag=f"x{c}")

def panel_order(kh):
    def pidx(P):
        cg, r = divmod(P, 5)
        return r if cg % 2 == 0 else (4 if r == 0 else r - 1)
    ps = sorted(range(27*kh, 27*kh + 27), key=lambda P: (pidx(P), P))
    for n, c in ((9, 1), (15, 2), (21, 3)): assert all(pidx(P) <= c for P in ps[:n])
    return ps
SLOT = [122880, 81920, 0]
S_HFA, S_HFB = 98, 99
VST = 240
def order_table():
    def pack(ps, lo): return sum(p << (6*i) for i, p in enumerate(ps[lo:lo+5]))
    o = []
    for v in range(8):
        for kh in range(2):
            ps = panel_order(kh); r = []
            for lo, hi in ((0, 9), (9, 15), (15, 21), (21, 27)):
                seg = ps[lo:hi]; k = (v * OPT["crot"]) % len(seg)
                r += seg[k:] + seg[:k]
            o += [pack(r, 5*j) for j in range(6)] + [0, 0]
    return o
def st_table(a):
    L = uid("Lot")
    a(f"""s_getpc_b64 s[96:97]
    {L}:
    s_lshr_b32 s{T0}, s2, 5
    s_lshl_b32 s{T1}, s{S_RB}, 1
    s_add_u32 s{T0}, s{T0}, s{T1}
    s_and_b32 s{T0}, s{T0}, 7
    s_lshl_b32 s{T0}, s{T0}, 1
    s_and_b32 s{T1}, s2, 1
    s_add_u32 s{T0}, s{T0}, s{T1}
    s_lshl_b32 s{T0}, s{T0}, 5
    s_add_u32 s{T0}, s{T0}, ORDER_TAB - {L}
    s_add_u32 s96, s96, s{T0}
    s_addc_u32 s97, s97, 0
    s_load_dwordx4 s[{S_PK}:{S_PK+3}], s[96:97], 0
    s_load_dwordx2 s[{S_PK+4}:{S_PK+5}], s[96:97], 16""")
def st_setup(a):
    a(f"""s_and_b32 s{T1}, s2, 1
    s_mul_i32 s{S_HFA}, s{T1}, 640
    s_lshl_b32 s{T0}, s{S_RB}, 2
    s_add_u32 s{T0}, s{T0}, s{S_W}
    s_lshl_b32 s{T1}, s{T0}, 11
    s_add_u32 s{S_HFA}, s{S_HFA}, s{T1}
    s_add_u32 s{S_HFB}, s{S_HFA}, {F_HA}
    s_add_u32 s{S_HFA}, s{S_HFA}, {F_HB}
    s_mul_i32 s{T0}, s{T0}, {54*2048}
    v_lshlrev_b32 v245, 4, v1
    v_add_u32 v{VST}, s{T0}, v245
    s_lshr_b32 s{T0}, s2, 5
    s_mul_i32 s{T0}, s{T0}, {1728*160}
    s_add_u32 s{T0}, s{T0}, {WS_W2}
    v_add_u32 v245, s{T0}, v245""")
    for m in range(4):
        a(f"""s_add_u32 s{T0}, s{S_W}, {4*m}
        s_mul_i32 s{T1}, s{T0}, 52
        s_lshr_b32 s{T1}, s{T1}, 8
        s_mul_i32 s{T1}, s{T1}, 5
        s_sub_u32 s{T1}, s{T0}, s{T1}
        s_lshl_b32 s{T1}, s{T1}, 10""")
        if m == 3: a(f"s_cmp_eq_u32 s{T0}, 15"); a(f"s_cselect_b32 s{T1}, {BIG}, s{T1}")
        a(f"v_add_u32 v{VST+1+m}, s{T1}, v245")
    a(f"""s_mul_i32 s97, s{S_W}, 6144
    s_lshl_b32 s7, s{S_W}, 10
    s_add_u32 s6, s7, 12288
    s_cmp_eq_u32 s{S_W}, 3
    s_cselect_b32 s6, 39936, s6""")
def st_hl(a, s):
    base = SLOT[s % 3]; o = []
    for i in range(3):
        n = 3*s + i
        for e in range(2):
            g = [f"s_bfe_u32 s{T1}, s{S_PK + n//5}, {(6 << 16) | (6*(n % 5))}", f"s_add_u32 m0, s97, {base + 15360 + i*2048}",
                 f"s_lshl_b32 s{T1}, s{T1}, 11"] if e == 0 else []
            g.append(lambda e=e: a(f"buffer_load_dwordx4 v{VST}, s[{SS}:{SS+3}], s{T1} offen offset:{e*1024} {OPT['stsc']} lds", tag=f"st{s}"))
            o.append(g)
    return o
def st_h(a, s):
    for g in st_hl(a, s): run(a, g)
def st_w(a, s):
    base = SLOT[s % 3]; P = [T0, T1, T2]; o = []
    pre = []
    for i in range(3):
        n = 3*s + i
        pre += [f"s_bfe_u32 s{P[i]}, s{S_PK + n//5}, {(6 << 16) | (6*(n % 5))}", f"s_mul_i32 s{P[i]}, s{P[i]}, 5120"]
    for m in range(4):
        g = pre if m == 0 else []
        g = g + [f"s_add_u32 m0, s7, {base + m*4096}" if m < 3 else f"s_add_u32 m0, s6, {base}"]
        if m == 1: g += [f"s_cmp_eq_u32 s{S_W}, 0", f"s_cselect_b32 s{T3}, s{T0}, s{T1}"]
        if m == 2: g += [f"s_cmp_lt_u32 s{S_W}, 2", f"s_cselect_b32 s{T3}, s{T1}, s{T2}"]
        g.append(lambda m=m: a(f"buffer_load_dwordx4 v{VST+1+m}, s[{SS}:{SS+3}], s{[T0, T3, T3, T2][m]} offen {OPT['stsc']} lds", tag=f"st{s}"))
        o.append(g)
    return o
def st_issue(a, s):
    st_h(a, s)
    for g in st_w(a, s): run(a, g)

XF = 96; ACC = (64, 80, 48); RING = 32
CSP = 0; B1L = 2560; RCL = 3072; TAGL = 5120; HB = 8192; SGL = 40960; CSW = 73728
V_XA, V_TR, V_L16, V_HO, V_J16 = 2, 6, 14, 18, 19
V_IRR, V_C0, V_C1 = 15, 16, 17
V_TRD = 24

def common_mlp_regs(a):
    a(f"""v_and_b32 v23, 31, v1
    v_lshrrev_b32 v21, 5, v1
    v_lshlrev_b32 v{V_J16}, 4, v23
    v_lshlrev_b32 v{V_HO}, 4, v1
    v_add_u32 v{V_L16}, s{S_M4}, v{V_HO}""")
def handoff_write(a, acc, buf, qs=range(4)):
    for q in qs:
        a(f"ds_write_b128 v{V_L16}, v[{acc+4*q}:{acc+4*q+3}] offset:{HB + buf*16384 + q*1024}", tag="pub")
def row_consts(a, vm, vrr, XE, t):
    a(f"""v_rcp_f32 v{V_IRR}, v{vrr}
    v_mul_f32 v{V_C0}, {fl(K0)}, v{vrr}
    v_mul_f32 v{V_C1}, v{vrr}, v{vrr}
    v_mul_f32 v{V_C1}, v{V_C1}, v{vrr}
    v_mul_f32 v{V_C1}, {fl(K1C)}, v{V_C1}""")
    if XE is None: return
    a(f"""v_sub_f32 v{vm}, 0, v{vm}
    v_cvt_pk_bf16_f32 v{XE}, v{vm}, v{vm}
    v_cvt_pk_bf16_f32 v{t+1}, v{V_IRR}, v{V_IRR}
    v_and_b32 v{t}, 0xffff0000, v{XE}
    v_and_b32 v{t+1}, 0xffff0000, v{t+1}
    v_sub_f32 v{t}, v{vm}, v{t}
    v_sub_f32 v{t+1}, v{V_IRR}, v{t+1}
    v_cvt_pk_bf16_f32 v{XE+1}, v{t}, v{V_IRR}
    v_cvt_pk_bf16_f32 v{XE+2}, v{t+1}, 0
    v_cmp_gt_u32 vcc, 32, v1
    v_mov_b32 v{XE+3}, 0
    v_cndmask_b32 v{XE}, 0, v{XE}, vcc
    v_cndmask_b32 v{XE+1}, 0, v{XE+1}, vcc
    v_cndmask_b32 v{XE+2}, 0, v{XE+2}, vcc""")
def epi_step(a, pidx, q, acc, U):
    P = acc + 4*q; o = []
    for t in range(4): o.append(f"v_mul_f32 v{U+t}, v{P+t}, v{P+t}")
    for t in range(4): o.append(f"v_fma_f32 v{U+t}, v{U+t}, v{V_C1}, v{V_C0}")
    for t in range(4): o.append(f"v_mul_f32 v{U+t}, v{U+t}, v{P+t}")
    for t in range(4): o.append(f"v_exp_f32 v{U+t}, v{U+t}")
    for t in range(4): o.append(f"v_fma_f32 v{U+t}, v{U+t}, v{V_IRR}, v{V_IRR}")
    for t in range(4): o.append(f"v_rcp_f32 v{U+t}, v{U+t}")
    for t in range(4): o.append(f"v_mul_f32 v{P+t}, v{P+t}, v{U+t}")
    d = P - 2*(q % 2)
    o += [f"v_cvt_pk_bf16_f32 v{d}, v{P}, v{P+1}", f"v_cvt_pk_bf16_f32 v{d+1}, v{P+2}, v{P+3}"]
    if q % 2 == 1:
        o.append(lambda: a(f"buffer_store_dwordx4 v[{P-4}:{P-1}], v{V_HO}, s[{SS}:{SS+3}], s{S_PG+pidx} offen offset:{1024*(q//2)} {ST}", tag=f"h{pidx}"))
    return o
def h_touch(a, regs, v):
    if not OPT["ht"]: return
    a(f"v_lshlrev_b32 v{v}, 7, v1")
    a("s_mov_b64 exec, 0xffff")
    for p in regs: a(f"buffer_load_dword v0, v{v}, s[{SS}:{SS+3}], s{p} offen", tag="pf")
    a("s_mov_b64 exec, -1")
def w_touch(a, v):
    if not OPT["wt"]: return
    a(f"""s_lshr_b32 s{T0}, s2, 5
    s_lshl_b32 s{T0}, s{T0}, 1
    s_and_b32 s{T1}, s2, 1
    s_add_u32 s{T0}, s{T0}, s{T1}
    s_mul_i32 s{T0}, s{T0}, {864*160}
    s_and_b32 s{T1}, s{S_RB}, 3
    s_lshl_b32 s{T1}, s{T1}, 2
    s_add_u32 s{T1}, s{T1}, s{S_W}
    s_mul_i32 s{T1}, s{T1}, {68*128}
    s_add_u32 s{T0}, s{T0}, s{T1}
    s_add_u32 s{T0}, s{T0}, {WS_W2}
    v_lshlrev_b32 v{v}, 7, v1""")
    a(f"buffer_load_dword v0, v{v}, s[{SS}:{SS+3}], s{T0} offen", tag="pf")
    a("s_mov_b64 exec, 0xf")
    a(f"s_add_u32 s{T0}, s{T0}, 8192")
    a(f"buffer_load_dword v0, v{v}, s[{SS}:{SS+3}], s{T0} offen", tag="pf")
    a("s_mov_b64 exec, -1")
def lines(t): return [x.strip() for x in t.strip().split("\n")]
def run(a, l):
    for x in l: x() if callable(x) else a(x)
def hf_addr(a, dst, second):
    a(f"""s_lshl_b32 s{dst}, s{S_RB}, 2
    s_add_u32 s{dst}, s{dst}, s{S_W}
    s_lshl_b32 s{dst}, s{dst}, 4
    s_add_u32 s{dst}, s{dst}, s{S_IDX}
    s_lshl_b32 s{dst}, s{dst}, 7
    s_add_u32 s{dst}, s{dst}, {F_HA if second else F_HB}""")

def mlp(a):
    a.label("L_mlp")
    a(f"""s_mul_i32 s{T0}, s{S_IDX}, 5
    s_add_u32 s{T0}, s{T0}, 1
    s_lshr_b32 s{T0}, s{T0}, 1
    s_lshl_b32 s{S_LA}, s{T0}, 7
    s_cmp_eq_u32 s{S_SET}, 0
    s_cbranch_scc1 L_mlpA""")
    def mlp_scalars():
        a(f"""s_add_u32 s{S_LB}, s{S_LA}, 128
        s_add_u32 s{S_LC}, s{S_LA}, 256
        s_sub_u32 s{T0}, s{S_LA}, 64
        s_bitcmp1_b32 s{S_IDX}, 0
        s_cselect_b32 s{S_LC}, s{T0}, s{S_LC}
        s_cmp_eq_u32 s{S_IDX}, 10
        s_cselect_b32 s{S_NP}, 4, 5""")
    COLS = ((S_LA, 0), (S_LA, 64), (S_LB, 0), (S_LB, 64), (S_LC, 0))
    def panel_scalars(ps):
        a(f"""s_lshl_b32 s{T2}, s{S_RB}, 2
        s_add_u32 s{T2}, s{T2}, s{S_W}
        s_mul_i32 s{T2}, s{T2}, {54*2048}""")
        for p in ps:
            base, add = COLS[p]
            a(f"""s_add_u32 s{T0}, s{base}, {add}
            s_lshl_b32 s{S_PG+p}, s{T0}, 5
            s_add_u32 s{S_PG+p}, s{S_PG+p}, s{T2}""")
    VBP, VBS, VB1 = 6, 8, 9
    a(f"""v_lshrrev_b32 v{VBP}, 3, v1
    s_lshl_b32 s{T0}, s{S_W}, 4
    v_add_u32 v{VBP}, s{T0}, v{VBP}
    v_mul_u32_u24 v{VBP}, 3456, v{VBP}
    v_bfe_u32 v23, v1, 4, 1
    v_lshlrev_b32 v23, 2, v23
    v_and_b32 v24, 7, v1
    v_xor_b32 v23, v23, v24
    v_lshl_add_u32 v{VBP}, v23, 4, v{VBP}
    v_add_u32 v{VBP+1}, {8*3456}, v{VBP}""")
    a.dstamp("st", 1)
    a("s_waitcnt lgkmcnt(0)")
    a.dstamp("st", 2)
    def b_dma(c, region, sline, tag):
        a(f"s_mul_i32 s{T0}, s{S_SX+c}, 1728")
        a(f"s_add_u32 s{T0}, s{T0}, s{sline}")
        for e in range(2):
            a(f"s_add_u32 m0, s{S_M2}, {region + c*8192 + e*1024}")
            a(f"buffer_load_dwordx4 v{VBP+e}, s[{SW}:{SW+3}], s{T0} offen {OPT['ntw']} lds", tag=tag)
    def chunk(c):
        x_dma(a, c); b_dma(c, 0, S_LA, f"x{c}")
    n0 = OPT["n0"]
    chunk(0)
    a.dstamp("st", 3)
    sx_table(a)
    for c in range(1, n0): chunk(c)
    a(f"""v_lshrrev_b32 v{VBS}, 2, v1
    s_lshl_b32 s{T0}, s{S_W}, 4
    v_add_u32 v{VBS}, s{T0}, v{VBS}
    v_mul_u32_u24 v{VBS}, 3456, v{VBS}
    v_and_b32 v23, 3, v1
    v_lshl_add_u32 v{VBS}, v23, 4, v{VBS}""")
    mlp_scalars()
    panel_scalars(range(5))
    common_mlp_regs(a)
    hf_addr(a, 31, 0)
    a(f"""s_mul_i32 s{T0}, s{S_RB}, 10
    s_lshl_b32 s{T1}, s{S_RB}, 3
    s_cmp_eq_u32 s{S_IDX}, 10
    s_cselect_b32 s{T0}, s{T1}, s{T0}
    s_cselect_b32 s{T2}, 20, 40
    s_add_u32 s{T2}, s{T2}, 60
    s_mul_i32 s{T1}, s{S_IDX}, 160
    s_add_u32 s{T0}, s{T0}, s{T1}
    s_mul_i32 s66, s{T0}, 1280
    s_mul_i32 s67, s{T0}, 160
    s_add_u32 s67, s67, {WS_W2}
    s_mov_b32 s92, s8
    s_mov_b32 s93, s9
    s_mov_b32 s94, 2211840
    s_mov_b32 s95, 0x00020000
    s_lshl_b32 s{T3}, s{S_W}, 6
    s_mov_b32 s{T1}, {1728*160}
    v_add_u32 v176, s{T3}, v1
    v_mov_b32 v180, {BIG}""")
    for i in range(4):
        a(f"""v_add_u32 v177, {256*i}, v176
        v_mul_u32_u24 v178, 5243, v177
        v_lshrrev_b32 v178, 19, v178
        v_mul_u32_u24 v179, 100, v178
        v_sub_u32 v177, v177, v179
        v_cmp_gt_u32 vcc, s{T2}, v177
        v_lshlrev_b32 v179, 4, v177
        v_mad_u32_u24 v179, v178, s{T1}, v179
        v_cndmask_b32 v{188+i}, v180, v179, vcc
        v_mul_u32_u24 v179, 205, v177
        v_lshrrev_b32 v179, 11, v179
        v_mul_u32_u24 v181, 10, v179
        v_sub_u32 v177, v177, v181
        v_mul_u32_u24 v178, 80, v178
        v_sub_u32 v181, 1120, v178
        v_cmp_gt_u32 vcc, 5, v177
        v_cndmask_b32 v178, v181, v178, vcc
        v_lshl_add_u32 v178, v177, 4, v178
        v_mad_u32_u24 v{184+i}, v179, s{T2+100}, v178""".replace(f"s{T2+100}", "v182"))
    a.lines.insert(len(a.lines) - 4*19, "    v_mov_b32 v182, 1280")
    a(f"""s_cmp_eq_u32 s{S_W}, 0
    s_cselect_b32 vcc_lo, -1, 0
    s_mov_b32 vcc_hi, 0
    v_cndmask_b32 v187, v180, v187, vcc
    v_cndmask_b32 v191, v180, v191, vcc""")
    a(f"""s_lshl_b32 s69, s{S_IDX}, 4
    s_add_u32 s69, s69, s{S_RB}
    s_lshl_b32 s69, s69, 7
    s_add_u32 s69, s69, {F_RF}
    s_cmp_eq_u32 s{S_W}, 0
    s_cselect_b32 s69, s69, {BIG}
    s_lshl_b32 s30, s{S_IDX}, 11
    s_add_u32 s30, s30, {F_RF}
    s_mov_b64 s[{S_MSK}:{S_MSK+1}], 0xffff
    v_lshlrev_b32 v11, 7, v1""")
    st_table(a); st_setup(a)
    run(a, sp_base(S_HFA))
    nxt = n0
    a.dstamp("st", 4)
    for c in range(11):
        if 1 <= c <= 9: a.dstamp("bar", c)
        if c < 10: a.vmwait(f"x{c}")
        if 1 <= c <= 9: a.dstamp("bar2", c)
        if c == 10: a.dstamp("p", 1)
        if c < 4: a.dstamp("st", 5 + c)
        a("s_barrier")
        if c == 0: a.stamp(1)
        k = 0
        while nxt <= min(c + 4, 9) and k < 2:
            chunk(nxt); nxt += 1; k += 1
        if c >= 6:
            m = c - 6
            b_dma(2*m, XSLOT, S_LB, f"p{m}"); b_dma(2*m + 1, XSLOT, S_LB, f"p{m}")
        if c == OPT['rpc']:
            for i in range(4): a(f"buffer_load_dwordx4 v[{160+4*i}:{163+4*i}], v{184+i}, s[92:95], s66 offen", tag="rp")
        if 7 <= c <= 10:
            i = c - 7
            a.vmwait("rp")
            a(f"buffer_store_dwordx4 v[{160+4*i}:{163+4*i}], v{188+i}, s[{SS}:{SS+3}], s67 offen {ST}", tag="rq")
    a(f"s_mov_b32 s{S_LA}, s31")
    a(f"""s_lshl_b32 s{T0}, s{S_W}, 9
    v_add_u32 v22, s{T0}, v{V_J16}""")
    a.vmwait(["p0", "p1", "p2", "p3"])
    a.dstamp("p", 2); a("s_barrier"); a.dstamp("p", 3)
    a.stamp(2)
    AR = {1: 80, 2: 96, 3: 112, 4: 128}
    def rd_acc(p, qs=range(4)):
        for q in qs:
            a(f"ds_read_b128 v[{AR[p]+4*q}:{AR[p]+4*q+3}], v{V_L16} offset:{HB + (p % 2)*16384 + q*1024}", tag=f"acc{p}_{q}")
    def sg(c):
        a(f"s_mul_i32 s{T0}, s{S_SX+c}, 1728")
        a(f"s_add_u32 s{T0}, s{T0}, s{S_LC}")
        a(f"s_add_u32 m0, s{T1}, {SGL + c*4096}")
        a(f"buffer_load_dwordx4 v{VBS}, s[{SW}:{SW+3}], s{T0} offen {OPT['ntw']} lds", tag="sg")
    def step(p, q):
        a.lgwait(f"acc{p}_{q}"); run(a, epi_step(a, p, q, AR[p], 60))
    a(f"ds_read_b128 v[24:27], v22 offset:{RCL}", tag="acc1_0")
    rd_acc(1)
    a(f"s_lshr_b32 s{T1}, s{S_M2}, 1")
    sg(0); sg(1)
    a.lgwait("acc1_0")
    a(f"""v_mov_b32 v{V_IRR}, v25
    v_mov_b32 v{V_C0}, v26
    v_mov_b32 v{V_C1}, v27
    v_readfirstlane_b32 s{S_TAG}, v24""")
    step(1, 0); sg(2); sg(3); step(1, 1)
    a.vmwait(["p4", "rq"]); a.lgall(); a.dstamp("p", 4); a("s_barrier")
    publish(a, 69, 5, 28, 29)
    sg(4); sg(5); step(1, 2); sg(6); sg(7); step(1, 3); sg(8); sg(9)
    a.dstamp("p", 5); a("s_barrier")
    rd_acc(2)
    step(2, 0); step(2, 1)
    poll_issue(a, 11, 30, S_MSK, 10)
    step(2, 2)
    poll_check(a, 11, 30, 5, S_MSK, 10)
    a.vmwait(["sg", "h1"]); a.dstamp("p", 6); a("s_barrier")
    publish(a, S_LA, 2, 28, 29); h_touch(a, (S_PG, S_PG + 1), 30)
    step(2, 3)
    a.dstamp("p", 7); a("s_barrier"); a.stamp(3)
    rd_acc(3, (2, 3))
    step(3, 2); sp_issue(a, L6, D6); step(3, 3)
    a.vmwait("h2"); publish(a, S_LA, 3, 28, 29)
    sp_check(a, L6, D6, 2)
    st_issue(a, 0); h_touch(a, (S_PG + 2,), 30); w_touch(a, 30)
    a(f"s_cmp_eq_u32 s{S_NP}, 4")
    a("s_cbranch_scc1 L_mlpB4")
    a.dstamp("p", 8); a("s_barrier")
    a.stamp(4)
    rd_acc(4, (2, 3)); step(4, 2); step(4, 3)
    a("s_branch L_CB")
    a.label("L_mlpB4")
    a("s_barrier")
    a("s_branch L_CB")

    a.label("L_mlpA")
    a.vm = []; a.lg = []
    a(f"""s_setprio 1
    s_memrealtime s[44:45]
    s_or_b32 s{T1}, s2, s{S_V}
    s_cmp_lg_u32 s{T1}, 0
    s_waitcnt lgkmcnt(0)
    s_cbranch_scc1 L_notag
    s_lshl_b32 s44, s44, 3
    s_or_b32 s44, s44, 1
    v_mov_b32 v9, 0
    v_mov_b32 v8, s44
    global_store_dword v9, v8, s[{S_DBG}:{S_DBG+1}] sc1
    L_notag:
    s_lshl_b32 s{T3}, s{S_W}, 2
    v_and_b32 v13, 15, v1
    v_mov_b32 v180, {BIG}
    s_lshl_b32 s{T1}, s{S_IDX}, 4
    s_add_u32 s{S_PG+2}, s{T1}, s{T3}
    v_lshrrev_b32 v10, 4, v1
    v_add_u32 v10, s{S_PG+2}, v10              ; R = 16*cg + 4*w + l/16
    v_and_b32 v11, 31, v10
    v_mul_u32_u24 v11, {64*1280}, v11
    v_bfe_u32 v12, v10, 5, 2
    s_lshl_b32 s{T1}, s{S_RB}, 2
    v_add_u32 v12, s{T1}, v12
    v_mul_u32_u24 v12, 1280, v12
    v_lshl_add_u32 v12, v13, 4, v12
    v_add_u32 v204, v11, v12
    s_cmp_ge_u32 s{S_IDX}, 8
    s_cselect_b32 s31, {BIG}, 0
    s_mul_i32 s42, s{S_RB}, 40
    s_mul_i32 s{T1}, s{S_W}, 10
    s_add_u32 s42, s42, s{T1}
    s_mul_i32 s42, s42, 3456
    s_mul_i32 s{T1}, s{S_IDX}, 320
    s_add_u32 s42, s42, s{T1}
    v_lshrrev_b32 v21, 5, v1
    v_and_b32 v23, 31, v1
    v_mul_u32_u24 v12, 3456, v21
    v_lshl_add_u32 v205, v23, 4, v12""")
    a.vm = []
    if OPT["sx0"]:
        for it in range(5): a(f"buffer_load_dwordx4 v[{228+4*it}:{231+4*it}], v204, s[{SX}:{SX+3}], s31 offen offset:{256*it}", tag="sx")
    code_prefetch(a, 30)
    mlp_scalars()
    panel_scalars([0, 3, 4])
    common_mlp_regs(a)
    a(f"""s_cmp_eq_u32 s{S_W}, 0
    s_cselect_b32 s{T0}, s{S_LA}, s{S_LB}
    s_cmp_ge_u32 s{S_W}, 2
    s_cselect_b32 s{T0}, s{S_LC}, s{T0}
    v_lshl_add_u32 v203, v1, 1, s{T0}""")
    a(f"""v_bfe_u32 v25, v1, 1, 3
    v_xor_b32 v25, v25, v21
    s_lshl_b32 s{T0}, s{S_W}, 5
    v_add_u32 v26, s{T0}, v23
    v_lshlrev_b32 v26, 7, v26
    v_lshl_add_u32 v26, v25, 4, v26
    v_add_u32 v{V_XA}, {XSLOT}, v26
    v_xor_b32 v{V_XA+1}, 32, v{V_XA}
    v_xor_b32 v{V_XA+2}, 64, v{V_XA}
    v_xor_b32 v{V_XA+3}, 96, v{V_XA}
    v_bfe_u32 v25, v1, 2, 2
    v_lshl_add_u32 v27, v21, 3, v25
    v_bfe_u32 v28, v1, 4, 1
    v_lshlrev_b32 v28, 5, v28
    v_and_b32 v29, 3, v1
    v_lshl_add_u32 v28, v29, 3, v28
    v_lshl_add_u32 v{V_TRD}, v27, 6, v28
    v_add_u32 v{V_TRD}, {SGL}, v{V_TRD}
    v_lshl_add_u32 v27, v27, 7, v28
    v_lshrrev_b32 v25, 1, v25
    v_lshl_add_u32 v{V_TR}, v25, 6, v27
    v_xor_b32 v{V_TR+1}, 64, v{V_TR}
    v_lshlrev_b32 v9, 1, v23
    v_mov_b32 v8, 0x05040100
    v_mov_b32 v200, 0x3f80
    v_mov_b32 v201, 0x3f800000
    v_mov_b32 v202, 0x3f803f80
    s_lshl_b32 s{T1}, s{S_IDX}, 4
    s_add_u32 s{T2}, s{T1}, s{S_RB}
    s_mul_i32 s{T2}, s{T2}, 896
    s_add_u32 s{T2}, s{T2}, {WS_CS}
    s_cmp_eq_u32 s{S_W}, 0
    s_cselect_b32 s{S_PG+1}, s{T2}, {BIG}
    s_lshl_b32 s{T0}, s{S_W}, 2
    s_mul_i32 s{S_PG+2}, s{S_PG+2}, 896
    s_add_u32 s{S_PG+2}, s{S_PG+2}, {WS_CS}
    s_and_b32 s{T1}, s{T1}, 16
    s_mul_i32 s{T1}, s{T1}, 128
    v_mul_u32_u24 v12, 48, v1
    v_add_u32 v12, s{T1}, v12""")
    for i in range(3):
        a(f"""v_add_u32 v{25+i}, {16*i}, v12
        v_subrev_u32 v28, 2560, v{25+i}
        v_min_u32 v{25+i}, v{25+i}, v28
        v_add_u32 v{25+i}, s{T0}, v{25+i}""")
    a(f"""s_lshl_b32 s{T0}, s{S_RB}, 11
    s_add_u32 s{T0}, s{T0}, {WS_S}
    s_add_u32 s{T0}, s{T0}, s31
    v_lshl_add_u32 v10, v10, 4, s{T0}
    v_cmp_eq_u32 vcc, 0, v13
    v_cndmask_b32 v16, v180, v10, vcc
    v_mul_u32_u24 v21, 12, v1
    v_add_u32 v21, {CSW}, v21
    s_mul_i32 s{T0}, s{S_W}, 640
    v_lshl_add_u32 v22, v1, 5, s{T0}
    v_add_u32 v22, {CSW}, v22
    s_lshl_b32 s{T0}, s{S_W}, 7
    v_lshl_add_u32 v23, v1, 1, s{T0}
    v_mov_b32 v10, 0
    v_mov_b32 v11, 0""")
    for i in range(8): a(f"v_mov_b32 v{248+i}, 0")
    hf_addr(a, S_LA, 1)
    st_table(a)
    rec_addr(a, 15)
    a.dstamp("st", 3)
    if OPT["sx0"]: tag_issue(a, 13, 17)
    else:
        for it in range(5): a(f"buffer_load_dwordx4 v[{228+4*it}:{231+4*it}], v204, s[{SX}:{SX+3}], s31 offen offset:{256*it}", tag="sx")
    a("s_mov_b32 exec_lo, 0xfffff"); a("s_mov_b32 exec_hi, 0xfffff")
    for it in range(5):
        a(f"buffer_load_dwordx4 v[{208+4*it}:{211+4*it}], v205, s[{SW}:{SW+3}], s42 offen", tag="cx")
        if it < 4: a(f"s_add_u32 s42, s42, {2*3456}")
    a("s_mov_b64 exec, -1")
    a(f"buffer_load_ushort v20, v203, s[{SB}:{SB+3}], 0 offen", tag="b1")
    if not OPT["sx0"]: tag_issue(a, 13, 17)
    def job_cs():
        a.vmwait("cx")
        for r in range(20):
            a(f"v_dot2c_f32_bf16 v{248+2*(r%4)}, v{208+r}, v200"); a(f"v_dot2c_f32_bf16 v{249+2*(r%4)}, v{208+r}, v201")
        for i in range(8): a(f"v_mov_b32 v{192+i}, v{248+i}")
        for i in range(8): a(f"v_permlane32_swap_b32 v{192+i}, v{248+i}")
        for i in range(8): a(f"v_add_f32 v{248+i}, v{248+i}, v{192+i}")
        a("s_mov_b64 exec, 0xfffff")
        a("ds_write_b128 v22, v[248:251]", tag="cw"); a("ds_write_b128 v22, v[252:255] offset:16", tag="cw")
        a("s_mov_b64 exec, -1")
        a.lgwait("cw")
    def job_st():
        a.vmwait("sx")
        for r in range(20):
            a(f"v_dot2c_f32_bf16 v10, v{228+r}, v202"); a(f"v_dot2c_f32_bf16 v11, v{228+r}, v{228+r}")
        for sh in (8, 4, 2, 1):
            for r in (10, 11): a(f"v_add_f32_dpp v{r}, v{r}, v{r} row_ror:{sh} row_mask:0xf bank_mask:0xf")
        stats_math(a, 10, 11, 192, 193, 12, 11)
        tag_check(a, 13, 17)
        a(f"v_or_b32 v13, 7, v13")
        a(f"buffer_store_dwordx4 v[10:13], v16, s[{SS}:{SS+3}], 0 offen {ST}")
    CR = 240
    def sum4():
        for i in range(3):
            a(f"v_add_f32 v{CR+i}, v{CR+i}, v{CR+4+i}"); a(f"v_add_f32 v{CR+8+i}, v{CR+8+i}, v{CR+12+i}")
        for i in range(3): a(f"v_add_f32 v{CR+i}, v{CR+i}, v{CR+8+i}")
    def csi():
        for i in range(4): a(f"buffer_load_dwordx4 v[{CR+4*i}:{CR+3+4*i}], v{V_HO}, s[{SS}:{SS+3}], s{S_PG+2} offen offset:{896*i} sc1", tag="csi")
    def job_in():
        L = uid("Lcs")
        a.vmwait("csi"); vm = list(a.vm)
        a(f"""s_mov_b32 s{T2}, 0
        s_or_b32 s{T3}, s{S_TAG}, 7
        s_mov_b32 exec_hi, 0x3fffff
        {L}:
        v_xor_b32 v{CR+3}, s{T3}, v{CR+3}
        v_xor_b32 v{CR+7}, s{T3}, v{CR+7}
        v_xor_b32 v{CR+11}, s{T3}, v{CR+11}
        v_xor_b32 v{CR+15}, s{T3}, v{CR+15}
        v_or3_b32 v{CR+3}, v{CR+3}, v{CR+7}, v{CR+11}
        v_or_b32 v{CR+3}, v{CR+3}, v{CR+15}
        v_cmp_ne_u32 vcc, 0, v{CR+3}
        s_add_u32 s{T2}, s{T2}, 1
        s_cbranch_vccz {L}d
        s_cmp_ge_u32 s{T2}, {SPIN}
        s_cbranch_scc1 {L}d
        s_sleep {OPT['sleep']}""")
        csi()
        a(f"""s_waitcnt vmcnt(0)
        s_branch {L}
        {L}d:""")
        a.vm = vm
        sum4()
        for i in range(3):
            if i == 1: a("s_mov_b32 exec_hi, 0x1fffff")
            a(f"ds_write_b32 v{25+i}, v{CR+i} offset:{CSP}")
        a("s_mov_b64 exec, -1")
    def we_read(p, T, t):
        a(f"ds_read_b128 v[{T}:{T+3}], v{V_J16} offset:{CSP + 512*p}", tag=f"we{p}")
        a(f"ds_read_u16 v{t}, v9 offset:{B1L + 64*p}", tag=f"we{p}")
    def we_build(p, T, t):
        return [lambda: a.lgwait(f"we{p}")] + lines(f"""v_add_f32 v{T}, v{T}, v{T+1}
        v_add_f32 v{T+2}, v{T+2}, v{T+3}
        v_add_f32 v{T}, v{T}, v{T+2}
        v_cvt_pk_bf16_f32 v{T+1}, v{T}, v{T}
        v_and_b32 v{T+2}, 0xffff0000, v{T+1}
        v_sub_f32 v{T+2}, v{T}, v{T+2}
        v_cvt_pk_bf16_f32 v{T}, v{T}, v{T+2}
        v_perm_b32 v{T+1}, v{t}, v{T+1}, v8
        v_mov_b32 v{T+2}, v{t}
        v_mov_b32 v{T+3}, 0""")
    def X(c):
        slot = c % 5
        if slot == 4:
            for s in range(4): a(f"v_add_u32 v{V_XA+s}, 16384, v{V_XA+s}")
        for s in range(4):
            k = 4*c + s
            a(f"ds_read_b128 v[{XF+4*k}:{XF+4*k+3}], v{V_XA+s} offset:{min(slot,3)*16384}", tag=f"X{c}")
        if slot == 4 and c < 9:
            for s in range(4): a(f"v_subrev_u32 v{V_XA+s}, 16384, v{V_XA+s}")
    def R(k):
        if k == 32:
            a(f"v_add_u32 v{V_TR}, 65536, v{V_TR}"); a(f"v_add_u32 v{V_TR+1}, 65536, v{V_TR+1}")
        off = (k % 32) * 2048
        b = RING + 8*(k % 4)
        for hf in range(2):
            a(f"ds_read_b64_tr_b16 v[{b+4*hf}:{b+4*hf+1}], v{V_TR+hf} offset:{off}", tag=f"R{k}")
            a(f"ds_read_b64_tr_b16 v[{b+4*hf+2}:{b+4*hf+3}], v{V_TR+hf} offset:{off+512}", tag=f"R{k}")
    def MM(acc, A, B, src): a(f"v_mfma_f32_32x32x16_bf16 v[{acc}:{acc+15}], v[{A}:{A+3}], v[{B}:{B+3}], " + ("0" if src == 0 else f"v[{acc}:{acc+15}]"))
    XEA = 2
    if OPT["sx0"]: job_st()
    a.dstamp("st", 4)
    a("s_barrier")
    a.stamp(1)
    X(0); R(0); R(1); R(2)
    a.lgwait("X0")
    for c in range(1, 11):
        if c <= 9: a.dstamp("bar", c); a.dstamp("bar2", c)
        if c == 10: a.dstamp("p", 1)
        a("s_barrier")
        if c <= 9: X(c)
        if c == 3 - OPT["sx0"]:
            for i in range(4):
                for j in range(3): a(f"ds_read_b32 v{CR+4*i+j}, v21 offset:{i*640 + 4*j}", tag="co")
        if c == 10:
            we_read(1, 28, 26); we_read(0, 20, 25)
        for s in range(4):
            k = 4*(c - 1) + s
            a.lgwait(f"R{k}")
            b = RING + 8*s
            for hf in range(2): MM(ACC[hf], b + 4*hf, XF + 4*k, k)
            if k + 3 < 40: R(k + 3)
            if c == 1 and s == 3 and not OPT["sx0"]: job_st()
            if c == 2 - OPT["sx0"] and s == 3: job_cs()
            if c == 3 - OPT["sx0"] and s == 1:
                a.lgwait("co"); sum4()
                a(f"v_mov_b32 v{CR+3}, v13"); a("s_mov_b32 exec_hi, 0x3fffff")
                a(f"buffer_store_dwordx4 v[{CR}:{CR+3}], v{V_HO}, s[{SS}:{SS+3}], s{S_PG+1} offen {ST}")
                a("s_mov_b64 exec, -1")
            if c == 6 and s == 0:
                a("s_mov_b32 exec_hi, 0x3fffff"); csi(); a("s_mov_b64 exec, -1")
                rec_issue(a, 15, 10)
            if c == 7 and s == 0: a(f"ds_write_b16 v23, v20 offset:{B1L}")
            if c == 8 and s == 3: job_in()
            if c == 9 and s == 1:
                rec_check(a, 15, 10); row_consts(a, 10, 11, XEA, 12)
                a(f"""s_lshl_b32 s{T0}, s{S_W}, 9
                v_add_u32 v12, s{T0}, v{V_J16}
                v_mov_b32 v13, s{S_TAG}
                ds_write_b128 v12, v[14:17] offset:{RCL}
                ds_write_b32 v12, v13 offset:{RCL}""")
            if c == 10 and s == 0: run(a, we_build(1, 28, 26))
            if c == 10 and s == 1:
                run(a, we_build(0, 20, 25))
                for hf in range(2): a(f"v_add_u32 v{V_TR+hf}, {XSLOT - 65536}, v{V_TR+hf}")
            if c == 10 and s == 2:
                MM(ACC[1], 28, XEA, 1); MM(ACC[0], 20, XEA, 1)
                we_read(2, 28, 26)
    run(a, we_build(2, 28, 26))
    handoff_write(a, ACC[1], 1)
    a.lgall()
    a.dstamp("p", 2); a("s_barrier"); a.dstamp("p", 3)
    a.stamp(2)
    SL = [32, 36, 40, 44, 20]
    def R2(n):
        p, k = divmod(n, 40)
        b = SL[n % 5]
        if p < 2:
            vb = V_TR + p
            if k == 32: a(f"v_add_u32 v{vb}, 65536, v{vb}")
            off = (k % 32) * 2048; d = 512
        else:
            vb = V_TRD; off = k * 1024; d = 256
        a(f"ds_read_b64_tr_b16 v[{b}:{b+1}], v{vb} offset:{off}", tag=f"Q{n}")
        a(f"ds_read_b64_tr_b16 v[{b+2}:{b+3}], v{vb} offset:{off+d}", tag=f"Q{n}")
    for n in range(4): R2(n)
    PA = [ACC[1], ACC[2], ACC[0]]
    own0 = sum([epi_step(a, 0, q, ACC[0], 10) for q in range(4)], [])
    own3 = sum([epi_step(a, 3, q, ACC[2], 10) for q in range(2)], [])
    n0 = n3 = 0
    wb = []
    for n in range(120):
        p, k = divmod(n, 40)
        if n in (46, 50, 54, 58, 62, 66, 70, 74, 78): a.dstamp("n1", 1 + (n - 46)//4)
        if n in (86, 90, 94, 98, 102, 106, 110, 114, 119): a.dstamp("n2", 1 + (n - 86)//4)
        if n in (0, 4, 8, 12, 16, 24, 30, 36, 42): a.dstamp("n0", 1 + [0, 4, 8, 12, 16, 24, 30, 36, 42].index(n))
        if n == 28: a.dstamp("p", 4); a("s_barrier")
        if k == 0: MM(PA[p], 28, XEA, 0)
        a.lgwait(f"Q{n}")
        MM(PA[p], SL[n % 5], XF + 4*k, 1)
        if n + 4 < 120: R2(n + 4)
        if n in (2, 56):
            we_read(3 + n//40, 28, 26); wb = we_build(3 + n//40, 28, 26)
        if n % 40 >= 20 and wb: run(a, wb[:1 + callable(wb[0])]); wb = wb[1 + callable(wb[0]):]
        if n < 44:
            m = (n + 1) * len(own0) // 44
            run(a, own0[n0:m]); n0 = m
        if 44 <= n < 48: handoff_write(a, ACC[1], 0, (n - 44,))
        if n == 51: a.lgwait("pub"); a.dstamp("p", 5); a("s_barrier")
        if n == 75: a.vmwait("h0"); a.dstamp("p", 6); a("s_barrier")
        if n == 79:
            a(f"s_cmp_eq_u32 s{S_NP}, 4")
            a("s_cbranch_scc1 L_np4")
        if n in (83, 84): handoff_write(a, ACC[2], 1, (n - 81,))
        if n == 88:
            a.lgwait("pub"); a.dstamp("p", 7); a("s_barrier"); a.stamp(3)
        if 85 <= n < 117:
            m = (n - 84) * len(own3) // 32
            run(a, own3[n3:m]); n3 = m
    handoff_write(a, ACC[0], 0, (2, 3))
    a.lgall(); a.dstamp("p", 8); a("s_barrier"); a.stamp(4)
    for q in (0, 1): run(a, epi_step(a, 4, q, ACC[0], 10))
    a(f"s_mov_b32 s{S_LB}, s{S_LA}")
    a("s_waitcnt vmcnt(1)")
    a("s_branch L_CA")
    a.label("L_np4")
    a("s_nop 15")
    handoff_write(a, ACC[2], 1, (2, 3))
    a.lgall(); a.dstamp("p", 7); a("s_barrier")
    run(a, own3)
    a(f"s_mov_b32 s{S_LB}, s{S_LA}")
    a("s_waitcnt vmcnt(0)")
    a("s_barrier")
    a("s_branch L_CA")

def run(a, l):
    for x in l: x() if callable(x) else a(x)
def merge(a, mf, va):
    n = len(mf); m = len(va); j = 0
    for i in range(n):
        a(mf[i])
        k = (i + 1) * m // n
        while j < k:
            x = va[j]; j += 1
            x() if callable(x) else a(x)

WPAR = 10240; LW = XSLOT; LT = 0; EXS = 122880; EXF = 131072
def dft(a):
    a.label("L_dft")
    a.vm = []; a.lg = []
    a(f"""s_cmp_eq_u32 s{S_SET}, 0
    s_cselect_b64 vcc, -1, 0
    v_cndmask_b32 v{VXO}, v{VXO+2}, v{VXO}, vcc
    v_cndmask_b32 v{VXO+1}, v{VXO+3}, v{VXO+1}, vcc
    s_lshl_b32 s{T0}, s{S_SET}, 11
    s_add_u32 s{S_LB}, s{S_M4}, s{T0}""")
    def xd(c, e):
        a(f"s_add_u32 m0, s{S_LB}, {XSLOT + (c % 5)*16384 + e*1024}")
        a(f"buffer_load_dwordx4 v{VXO+e}, s[{SX}:{SX+3}], s{S_SX+c} offen {OPT['ntx']} lds", tag=f"x{c}")
    n0 = 3
    a.dstamp("st", 1)
    a("s_waitcnt lgkmcnt(0)")
    a.dstamp("st", 2)
    xd(0, 0); xd(0, 1)
    a.dstamp("st", 3)
    sx_table(a)
    for c in range(1, n0): xd(c, 0); xd(c, 1)
    code_prefetch(a, 30)
    a("s_load_dwordx4 s[68:71], s[0:1], 8")
    VF, VFS, VD, VM, VMS, VW = 6, 7, 8, 9, 10, 11
    a(f"""s_lshl_b32 s{T0}, s{S_IDX}, 1
    s_add_u32 s{S_LA}, s{T0}, s{S_SET}      ; hg
    s_lshl_b32 s{T0}, s{S_LA}, 4
    v_and_b32 v12, 15, v1
    v_add_u32 v12, s{T0}, v12
    v_cmp_eq_u32 vcc, 0, v12
    v_mov_b32 v13, 160
    v_cndmask_b32 v13, v12, v13, vcc
    s_mov_b64 s[74:75], vcc
    v_cvt_f32_u32 v{VF}, v12
    v_cvt_f32_u32 v{VFS}, v13
    v_mul_f32 v{VF}, {fl(1/640)}, v{VF}
    v_mul_f32 v{VFS}, {fl(-1/640)}, v{VFS}
    s_and_b32 s{T0}, s{S_V}, 1
    s_bfe_u32 s{T1}, s{S_V}, 0x10001
    s_cmp_eq_u32 s{T1}, 0
    s_cselect_b32 s{T2}, s{S_SX}, s{S_SX+5}
    s_lshr_b32 s{T2}, s{T2}, 1
    s_add_u32 s{T2}, s{T2}, s{T0}
    v_lshrrev_b32 v{VD}, 4, v1
    v_lshlrev_b32 v{VD}, 3, v{VD}
    v_add_u32 v{VD}, s{T2}, v{VD}
    v_cvt_f32_u32 v{VD}, v{VD}
    v_add_f32 v{VD}, 0.5, v{VD}
    s_mul_i32 s{T2}, s{S_SET}, 40968
    s_mul_i32 s{T1}, s{T1}, 20480
    s_add_u32 s{T2}, s{T2}, s{T1}
    s_lshl_b32 s{T0}, s{T0}, 11
    s_add_u32 s{T2}, s{T2}, s{T0}
    v_lshl_add_u32 v{VW}, v1, 4, s{T2}
    v_xor_b32 v14, 8, v{VW}
    v_mul_f32 v{VM}, {fl(32.0)}, v{VF}
    v_mul_f32 v{VMS}, {fl(32.0)}, v{VFS}
    v_cos_f32 v{VM}, v{VM}
    v_cos_f32 v{VMS}, v{VMS}
    v_mul_f32 v12, v{VD}, v{VF}
    v_mul_f32 v13, v{VD}, v{VFS}
    v_add_f32 v{VM}, v{VM}, v{VM}
    v_add_f32 v{VMS}, v{VMS}, v{VMS}""")
    CC, SN = 64, 80
    for u in range(2):
        for e in range(4):
            dl = 32*u + 2*e
            if dl:
                a(f"v_fmamk_f32 v{CC+4*u+e}, v{VF}, {fl(dl)}, v12"); a(f"v_fmamk_f32 v{SN+4*u+e}, v{VFS}, {fl(dl)}, v13")
                a(f"v_cos_f32 v{CC+4*u+e}, v{CC+4*u+e}"); a(f"v_sin_f32 v{SN+4*u+e}, v{SN+4*u+e}")
            else:
                a(f"v_cos_f32 v{CC}, v12"); a(f"v_sin_f32 v{SN}, v13")
    for m in range(5):
        o = 96 + 8*(m % 2)
        for r in range(4):
            a(f"v_cvt_pk_bf16_f32 v{o+r}, v{CC+2*r}, v{CC+2*r+1}")
            a(f"v_cvt_pk_bf16_f32 v{o+4+r}, v{SN+2*r}, v{SN+2*r+1}")
        a(f"ds_write2st64_b64 v{VW}, v[{o}:{o+1}], v[{o+4}:{o+5}] offset0:{m*8} offset1:{m*8+2}")
        a(f"ds_write2st64_b64 v14, v[{o+2}:{o+3}], v[{o+6}:{o+7}] offset0:{m*8} offset1:{m*8+2}")
        if m < 4:
            for u in range(2):
                for e in range(4):
                    a(f"v_fma_f32 v{CC+4*u+e}, v{VM}, v{CC+4*(1-u)+e}, -v{CC+4*u+e}")
                    a(f"v_fma_f32 v{SN+4*u+e}, v{VMS}, v{SN+4*(1-u)+e}, -v{SN+4*u+e}")
    XA = 6; VB = 10; SE, SO = 11, 12; ON = 16
    a(f"""v_and_b32 v18, 15, v1
    v_lshrrev_b32 v19, 4, v1
    v_bfe_u32 v20, v1, 1, 3
    v_xor_b32 v20, v20, v19
    s_lshl_b32 s{T0}, s{S_SET}, 2
    v_xor_b32 v20, s{T0}, v20
    s_lshl_b32 s{T0}, s{S_W}, 5
    v_add_u32 v18, s{T0}, v18
    v_lshlrev_b32 v18, 7, v18
    v_lshl_add_u32 v{XA}, v20, 4, v18
    v_add_u32 v{XA}, {XSLOT}, v{XA}
    v_xor_b32 v{XA+1}, 64, v{XA}
    v_add_u32 v{XA+2}, 2048, v{XA}
    v_add_u32 v{XA+3}, 2048, v{XA+1}
    s_mul_i32 s{T0}, s{S_SET}, 40960
    v_lshl_add_u32 v{VB}, v1, 4, s{T0}
    v_mov_b32 v{SE}, 0x05040100
    v_mov_b32 v{SO}, 0x07060302
    s_lshl_b32 s{T0}, s{S_RB}, 2
    s_add_u32 s{S_LC}, s{T0}, s{S_W}        ; n2""")
    rec_addr(a, 16)
    FO = 40
    f1 = f"""v_lshrrev_b32 v20, 4, v1
    v_lshlrev_b32 v20, 8, v20
    v_add_u32 v20, s{S_LC}, v20
    v_cvt_f32_u32 v20, v20
    v_and_b32 v21, 1, v1
    s_lshl_b32 s{T0}, s{S_SET}, 4
    v_and_b32 v22, 15, v1
    v_add_u32 v22, s{T0}, v22
    v_lshrrev_b32 v23, 1, v22
    v_cvt_f32_u32 v23, v23
    v_cmp_eq_u32 vcc, 1, v21
    v_sub_f32 v21, 0, v23
    v_cndmask_b32 v23, v21, v23, vcc
    v_mov_b32 v21, 0.25
    v_cndmask_b32 v21, 0, v21, vcc
    v_cmp_eq_u32 vcc, 1, v22
    v_mov_b32 v22, {fl(-16.0)}
    v_cndmask_b32 v23, v23, v22, vcc
    v_mov_b32 v22, 0
    v_cndmask_b32 v21, v21, v22, vcc
    v_mul_f32 v23, {fl(1/2048)}, v23
    v_fma_f32 v21, v23, v20, v21""".split("\n")
    for jj in range(8):
        dn = 64*(16*(jj//4) + jj % 4)
        f1.append(f"v_mov_b32 v{24+jj}, v21" if dn == 0 else f"v_fmamk_f32 v{24+jj}, v23, {fl(dn)}, v21")
    for jj in range(8): f1 += [f"v_sin_f32 v{32+jj}, v{24+jj}", f"v_cos_f32 v{24+jj}, v{24+jj}"]
    for r in range(4): f1 += [f"v_cvt_pk_bf16_f32 v{FO+r}, v{24+2*r}, v{25+2*r}", f"v_cvt_pk_bf16_f32 v{FO+4+r}, v{32+2*r}, v{33+2*r}"]
    f1parts = {0: f1[:30], 1: f1[30:]}
    HP, F0, K1W, SGN, HG = 61, 62, 63, 64, 65
    wsc = {2: lines(f"""s_cmp_lt_u32 s{S_W}, 2
        s_cselect_b32 s{SW}, s68, s70
        s_cselect_b32 s{SW+1}, s69, s71
        s_mov_b32 s{SW+2}, {2048*642}
        s_and_b32 s{HG}, s{S_IDX}, 1
        s_lshl_b32 s{F0}, s{HG}, 6
        s_lshl_b32 s{HG}, s{HG}, 2
        s_add_u32 s{HG}, s{HG}, s{S_W}
        s_lshr_b32 s{SGN}, s{S_IDX}, 1
        s_sub_u32 s{T2}, 257, s{F0}
        s_cmp_eq_u32 s{SGN}, 0
        s_cselect_b32 s{F0}, s{F0}, s{T2}"""),
      3: lines(f"""s_and_b32 s{T0}, s{S_W}, 1
        s_add_u32 s{T1}, s{T0}, 8
        s_lshr_b32 s{T2}, s{S_W}, 1
        s_cmp_eq_u32 s{S_IDX}, 4
        s_cselect_b32 s{HG}, s{T1}, s{HG}
        s_cselect_b32 s{SGN}, s{T2}, s{SGN}
        s_cselect_b32 s{F0}, 128, s{F0}
        s_lshl_b32 s{HP}, s{HG}, 1
        s_add_u32 s{HP}, s{HP}, s{SGN}
        s_sub_u32 s{T2}, 0, s{S_RB}
        s_cmp_eq_u32 s{S_RB}, 0
        s_cselect_b32 s66, 16, s{T2}
        s_cmp_eq_u32 s{T0}, 0
        s_cselect_b32 s{K1W}, s{S_RB}, s66"""),
      4: lines(f"""s_mul_i32 s{T0}, s{K1W}, 642
        s_lshl_b32 s{T1}, s{F0}, 1
        s_add_u32 s{T1}, s{T1}, s{T0}
        s_and_b32 s{T1}, s{T1}, -16
        s_add_u32 s{T0}, s{T0}, 320
        s_and_b32 s{T0}, s{T0}, -16
        s_sub_u32 s{T0}, s{T0}, s{T1}
        s_sub_u32 s68, s{T0}, 144
        s_mul_i32 s{T0}, s{S_SET}, {32*20544}
        s_add_u32 s69, s{T1}, s{T0}
        s_lshl_b32 s{T0}, s{S_SET}, 7
        s_add_u32 s96, s{T1}, s{T0}"""),
      5: lines(f"""s_cmp_lt_i32 s{K1W}, 0
        s_cselect_b32 s97, {2048*642}, 0
        s_cmp_eq_u32 s{S_SET}, 0
        s_cselect_b32 s70, s97, 0
        s_mul_i32 s71, s{S_W}, {WPAR}
        s_mul_i32 s{T0}, s{S_SET}, 5120
        s_add_u32 s71, s71, s{T0}
        s_mov_b32 s67, 20544
        v_mov_b32 v56, s96
        v_mad_u32_u24 v56, v1, s67, v56
        v_add_u32 v57, s97, v56
        v_cmp_eq_u32 vcc, 0, v1
        v_cndmask_b32 v56, v56, v57, vcc""")}
    a.lgall()
    a.dstamp("st", 4)
    XRB = (64, 80); TBB = (96, 112); EOB = (128, 144); AC = 160; GS = 192
    nxt = n0
    for c in range(12):
        rd = []
        if c < 10:
            if c >= 1: a.dstamp("bar", c)
            a.vmwait(f"x{c}")
            if c >= 1: a.dstamp("bar2", c)
            if c < 4: a.dstamp("st", 5 + c)
            a("s_barrier")
            if c == 0: a.stamp(1)
            slot = c % 5
            XR = XRB[c % 2]
            for s in range(4):
                g = []
                if slot == 4: g.append(f"v_add_u32 v{XA+s}, 16384, v{XA+s}")
                g.append(f"ds_read_b128 v[{XR+4*s}:{XR+4*s+3}], v{XA+s} offset:{min(slot,3)*16384}")
                if slot == 4: g.append(f"v_subrev_u32 v{XA+s}, 16384, v{XA+s}")
                rd.append(g)
        if 1 <= c <= 10:
            TB = TBB[(c - 1) % 2]
            for ty in range(4):
                rd.append([f"ds_read_b128 v[{TB+4*ty}:{TB+4*ty+3}], v{VB} offset:{(c-1)*4096 + ty*1024}"])
        todo = []
        while nxt <= min(c + 4, 9) and len(todo) < 2: todo.append(nxt); nxt += 1
        for cc in todo:
            for e in range(2): rd.append([lambda cc=cc, e=e: xd(cc, e)])
        if c == 6: rd.append([lambda: tag_issue(a, 4, 5)])
        if c == OPT["recc"]:
            rd.append([lambda: rec_issue(a, 16, 20)])
            rd.append([lambda: a(f"buffer_load_dword v0, v56, s[{SW}:{SW+3}], 0 offen", tag="pf")])

        mf = []; va = []
        if c >= 2:
            EO, TB = EOB[c % 2], TBB[c % 2]
            for t in range(2):
                for ty in range(4):
                    acc = AC + 8*ty + 4*t; xs = EO + 8*t + 4*(ty // 2)
                    mf.append(f"v_mfma_f32_16x16x32_bf16 v[{acc}:{acc+3}], v[{xs}:{xs+3}], v[{TB+4*ty}:{TB+4*ty+3}], " + ("0" if c == 2 else f"v[{acc}:{acc+3}]"))
        if 1 <= c <= 10:
            XR, EO = XRB[(c - 1) % 2], EOB[(c - 1) % 2]
            for t in range(2):
                for ks in range(2):
                    for r in range(2):
                        lo = XR + 8*t + 4*ks + 2*r
                        va.append(f"v_perm_b32 v{EO+8*t+2*ks+r}, v{lo+1}, v{lo}, v{SE}")
                        va.append(f"v_perm_b32 v{EO+8*t+4+2*ks+r}, v{lo+1}, v{lo}, v{SO}")
        va += f1parts.get(c, [])
        n = max(len(mf), 1)
        for i in range(n):
            if mf: a(mf[i])
            for grp in (rd[i:i+1] if i < n - 1 else rd[i:]):
                for x in grp: x() if callable(x) else a(x)
            for x in va[i*len(va)//n:(i+1)*len(va)//n]: a(x)
        run(a, wsc.get(c, []))
        if c == 10:
            a(f"""s_lshl_b32 s{T0}, s{S_V}, 11
            s_add_u32 s{T0}, s{T0}, {EXF}
            v_lshl_add_u32 v18, v1, 4, s{T0}
            ds_write_b128 v18, v[{FO}:{FO+3}]
            ds_write_b128 v18, v[{FO+4}:{FO+7}] offset:1024
            v_xor_b32 v18, 8192, v18
            s_lshl_b32 s{T0}, s{S_V}, 7
            s_add_u32 s{T0}, s{T0}, {EXS}
            v_and_b32 v17, 31, v1
            v_lshl_add_u32 v17, v17, 2, s{T0}
            v_lshrrev_b32 v19, 4, v1
            v_lshl_add_u32 v19, v19, 4, s{T0}""")
        if c < 10: a.lgall()
        if c == 10:
            tag_check(a, 4, 5); a.lgall()
            a("s_barrier")
            a(f"ds_read_b128 v[48:51], v18", tag="f")
            a(f"ds_read_b128 v[52:55], v18 offset:1024", tag="f")
            rec_check(a, 16, 20)
            a(f"ds_write_b32 v17, v22")
            a(f"ds_read_b128 v[24:27], v19", tag="r")
            a(f"ds_read_b128 v[28:31], v19 offset:64", tag="r")
    a.stamp(2)
    a("s_setprio 1")
    a.lgwait("f")
    FRr, FIr, FNr = (40, 48), (44, 52), (56, 60)
    for u in range(2):
        for r in range(4): a(f"v_xor_b32 v{FNr[u]+r}, 0x80008000, v{FIr[u]+r}")
    a(f"""s_lshl_b32 s{T0}, s{S_V}, 12
    v_lshrrev_b32 v14, 4, v1
    v_lshlrev_b32 v14, 8, v14
    v_and_b32 v15, 15, v1
    v_lshl_add_u32 v14, v15, 2, v14
    s_lshl_b32 s{T1}, s{S_SET}, 10
    s_add_u32 s{T1}, s{T1}, s{T0}
    s_bfe_u32 s{T2}, s{S_LC}, 0x10001
    s_lshl_b32 s{T2}, s{T2}, 6
    s_add_u32 s{T1}, s{T1}, s{T2}
    v_add_u32 v10, s{T1}, v14
    v_xor_b32 v11, 1024, v10
    v_xor_b32 v12, 64, v10
    v_xor_b32 v13, 1088, v10
    v_lshl_add_u32 v15, v1, 4, s{T0}
    v_lshrrev_b32 v16, 3, v1
    v_mul_u32_u24 v16, {TS}, v16
    v_and_b32 v17, 7, v1
    v_lshl_add_u32 v16, v17, 4, v16
    s_lshl_b32 s{T0}, s{S_LA}, 14
    s_lshl_b32 s{T1}, s{S_LC}, 7
    s_add_u32 s{T0}, s{T0}, s{T1}
    s_add_u32 s{T0}, s{T0}, {WS_T}""")
    a.lgwait("r")
    for i in range(8):
        er, ei, orr, oi, rho = AC + i, AC + 8 + i, AC + 16 + i, AC + 24 + i, 24 + i
        a(f"""v_mul_f32 v20, v{orr}, v{rho}
        v_mul_f32 v21, v{oi}, v{rho}
        v_fma_f32 v{oi}, -v{er}, v{rho}, v20
        v_fma_f32 v{er}, v{er}, v{rho}, v20
        v_fma_f32 v{orr}, -v{ei}, v{rho}, v21
        v_fma_f32 v{ei}, v{ei}, v{rho}, v21""")
    a(f"s_cmp_lg_u32 s{S_LA}, 0")
    a("s_cbranch_scc1 L_dnsp")
    for i in range(8):
        a(f"v_cndmask_b32 v{AC+i}, v{AC+i}, v{AC+16+i}, s[74:75]")
        a(f"v_cndmask_b32 v{AC+16+i}, v{AC+16+i}, 0, s[74:75]")
    a.label("L_dnsp")
    XB = 64; OUT = 80
    def o(sgn, cc, u): return OUT + 16*sgn + 8*cc + 4*u
    for sgn in range(2):
        for ty in (2*sgn, 2*sgn + 1):
            for r in range(4):
                a(f"v_cvt_pk_bf16_f32 v{XB+4*ty+r}, v{AC+8*ty+2*r}, v{AC+8*ty+2*r+1}")
        xr, xi = XB + 8*sgn, XB + 8*sgn + 4
        for u in range(2):
            a(f"v_mfma_f32_16x16x32_bf16 v[{o(sgn,0,u)}:{o(sgn,0,u)+3}], v[{FRr[u]}:{FRr[u]+3}], v[{xr}:{xr+3}], 0")
            a(f"v_mfma_f32_16x16x32_bf16 v[{o(sgn,1,u)}:{o(sgn,1,u)+3}], v[{FIr[u]}:{FIr[u]+3}], v[{xr}:{xr+3}], 0")
        for u in range(2):
            a(f"v_mfma_f32_16x16x32_bf16 v[{o(sgn,0,u)}:{o(sgn,0,u)+3}], v[{FNr[u]}:{FNr[u]+3}], v[{xi}:{xi+3}], v[{o(sgn,0,u)}:{o(sgn,0,u)+3}]")
            a(f"v_mfma_f32_16x16x32_bf16 v[{o(sgn,1,u)}:{o(sgn,1,u)+3}], v[{FRr[u]}:{FRr[u]+3}], v[{xi}:{xi+3}], v[{o(sgn,1,u)}:{o(sgn,1,u)+3}]")
    for sgn in range(2):
        for cc in range(2):
            for u in range(2):
                r = o(sgn, cc, u)
                a(f"v_cvt_pk_bf16_f32 v{r}, v{r}, v{r+1}")
                a(f"v_cvt_pk_bf16_f32 v{r+1}, v{r+2}, v{r+3}")
                a(f"ds_write_b32 v{10+2*cc+u}, v{r} offset:{sgn*2048}")
                a(f"ds_write_b32 v{10+2*cc+u}, v{r+1} offset:{sgn*2048+128}")
        for it in (2*sgn, 2*sgn + 1): a(f"ds_read_b128 v[{128+4*it}:{131+4*it}], v15 offset:{it*1024}", tag=f"r{it}")
    for it in range(4):
        a.lgwait(f"r{it}")
        a(f"s_add_u32 s{T1}, s{T0}, {(it//2)*8192 + (it%2)*8*TS}")
        a(f"buffer_store_dwordx4 v[{128+4*it}:{131+4*it}], v16, s[{SS}:{SS+3}], s{T1} offen {ST}", tag="T")
    a("s_setprio 0")
    a.stamp(3); a.dstamp("fft", 1)
    a(f"""s_lshl_b32 s{S_LA}, s{S_IDX}, 4
    s_add_u32 s{S_LA}, s{S_LA}, s{S_RB}
    s_lshl_b32 s{S_LA}, s{S_LA}, 7
    s_add_u32 s{S_LA}, s{S_LA}, {F_TF}""")
    s_w, s_jp, s_g = S_W, S_RB, S_IDX
    PHI, MK = 36, 38
    C, SN = 16, 32
    a(f"""v_and_b32 v6, 31, v1
    s_lshl_b32 s{T0}, s{S_SET}, 5
    v_add_u32 v7, s{T0}, v6
    v_cvt_f32_u32 v7, v7
    v_mul_f32 v7, {fl(1/64)}, v7
    v_lshrrev_b32 v8, 5, v1
    v_lshl_add_u32 v8, v8, 2, s{T0}
    v_cvt_f32_u32 v8, v8
    v_mul_f32 v8, v8, v7
    v_and_b32 v6, 1, v6
    v_mov_b32 v9, 0x80008000
    v_cmp_eq_u32 vcc, 1, v6
    v_cndmask_b32 v9, 0, v9, vcc""")
    for u in range(2):
        for jj in range(8):
            b = 16*u + 8*(jj//4) + jj % 4
            if b: a(f"v_fmamk_f32 v{128+jj}, v7, {fl(b)}, v8")
            else: a(f"v_mov_b32 v{128+jj}, v8")
        for jj in range(8):
            a(f"v_sin_f32 v{136+jj}, v{128+jj}"); a(f"v_cos_f32 v{128+jj}, v{128+jj}")
        for r in range(4):
            a(f"v_cvt_pk_bf16_f32 v{C+4*u+r}, v{128+2*r}, v{129+2*r}")
            a(f"v_cvt_pk_bf16_f32 v{SN+4*u+r}, v{136+2*r}, v{137+2*r}")
    for base in (C, SN):
        for r in range(8): a(f"v_xor_b32 v{base+8+r}, v9, v{base+r}")
    a(f"""s_lshl_b32 s{T1}, s{s_w}, 13
    s_lshl_b32 s{T2}, s{S_SET}, 12
    v_lshrrev_b32 v6, 5, v1
    v_bfe_u32 v7, v1, 2, 2
    v_lshl_add_u32 v7, v6, 2, v7
    v_lshlrev_b32 v7, 7, v7
    v_bfe_u32 v8, v1, 3, 2
    v_lshrrev_b32 v9, 1, v8
    v_and_b32 v8, 1, v8
    v_lshl_add_u32 v7, v8, 6, v7
    v_lshl_add_u32 v7, v9, 5, v7
    v_and_b32 v8, 3, v1
    v_lshl_add_u32 v7, v8, 3, v7
    v_add_u32 v7, s{T1}, v7
    v_add_u32 v2, s{T2}, v7
    v_xor_b32 v3, 4096, v2
    v_xor_b32 v4, 64, v2
    v_xor_b32 v5, 4160, v2
    s_lshr_b32 s{PHI}, s{s_jp}, 1
    s_and_b32 s{PHI}, s{PHI}, 2
    s_lshl_b32 s{T2}, s{S_SET}, 12
    s_add_u32 s{T1}, s{T1}, s{T2}
    v_and_b32 v7, 7, v1
    v_xor_b32 v7, v7, v6
    v_xor_b32 v7, s{PHI}, v7
    v_and_b32 v8, 31, v1
    v_lshlrev_b32 v8, 7, v8
    v_lshl_add_u32 v50, v7, 4, v8
    v_add_u32 v50, s{T1}, v50
    v_xor_b32 v51, 32, v50
    v_xor_b32 v52, 64, v50
    v_xor_b32 v53, 96, v50
    v_lshrrev_b32 v7, 3, v1
    v_and_b32 v8, 7, v1
    v_xor_b32 v54, v7, v8
    v_lshlrev_b32 v54, 4, v54
    v_lshl_add_u32 v54, v7, 7, v54
    v_add_u32 v54, s{T1}, v54
    v_mul_u32_u24 v55, {YS}, v7
    v_lshl_add_u32 v55, v8, 4, v55
    v_lshlrev_b32 v56, 4, v1
    s_lshl_b32 s{T0}, s{S_V}, 12
    s_add_u32 s{T0}, s{T0}, 32768
    v_add_u32 v57, s{T0}, v56
    v_xor_b32 v58, 16384, v57
    v_lshlrev_b32 v59, 7, v1
    s_and_b32 s{T0}, s{s_g}, 1
    s_lshl_b32 s{T0}, s{T0}, 12
    s_cmp_eq_u32 s{s_g}, 4
    s_cselect_b32 s{T0}, 8192, s{T0}
    s_cselect_b32 s34, 0xffff, -1
    s_mov_b32 s35, 0
    s_add_u32 s33, s{T0}, {F_TF}
    s_mov_b32 s32, s{T1}""")
    st_table(a); st_setup(a); run(a, sp_base(S_HFA))
    a.dstamp("fft", 2)
    a.vmwait("T")
    a("s_barrier")
    a(f"s_cmp_lg_u32 s{S_V}, 4")
    a("s_cbranch_scc1 L_dnp")
    vm = list(a.vm); publish(a, S_LA, 5, 61, 62); a.vm = vm
    a.label("L_dnp")
    a.stamp(4)
    WV = 144
    wv = []
    for i in range(5):
        wv += f"""v_add_u32 v152, {64*i}, v1
        v_mul_u32_u24 v153, 6554, v152
        v_lshrrev_b32 v153, 16, v153
        v_mul_u32_u24 v154, 10, v153
        v_sub_u32 v154, v152, v154
        v_cmp_eq_u32 vcc, 9, v154
        v_lshl_add_u32 v154, v154, 4, s69
        v_mad_u32_u24 v{WV+i}, v153, s67, v154
        v_mov_b32 v152, s68
        v_cndmask_b32 v152, 0, v152, vcc
        v_add_u32 v{WV+i}, v{WV+i}, v152""".split("\n")
    wv += f"""v_add_u32 v152, s70, v{WV}
    v_cmp_gt_u32 vcc, 10, v1
    v_cndmask_b32 v{WV}, v{WV}, v152, vcc""".split("\n")
    run(a, wv)
    def wd(i):
        a(f"s_add_u32 m0, s71, {LW + i*1024}")
        a(f"buffer_load_dwordx4 v{WV+i}, s[{SW}:{SW+3}], 0 offen lds", tag="w")

    for i in range(5): wd(i)
    a(f"""v_and_b32 v60, 1, v1
    v_bfe_u32 v61, v1, 1, 4
    s_lshl_b32 s{T0}, s{HG}, 4
    v_add_u32 v61, s{T0}, v61
    v_cmp_eq_u32 vcc, 0, v61
    s_cmp_eq_u32 s{SGN}, 0
    s_cselect_b64 s[{MK}:{MK+1}], vcc, 0
    v_sub_u32 v6, 320, v61
    s_cselect_b64 vcc, -1, 0
    v_cndmask_b32 v61, v6, v61, vcc
    v_subrev_u32 v61, s{F0}, v61
    v_lshlrev_b32 v61, 1, v61
    v_mov_b32 v6, s{s_jp}
    v_mov_b32 v7, s66
    v_cmp_eq_u32 vcc, 1, v60
    v_cndmask_b32 v6, v6, v7, vcc
    v_add_u32 v7, s{F0}, v6
    v_lshlrev_b32 v7, 1, v7
    v_and_b32 v7, 15, v7
    v_add_u32 v61, v61, v7
    v_lshlrev_b32 v6, 1, v6
    v_and_b32 v6, 15, v6
    v_add_u32 v6, 144, v6
    v_cndmask_b32 v61, v61, v6, s[{MK}:{MK+1}]
    v_mul_u32_u24 v60, {WPAR}, v60
    v_lshrrev_b32 v6, 5, v1
    v_mul_u32_u24 v6, 640, v6
    v_add3_u32 v15, v60, v61, v6
    s_mul_i32 s{T0}, s{S_SET}, 5120
    s_add_u32 s{T0}, s{T0}, {LW}
    v_add_u32 v15, s{T0}, v15""")
    a.dstamp("fft", 3)
    a(f"s_cmp_lg_u32 s{S_V}, 0")
    a("s_cbranch_scc1 L_fnp")
    vm = list(a.vm); poll(a, 59, 33, 5, 34, 60); a.vm = vm
    a.label("L_fnp")
    a(f"""s_mul_i32 s{T0}, s{s_jp}, {TS}
    s_lshl_b32 s{T2}, s{HP}, 13
    s_add_u32 s{T0}, s{T0}, s{T2}
    s_lshl_b32 s{T2}, s{S_SET}, 12
    s_add_u32 s{T0}, s{T0}, s{T2}
    s_add_u32 s{T0}, s{T0}, {WS_T}
    s_mov_b32 m0, s32""")
    a("s_barrier")
    a.stamp(5); a.dstamp("fft", 4)
    for i in range(4):
        a(f"buffer_load_dwordx4 v56, s[{SS}:{SS+3}], s{T0} offen offset:{i*1024} sc1 lds", tag="t")
    a(f"s_cmp_lg_u32 s{S_SET}, 0")
    a("s_cbranch_scc1 L_fnc")
    a("s_setprio 1")
    a.label("L_fnc")
    a.vmall()
    a("s_barrier")
    a.dstamp("fft", 5)
    BR, BI, NB, WR, WI, DR, DI = 64, 80, 128, 144, 160, 176, 192
    for u in range(4):
        for cc, b in ((0, BR), (1, BI)):
            a(f"ds_read_b64_tr_b16 v[{b+4*u}:{b+4*u+1}], v{2 + 2*cc + u//2} offset:{(u%2)*2048}", tag=f"b{u}")
            a(f"ds_read_b64_tr_b16 v[{b+4*u+2}:{b+4*u+3}], v{2 + 2*cc + u//2} offset:{(u%2)*2048 + 1024}", tag=f"b{u}")
    def wread(r):
        q, tt = divmod(r, 4)
        off = (8*q + tt) * 160
        a(f"ds_read_u16_d16_hi v{WR+r}, v15 offset:{off}", tag=f"w{r}")
        a(f"ds_read_u16_d16_hi v{WI+r}, v15 offset:{off + 2*WPAR}", tag=f"w{r}")
    def M(d, A, B, first): return f"v_mfma_f32_32x32x16_bf16 v[{d}:{d+15}], v[{A}:{A+3}], v[{B}:{B+3}], " + ("0" if first else f"v[{d}:{d+15}]")
    for u in range(4):
        a.lgwait(f"b{u}")
        a(M(DR, C+4*u, BR+4*u, u == 0))
        for r in range(4): a(f"v_xor_b32 v{NB+4*u+r}, 0x80008000, v{BR+4*u+r}")
        a(M(DI, C+4*u, BI+4*u, u == 0)); wread(4*u); wread(4*u + 1)
        a(M(DR, SN+4*u, BI+4*u, False)); wread(4*u + 2); wread(4*u + 3)
        a(M(DI, SN+4*u, NB+4*u, False))
    a.dstamp("fft", 6)
    a.lgall()
    sp_issue(a, L6, D6)
    ZR, ZI, ZN = 64, 80, 208
    for g4 in range(4):
        rs = range(4*g4, 4*g4 + 4)
        a.lgwait(f"w{4*g4+3}")
        for i, r in enumerate(rs): a(f"v_mul_f32 v{6+i}, v{DR+r}, v{WR+r}")
        for i, r in enumerate(rs): a(f"v_mul_f32 v{DR+r}, v{DR+r}, v{WI+r}")
        for i, r in enumerate(rs): a(f"v_fma_f32 v{6+i}, -v{DI+r}, v{WI+r}, v{6+i}")
        for i, r in enumerate(rs): a(f"v_fmac_f32 v{DR+r}, v{DI+r}, v{WR+r}")
        for i, r in enumerate(rs): a(f"v_subrev_f32_dpp v{DI+r}, v{6+i}, v{DR+r} quad_perm:[1,0,3,2] row_mask:0xf bank_mask:0xf")
        for i, r in enumerate(rs): a(f"v_add_f32_dpp v{6+i}, v{DR+r}, v{6+i} quad_perm:[1,0,3,2] row_mask:0xf bank_mask:0xf")
        for k in range(2): a(f"v_cvt_pk_bf16_f32 v{ZI+2*g4+k}, v{DI+4*g4+2*k}, v{DI+4*g4+2*k+1}")
        for k in range(2): a(f"v_cvt_pk_bf16_f32 v{ZR+2*g4+k}, v{6+2*k}, v{7+2*k}")
        if g4 % 2:
            u = g4 // 2
            a(f"ds_write_b128 v57, v[{ZR+4*u}:{ZR+4*u+3}] offset:{u*1024}")
            a(f"ds_write_b128 v57, v[{ZI+4*u}:{ZI+4*u+3}] offset:{2048 + u*1024}")
    YR, YI = 144, 160
    def step3(u):
        a(M(YR, ZR+4*u, C+4*u, u == 0))
        for r in range(4): a(f"v_xor_b32 v{ZN+4*u+r}, 0x80008000, v{ZI+4*u+r}")
        a(M(YI, ZI+4*u, C+4*u, u == 0)); a(M(YI, ZR+4*u, SN+4*u, False)); a(M(YR, ZN+4*u, SN+4*u, False))
    step3(0)
    a.lgall()
    a("s_barrier")
    a.dstamp("fft", 7)
    for u in range(2):
        a(f"ds_read_b128 v[{ZR+8+4*u}:{ZR+11+4*u}], v58 offset:{u*1024}", tag=f"z{u}")
        a(f"ds_read_b128 v[{ZI+8+4*u}:{ZI+11+4*u}], v58 offset:{2048 + u*1024}", tag=f"z{u}")
    sp_check(a, L6, D6, 2)
    a(f"s_cmp_eq_u32 s{S_SET}, 0")
    a("s_cbranch_scc1 L_fw0")
    st_h(a, 0); w_touch(a, 60)
    a("s_branch L_fw1")
    a.label("L_fw0")
    for g in st_w(a, 0): run(a, g)
    a.label("L_fw1")
    step3(1)
    for u in (2, 3):
        a.lgwait(f"z{u-2}"); step3(u)
    a(f"s_cmp_lg_u32 s{s_jp}, 0")
    a(f"s_cbranch_scc1 L_fns")
    a(f"""v_and_b32 v6, 31, v1
    s_lshl_b32 s{T0}, s{S_SET}, 5
    v_add_u32 v6, s{T0}, v6
    v_cvt_f32_u32 v6, v6
    v_mul_f32 v6, {fl(1/128)}, v6
    v_cos_f32 v7, v6
    v_sin_f32 v8, v6
    s_nop 7
    v_mul_f32 v7, 0.5, v7
    v_mul_f32 v8, 0.5, v8""")
    for pr in range(8):
        ar, br, ai, bi = YR+2*pr, YR+2*pr+1, YI+2*pr, YI+2*pr+1
        a(f"""v_sub_f32 v6, v{br}, v{ai}
        v_add_f32 v9, v{bi}, v{ar}
        v_sub_f32 v{ar}, v{ar}, v{bi}
        v_add_f32 v{ai}, v{ai}, v{br}
        v_mul_f32 v{br}, v7, v6
        v_mul_f32 v{bi}, v8, v6
        v_mul_f32 v{ar}, 0.5, v{ar}
        v_mul_f32 v{ai}, 0.5, v{ai}
        v_fma_f32 v{br}, -v8, v9, v{br}
        v_fmac_f32 v{bi}, v7, v9""")
    a.label("L_fns")
    a(f"""s_lshl_b32 s{T0}, s{HP}, 11
    s_lshl_b32 s{T1}, s{s_jp}, 7
    s_add_u32 s{T0}, s{T0}, s{T1}
    s_mul_i32 s{T1}, s{S_SET}, {32*YS}
    s_add_u32 s{T0}, s{T0}, s{T1}
    s_add_u32 s{T0}, s{T0}, {WS_Y}
    s_nop 7""")
    O = 176; k = 0
    for cc, src in ((1, YI), (0, YR)):
        for par in range(2):
            o = O + 4*k; k += 1
            for q in range(4): a(f"v_cvt_pk_bf16_f32 v{o+q}, v{src+4*q+par}, v{src+4*q+2+par}")
            a(f"ds_write_b128 v{50+2*par+cc}, v[{o}:{o+3}]")
    for it in range(4): a(f"ds_read_b128 v[{16+4*it}:{19+4*it}], v54 offset:{it*1024}", tag=f"r{it}")
    a.dstamp("fft", 8)
    a(f"s_mov_b32 s60, s{T0}")
    a.lgall()
    def ystores():
        for it in range(4):
            a(f"buffer_store_dwordx4 v[{16+4*it}:{19+4*it}], v55, s[{SS}:{SS+3}], s60 offen {ST}", tag="y")
            if it < 3: a(f"s_add_u32 s60, s60, {8*YS}")
    a(f"""s_mov_b32 s{S_LA}, {BIG}
    s_mov_b32 s{S_PG+3}, {BIG}
    s_mov_b32 s{S_PG+4}, {BIG}
    s_cmp_eq_u32 s{S_SET}, 0
    s_cbranch_scc1 L_fa""")
    ystores(); st_h(a, 1)
    a("s_waitcnt vmcnt(10)")
    a("s_branch L_CB2")
    a.label("L_fa")
    ystores()
    a(f"""s_mul_i32 s{S_LB}, s{s_jp}, 5
    s_add_u32 s{S_LB}, s{S_LB}, s{s_g}
    s_lshl_b32 s{S_LB}, s{S_LB}, 7
    s_add_u32 s{S_LB}, s{S_LB}, {F_YF}
    s_cmp_eq_u32 s{S_V}, 0
    s_cselect_b32 s{S_LB}, s{S_LB}, {BIG}
    s_branch L_CA2""")

YA, YB, LX, LH, LS = 40960, 122880, 81920, 92160, 102400
S_C8, S_KH, S_CB = 60, 61, 64
M_G0, M_G2 = 32, 34
FG, FL = 210, 211
GE, GO = 16, 56

def g_head(t):
    return lines(f"""v_add_u32 v{t+4}, s{S_CB}, v{FL}
    v_cvt_f32_u32 v{t+4}, v{t+4}
    v_add_f32 v{t+4}, 0.5, v{t+4}
    v_mul_f32 v{t+4}, {fl(1/640)}, v{t+4}
    v_and_b32 v{t}, 1, v{FG}
    v_lshlrev_b32 v{t}, 1, v{t}
    v_sub_u32 v{t+1}, 320, v{t}
    v_cmp_lt_u32 s[40:41], 31, v1
    v_cndmask_b32 v{t}, v{t}, v{t+1}, s[40:41]
    v_cvt_f32_u32 v{t}, v{t}
    v_mul_f32 v{t}, v{t}, v{t+4}
    v_sub_f32 v{t+1}, 0, v{t+4}
    v_cndmask_b32 v{t+1}, v{t+4}, v{t+1}, s[40:41]
    v_mul_f32 v{t+2}, {fl(16.0)}, v{t+4}
    v_cos_f32 v{t+2}, v{t+2}
    v_mul_f32 v{t+4}, {fl(160.0)}, v{t+4}
    v_sin_f32 v{t+5}, -v{t+4}
    v_cos_f32 v{t+4}, v{t+4}
    v_add_f32 v{t+2}, v{t+2}, v{t+2}
    v_sub_f32 v{t+3}, 0, v{t+2}""")
def g_seq(t, n, CV, SV, dst_e, dst_o, offs, special):
    o = []
    for m in range(2):
        for j in range(n):
            k = 16*m + offs[j]
            o.append(f"v_fmamk_f32 v{CV+n*m+j}, v{t+1}, {fl(k)}, v{t}" if k else f"v_mov_b32 v{CV+n*m+j}, v{t}")
        for j in range(n): o += [f"v_sin_f32 v{SV+n*m+j}, -v{CV+n*m+j}", f"v_cos_f32 v{CV+n*m+j}, v{CV+n*m+j}"]
    o += lines(f"""v_cndmask_b32 v{t+4}, v{CV}, v{t+4}, s[{special[0]}:{special[0]+1}]
    v_cndmask_b32 v{t+5}, v{SV}, v{t+5}, s[{special[0]}:{special[0]+1}]
    v_mul_f32 v{t}, 0.5, v{t+4}
    v_mul_f32 v{t+1}, 0.5, v{t+5}
    v_cndmask_b32 v{t+4}, v{t+4}, v{t}, s[{special[1]}:{special[1]+1}]
    v_cndmask_b32 v{t+5}, v{t+5}, v{t+1}, s[{special[1]}:{special[1]+1}]""")
    for m in range(10):
        u = n*(m % 2); sg = "-" if (m // 2) % 2 else ""
        for r in range(n // 2):
            c0 = t + 4 if (m == 0 and r == 0) else CV + u + 2*r
            s0 = t + 5 if (m == 0 and r == 0) else SV + u + 2*r
            o.append(f"v_cvt_pk_bf16_f32 v{dst_e(m, r)}, {sg}v{c0}, {sg}v{CV+u+2*r+1}")
            o.append(f"v_cvt_pk_bf16_f32 v{dst_o(m, r)}, {sg}v{s0}, {sg}v{SV+u+2*r+1}")
        if m + 2 < 10:
            M = t + 3 if m % 2 == 0 else t + 2
            for j in range(n):
                o += [f"v_fmac_f32 v{CV+u+j}, v{M}, v{CV+n-u+j}", f"v_fmac_f32 v{SV+u+j}, v{M}, v{SV+n-u+j}"]
    return o
def run(a, l):
    for x in l: x() if callable(x) else a(x)

def phase_c(a):
    a.skip = a.skip + [k for k in os.environ.get("CSKIP", "").split(",") if k]
    a.label("L_CA")
    a.vm = []; a.lg = []
    a.stamp(6); a.dstamp("fft", 9); a.dstamp("p", 9)
    publish(a, S_LA, 4, 6, 7)
    st_setup(a)
    a.label("L_CA2")
    a.vm = []
    a("s_load_dwordx2 s[8:9], s[0:1], 56")
    for g in st_w(a, 1): run(a, g)
    HB_, WB_, AC2 = 16, 32, 80
    a(f"""v_lshrrev_b32 v{FG}, 4, v1
    v_and_b32 v{FL}, 15, v1
    v_lshrrev_b32 v2, 5, v1
    v_lshlrev_b32 v2, 4, v2
    v_bfe_u32 v3, v1, 4, 1
    v_lshl_add_u32 v2, v3, 2, v2
    v_bfe_u32 v3, v1, 2, 2
    v_add_u32 v2, v2, v3
    v_mul_u32_u24 v2, 160, v2
    v_and_b32 v3, 3, v1
    v_lshl_add_u32 v10, v3, 3, v2
    v_add_u32 v9, {SLOT[1]}, v10
    v_add_u32 v8, {SLOT[0]}, v10
    s_mul_i32 s{T0}, s{S_W}, 6144
    s_add_u32 s{T0}, s{T0}, 15360
    v_lshlrev_b32 v2, 9, v{FG}
    v_lshl_add_u32 v2, v{FL}, 4, v2
    v_add_u32 v13, s{T0}, v2
    v_add_u32 v12, {SLOT[1]}, v13
    v_add_u32 v11, {SLOT[0]}, v13
    s_lshr_b32 s{S_C8}, s2, 5
    s_and_b32 s{S_KH}, s2, 1""")
    def reads(n):
        s, i = divmod(n, 3); o = []
        for rt in range(2):
            b = HB_ + 8*(n % 2) + 4*rt
            o.append((f"ds_read_b128 v[{b}:{b+3}], v{11 + s % 3} offset:{i*2048 + rt*256}", f"H{n}"))
        for ct in range(5):
            b = WB_ + 20*(n % 2) + 4*ct
            o.append((f"ds_read_b64_tr_b16 v[{b}:{b+1}], v{8 + s % 3} offset:{i*5120 + ct*32}", f"W{n}_{ct}"))
            o.append((f"ds_read_b64_tr_b16 v[{b+2}:{b+3}], v{8 + s % 3} offset:{i*5120 + ct*32 + 8*160}", f"W{n}_{ct}"))
        return o
    B2 = 196; PV = 212
    fill = lines(f"""s_mul_i32 s36, s{S_C8}, 80
    s_lshl_b32 s37, s36, 1
    s_sub_u32 s37, 1120, s37
    v_lshl_add_u32 v2, v{FG}, 3, s36
    v_add_u32 v3, s37, v2
    v_cmp_gt_u32 vcc, 2, v{FG}
    v_cndmask_b32 v4, v3, v2, vcc
    s_mov_b32 s{SB}, s8
    s_mov_b32 s{SB+1}, s9
    s_mov_b32 s{SB+2}, 1280""")
    for ct in range(5):
        fill.append(lambda ct=ct: a(f"buffer_load_dwordx2 v[{B2+2*ct}:{B2+2*ct+1}], v{[2,2,4,3,3][ct]}, s[{SB}:{SB+3}], 0 offen offset:{32*ct}", tag="b2"))
    fill += lines(f"""s_lshr_b32 s38, s{S_W}, 1
    s_xor_b32 s38, s38, s{S_KH}
    s_and_b32 s39, s{S_W}, 1
    s_xor_b32 s40, s2, 1
    s_lshl_b32 s40, s40, 1
    s_add_u32 s40, s40, s39
    s_mul_i32 s41, s40, 6144
    s_add_u32 s41, s41, {WS_P}
    s_lshl_b32 s40, s40, 7
    s_add_u32 s40, s40, {F_PF}
    s_lshl_b32 s34, s2, 1
    s_add_u32 s34, s34, s39
    s_mul_i32 s35, s34, 6144
    s_mul_i32 s50, s38, 3072
    s_add_u32 s35, s35, s50
    s_add_u32 s35, s35, {WS_P}
    s_lshl_b32 s34, s34, 7
    s_add_u32 s34, s34, {F_PF}
    v_lshlrev_b32 v5, 4, v1
    s_mul_i32 s50, s39, 5120
    s_add_u32 s50, s50, {LH}
    v_add_u32 v14, s50, v5
    s_lshl_b32 s50, s39, 5
    s_lshl_b32 s51, s38, 4
    s_add_u32 s50, s50, s51
    v_add_u32 v15, s50, v{FL}
    v_mul_u32_u24 v208, 320, v15
    v_lshl_add_u32 v208, v{FG}, 4, v208
    v_add_u32 v208, {LS}, v208                  ; s image
    v_mul_u32_u24 v209, 160, v15
    v_lshl_add_u32 v209, v{FG}, 3, v209
    v_add_u32 v209, {LX}, v209""")
    a.lgall()
    a("s_waitcnt vmcnt(8)")
    a.dstamp("c", 1)
    a("s_barrier")
    a.stamp(7)
    for t, g in reads(0): a(t, tag=g)
    nf = 0
    for n in range(27):
        s, i = divmod(n, 3)
        nx = reads(n + 1) if n + 1 < 27 else []
        if n == 0: wl = st_w(a, 2)
        if i == 2: wl = st_w(a, s + 3) if s + 3 < 9 else []
        if i == 2 and n + 1 < 27:
            a.lgall()
            a.vmwait(f"st{s+1}")
            if s == 1: a.vmwait("b2")
            if s < 7: a.dstamp("c", s + 2)
            a("s_barrier")
            if s == 1: publish(a, S_LB, 5, 6, 7, t=39)
        for ct in range(5):
            if ct % 2 == 0: a.lgwait([f"W{n}_{ct}", f"W{n}_{min(ct+1, 4)}"])
            for rt in range(2):
                d = AC2 + (ct*2 + rt)*4; w = WB_ + 20*(n % 2) + 4*ct; h = HB_ + 8*(n % 2) + 4*rt
                a(f"v_mfma_f32_16x16x32_bf16 v[{d}:{d+3}], v[{w}:{w+3}], v[{h}:{h+3}], " + ("0" if n == 0 else f"v[{d}:{d+3}]"))
                k = 2*ct + rt
                for t, g in nx[(k*12)//10:((k+1)*12)//10]: a(t, tag=g)
                if wl and k in ((1, 4, 7) if n < 2 else ((2, 8), (4,), (5,))[i]): run(a, wl.pop(0))
        m = (n + 1) * len(fill) // 5 if n > 0 else 0
        run(a, fill[nf:m]); nf = max(nf, m)
    a.stamp(8); a.dstamp("c", 9)
    OV = 80
    a("s_cmp_eq_u32 s38, 0")
    a("s_cbranch_scc1 L_keep")
    for rt in range(2):
        for ct in range(5):
            d = AC2 + (ct*2 + rt)*4; o = 16 + 12*rt + 2*ct
            a(f"v_cvt_pk_bf16_f32 v{o}, v{d}, v{d+1}"); a(f"v_cvt_pk_bf16_f32 v{o+1}, v{d+2}, v{d+3}")
        for i in range(3):
            a(f"buffer_store_dwordx4 v[{16+12*rt+4*i}:{19+12*rt+4*i}], v5, s[{SS}:{SS+3}], s41 offen offset:{i*1024} {ST}", tag="P")
        if rt == 0: a("s_add_u32 s41, s41, 3072")
    a("s_barrier")
    for ct in range(5): a(f"ds_read_b128 v[{OV+8*ct}:{OV+8*ct+3}], v14 offset:{ct*1024}")
    a.vmall()
    publish(a, 40, 5, 6, 7)
    a("s_branch L_kept")
    a.label("L_keep")
    a("s_nop 7")
    for ct in range(5): a(f"ds_write_b128 v14, v[{AC2+8*ct+4}:{AC2+8*ct+7}] offset:{ct*1024}")
    a.lgall()
    a("s_barrier")
    a.label("L_kept")
    a.vm = []
    run(a, sp_base(34))
    sp_issue(a, [0], [10])
    a("v_mov_b32 v6, 0x3f80"); a("v_mov_b32 v7, 0x3f800000")
    a.lgall()
    for ct in range(5):
        for k in range(2):
            a(f"v_dot2c_f32_bf16 v{OV+8*ct+2*k}, v{B2+2*ct+k}, v6"); a(f"v_dot2c_f32_bf16 v{OV+8*ct+2*k+1}, v{B2+2*ct+k}, v7")
    a.dstamp("fin", 1)
    sp_check(a, [0], [10], 5)
    a.dstamp("fin", 2)
    for i in range(3): a(f"buffer_load_dwordx4 v[{PV+4*i}:{PV+4*i+3}], v5, s[{SS}:{SS+3}], s35 offen offset:{i*1024} sc1", tag=f"p{i}")
    a("s_barrier")
    SV_, XV, XFF, E = 16, 40, 56, 128
    for ct in range(5):
        a(f"ds_read_b128 v[{SV_+4*ct}:{SV_+4*ct+3}], v208 offset:{ct*64}", tag="s")
        a(f"ds_read_b64 v[{XV+2*ct}:{XV+2*ct+1}], v209 offset:{ct*32}", tag="x")
    a.lgwait("x")
    for i in range(10):
        a(f"v_lshlrev_b32 v{XFF+2*i}, 16, v{XV+i}"); a(f"v_and_b32 v{XFF+2*i+1}, 0xffff0000, v{XV+i}")
    def ov(i): return OV + 8*(i // 4) + i % 4
    for i in range(10):
        a.vmwait(f"p{i//4}")
        if i == 8: a.dstamp("fin", 3)
        a(f"v_dot2c_f32_bf16 v{ov(2*i)}, v{PV+i}, v6"); a(f"v_dot2c_f32_bf16 v{ov(2*i+1)}, v{PV+i}, v7")
    for i in range(20): a(f"v_mul_f32 v{E+i}, {fl(-LOG2E)}, v{ov(i)}")
    for i in range(20): a(f"v_exp_f32 v{E+i}, v{E+i}")
    for i in range(20): a(f"v_mul_f32 v{SV_+i}, v{SV_+i}, v{ov(i)}")
    for i in range(20): a(f"v_add_f32 v{E+i}, 1.0, v{E+i}")
    for i in range(20): a(f"v_rcp_f32 v{E+i}, v{E+i}")
    for ct in range(5):
        for i in range(4*ct, 4*ct + 4): a(f"v_fmac_f32 v{XFF+i}, v{SV_+i}, v{E+i}")
        a(f"v_cvt_pk_bf16_f32 v{XV+2*ct}, v{XFF+4*ct}, v{XFF+4*ct+1}")
        a(f"v_cvt_pk_bf16_f32 v{XV+2*ct+1}, v{XFF+4*ct+2}, v{XFF+4*ct+3}")
        a(f"ds_write_b64 v209, v[{XV+2*ct}:{XV+2*ct+1}] offset:{ct*32}")
    a.lgall()
    a.dstamp("fin", 4)
    a("s_barrier")
    a.stamp(9)
    a.dump(10, SS, S_V, 0, tmp=32)
    a("s_endpgm")

    a.label("L_CB")
    a.lg = []
    a.vm = []
    st_h(a, 1)
    a("s_waitcnt vmcnt(6)")
    a.label("L_CB2")
    a("s_load_dwordx2 s[4:5], s[0:1], 64")
    a.stamp(6); a.dstamp("c", 1); a.dstamp("fft", 9); a.dstamp("p", 9)
    a("s_barrier")
    a.stamp(7)
    publish(a, S_LA, 5, 28, 29)
    def bar(j):
        a.vmwait(f"st{j}")
        if j < 8: a.dstamp("c", j + 1)
        a("s_barrier")
    FX = 212; HF = 220
    t = 128
    setup = lines(f"""s_lshr_b32 s{S_C8}, s2, 5
    s_and_b32 s{S_KH}, s2, 1
    v_lshrrev_b32 v{FG}, 4, v1
    v_and_b32 v{FL}, 15, v1
    s_lshl_b32 s62, s{S_RB}, 2
    s_lshl_b32 s63, s{S_KH}, 1
    s_add_u32 s62, s62, s63
    s_mul_i32 s36, s{S_C8}, 80
    s_lshl_b32 s37, s36, 1
    s_sub_u32 s37, 1200, s37
    s_mul_i32 s38, s62, 1280
    s_add_u32 s36, s36, s38
    s_lshl_b32 s38, s{S_W}, 6
    s_mov_b32 s39, {64*1280}
    s_mul_i32 s{S_CB}, s{S_C8}, 40
    s_lshl_b32 s63, s{S_W}, 4
    s_add_u32 s{S_CB}, s{S_CB}, s63
    v_cmp_eq_u32 s[{M_G0}:{M_G0+1}], 0, v{FG}
    v_cmp_eq_u32 s[{M_G2}:{M_G2+1}], 2, v{FG}""")
    for e in range(3):
        setup += lines(f"""v_add_u32 v{t}, s38, v1
        v_add_u32 v{t}, {256*e}, v{t}
        v_mul_u32_u24 v{t+1}, 13108, v{t}
        v_lshrrev_b32 v{t+1}, 16, v{t+1}
        v_mul_u32_u24 v{t+2}, 5, v{t+1}
        v_sub_u32 v{t+2}, v{t}, v{t+2}
        v_bfe_u32 v{t+3}, v{t+1}, 1, 5
        v_mul_lo_u32 v{t+3}, v{t+3}, s39
        v_lshl_add_u32 v{t+3}, v{t+2}, 4, v{t+3}
        v_lshrrev_b32 v{t+2}, 6, v{t+1}
        v_mul_u32_u24 v{t+2}, 1280, v{t+2}
        v_and_b32 v{t+1}, 1, v{t+1}
        v_mul_u32_u24 v{t+1}, s37, v{t+1}
        v_add3_u32 v{t+3}, v{t+3}, v{t+1}, v{t+2}
        v_add_u32 v{FX+e}, s36, v{t+3}""")
    setup += lines(f"""v_mov_b32 v{t}, {BIG}
    v_cmp_gt_u32 vcc, 640, v{t}""".replace(f"v_cmp_gt_u32 vcc, 640, v{t}", f"s_cmp_lt_u32 s{S_W}, 2\n s_cselect_b64 vcc, -1, 0\n v_cndmask_b32 v{FX+2}, v{t}, v{FX+2}, vcc"))
    c = t + 4
    gen = setup + g_head(t) + g_seq(t, 8, 96, 112, lambda m, r: GE + 4*m + r, lambda m, r: GO + 4*m + r,
                                    [4*(j//2) + j % 2 for j in range(8)], (M_G0, M_G2))
    gen += lines(f"""v_lshlrev_b32 v{t}, 6, v{FL}
    v_add_u32 v{t}, s62, v{t}
    v_cvt_f32_u32 v{t}, v{t}
    v_mul_f32 v{t}, {fl(1/2048)}, v{t}
    v_lshlrev_b32 v{t+1}, 1, v{FG}
    v_cvt_f32_u32 v{t+1}, v{t+1}
    v_cvt_f32_u32 v{t+2}, v{FL}
    v_mul_f32 v{t+2}, 0.5, v{t+2}""")
    for y in range(2):
        for tt in range(2):
            if tt: gen.append(f"v_add_f32 v{t}, 0.5, v{t}")
            elif y: gen.append(f"v_add_f32 v{t}, {fl(1/2048 - 0.5)}, v{t}")
            gen.append(f"v_mul_f32 v{t+3}, v{t+1}, v{t}")
            for jj in range(8):
                jo = 8*(jj//4) + (jj % 4)//2
                if jj % 2: gen.append(f"v_add_f32 v{c+jj}, {fl(0.25)}, v{c+jj-1}")
                elif jo: gen.append(f"v_fmamk_f32 v{c+jj}, v{t}, {fl(jo)}, v{t+3}")
                else: gen.append(f"v_mov_b32 v{c+jj}, v{t+3}")
            gen.append(f"v_cndmask_b32 v{c+1}, v{c+1}, v{t+2}, s[{M_G0}:{M_G0+1}]")
            for jj in range(8): gen.append(f"v_cos_f32 v{c+jj}, v{c+jj}")
            for r in range(4): gen.append(f"v_cvt_pk_bf16_f32 v{HF+8*y+4*tt+r}, v{c+2*r}, v{c+2*r+1}")
    gen += lines(f"""v_mul_u32_u24 v6, 320, v{FL}
    s_lshl_b32 s38, s{S_W}, 6
    v_lshl_add_u32 v12, v{FG}, 4, s38
    v_add_u32 v6, {LS}, v6
    v_sub_u32 v13, 304, v12
    v_add_u32 v12, v6, v12
    v_add_u32 v13, v6, v13
    v_bfe_u32 v2, v1, 2, 2
    v_and_b32 v2, 2, v2
    v_and_b32 v3, 1, v{FG}
    v_xor_b32 v2, v2, v3
    v_lshlrev_b32 v2, 4, v2
    v_lshl_add_u32 v2, v{FL}, 6, v2
    v_lshrrev_b32 v3, 1, v{FG}
    v_lshl_add_u32 v2, v3, 11, v2
    v_add_u32 v4, {YB}, v2
    v_add_u32 v2, {YA}, v2
    v_xor_b32 v3, 32, v2
    v_xor_b32 v5, 32, v4""")
    ns = len(setup)
    cut = [0, ns] + [ns + (len(gen) - ns)*k//6 for k in range(1, 7)]
    def part(k): run(a, gen[cut[k]:cut[k+1]])
    def mix(st, k):
        hl = st_hl(a, st); g = gen[cut[k]:cut[k+1]]
        for j in range(6):
            run(a, hl[j]); run(a, g[j*len(g)//6:(j+1)*len(g)//6])
    def yload(y):
        a(f"""s_add_u32 s{T0}, s62, {y}
        s_mul_i32 s{T0}, s{T0}, {YS}
        s_mul_i32 s{T1}, s{S_W}, 10240
        s_add_u32 s{T0}, s{T0}, s{T1}
        s_add_u32 s{T0}, s{T0}, {WS_Y}""")
        for i in range(10):
            if i % 4 == 0:
                a(f"s_add_u32 m0, s{T1}, {(YA, YB)[y] + i*1024}")
                if i: a(f"s_add_u32 s{T0}, s{T0}, 4096")
            a(f"buffer_load_dwordx4 v9, s[{SS}:{SS+3}], s{T0} offen offset:{(i%4)*1024} sc1 lds", tag=f"y{y}")
    sp_issue(a, L6, D6)
    st_h(a, 2)
    h_touch(a, (S_PG + 3,), 11)
    part(0)
    bar(1)
    sp_check(a, L6, D6, 3); mix(3, 1)
    bar(2)
    sp_issue(a, L6, D6); run(a, sp_base(S_HFB)); sp_issue(a, L6, D6A)
    mix(4, 2)
    bar(3)
    h_touch(a, (S_PG + 4,), 11)
    sp_check(a, L6, D6A, 4); run(a, sp_base(S_HFA)); sp_check(a, L6, D6, 4); mix(5, 3)
    bar(4)
    sp_issue(a, L6, D6); run(a, sp_base(S_HFB)); sp_issue(a, L6, D6A)
    mix(6, 4)
    bar(5)
    a(f"""s_mov_b64 s[{S_MSK}:{S_MSK+1}], 0xfffff
    s_mul_i32 s63, s{S_W}, 2560
    s_add_u32 s63, s63, {F_YF}
    v_lshlrev_b32 v7, 7, v1
    v_lshlrev_b32 v9, 4, v1""")
    poll_issue(a, 7, 63, S_MSK, 10)
    sp_check(a, L6, D6A, 5); run(a, sp_base(S_HFA)); sp_check(a, L6, D6, 5); mix(7, 5)
    poll_check(a, 7, 63, 5, S_MSK, 10, sleep=OPT['ysleep'])
    bar(6)
    st_h(a, 8); yload(0)
    bar(7)
    yload(1); part(6)
    a.vmwait("y0")
    bar(8)
    for e in range(3):
        if e == 2: a(f"s_cmp_ge_u32 s{S_W}, 2"); a("s_cbranch_scc1 L_nx3")
        a(f"s_add_u32 m0, s7, {LX + e*4096}")
        a(f"buffer_load_dwordx4 v{FX+e}, s[{SX}:{SX+3}], 0 offen lds", tag="x")
    a.label("L_nx3")
    YF_ = 96; AC = 144
    def yread(y, m):
        for i in range(4):
            cc, rt = divmod(i, 2)
            b = YF_ + 16*(m % 2) + 4*i
            a(f"ds_read_b128 v[{b}:{b+3}], v{2+2*y+cc} offset:{m*4096 + rt*1024}", tag=f"y{y}_{m}_{i}")
    def idft(y):
        yread(y, 0); yread(y, 1)
        for m in range(10):
            for i in range(4):
                a.lgwait(f"y{y}_{m}_{i}")
                b = YF_ + 16*(m % 2) + 4*i; d = AC + 16*y + 4*i; g = (GE, GO)[i // 2] + 4*m
                a(f"v_mfma_f32_16x16x32_bf16 v[{d}:{d+3}], v[{b}:{b+3}], v[{g}:{g+3}], " + ("0" if m == 0 else f"v[{d}:{d+3}]"))
            if m + 2 < 10: yread(y, m + 2)
    idft(0)
    a.dstamp("fin", 1)
    a.vmall()
    a.stamp(8); a.dstamp("c", 9)
    a("s_barrier")
    a.dstamp("fin", 2)
    a(f"s_cmp_eq_u32 s{S_W}, 3")
    a("s_cbranch_scc1 L_nod")
    idft(1)
    SR = 176
    for y in range(2):
        for i in range(8):
            a(f"v_add_f32 v{96+i}, v{AC+16*y+i}, v{AC+16*y+8+i}")
            a(f"v_sub_f32 v{104+i}, v{AC+16*y+i}, v{AC+16*y+8+i}")
        for side in range(2):
            for r in range(4): a(f"v_cvt_pk_bf16_f32 v{112+8*y+4*side+r}, v{96+8*side+2*r}, v{97+8*side+2*r}")
        for side in range(2):
            for rt in range(2):
                d = SR + 16*y + (side*2 + rt)*4
                a(f"v_mfma_f32_16x16x32_bf16 v[{d}:{d+3}], v[{112+8*y+4*side}:{115+8*y+4*side}], v[{HF+8*y+4*rt}:{HF+8*y+4*rt+3}], 0")
    a(f"""s_cmp_eq_u32 s{S_W}, 2
    s_cselect_b32 exec_hi, 0, -1""")
    for y in range(2):
        for side in range(2):
            for rt in range(2):
                d = SR + 16*y + (side*2 + rt)*4; o = 16 + 4*((y*4 + side*2 + rt) % 8)
                for i in range(4): a(f"v_mul_f32 v{o+i}, {fl(2.0/(2048*640))}, v{d + (3 - i if side else i)}")
                a(f"ds_write_b128 v{12+side}, v[{o}:{o+3}] offset:{y*10240 + rt*5120}")
    a("s_mov_b64 exec, -1")
    a.label("L_nod")
    a(f"""v_add_u32 v9, s7, v9
    s_mov_b32 s6, 2621440
    s_mov_b32 s7, 0x00020000
    v_add_u32 v9, {LX}, v9
    s_waitcnt lgkmcnt(0)""")
    a.dstamp("fin", 3)
    a("s_barrier")
    a("s_barrier")
    a.dstamp("fin", 4)
    for e in range(3): a(f"ds_read_b128 v[{96+4*e}:{99+4*e}], v9 offset:{e*4096}", tag=f"o{e}")
    for e in range(3):
        a.lgwait(f"o{e}")
        a(f"buffer_store_dwordx4 v[{96+4*e}:{99+4*e}], v{FX+e}, s[4:7], 0 offen {OPT['outsc']}")
    if a.prof: a.vmall()
    a.dstamp("fin", 5)
    a.stamp(9)
    a.dump(10, SS, S_V, 0, tmp=32)

def fused(prof=False):
    a = Asm(); a.prof = prof
    prologue(a)
    a(f"""s_cmp_lt_u32 s{S_IDX}, 6
    s_cbranch_scc1 L_mlp
    s_sub_u32 s{S_IDX}, s{S_IDX}, 6
    s_cmp_lt_u32 s{S_IDX}, 2
    s_cbranch_scc1 L_dft
    s_add_u32 s{S_IDX}, s{S_IDX}, 4
    s_cmp_lt_u32 s{S_IDX}, 11
    s_cbranch_scc1 L_mlp
    s_sub_u32 s{S_IDX}, s{S_IDX}, 9
    s_branch L_dft""")
    mlp(a)
    dft(a)
    phase_c(a)
    a.label("L_end")
    a("s_endpgm")
    return a

if __name__ == "__main__":
    import sys
    from build import HEAD
    NAME = "recurrent_scan__spectral_gfnet__mixer_channel_mlp__prompt_kernel"
    a = fused("prof" in sys.argv)
    s = HEAD + "; @launch grid=(256,1,1) block=(512,1,1) lds=163840\n"
    s += '.amdgcn_target "amdgcn-amd-amdhsa--gfx950"\n.text\n'
    s += f".globl {NAME}\n.p2align 8\n.type {NAME},@function\n{NAME}:\n" + a.text()
    s += "CODE_END:\n    s_endpgm\n.p2align 6\n.type ORDER_TAB,@object\nORDER_TAB:\n" + "".join(f".long {x}\n" for x in order_table()) + '.section .rodata,"a"\n' + kernel_desc(NAME, 256, sgpr=102)
    open(sys.argv[1], "w").write(s)
    print("nops", a.nops, "lines", len(a.lines))
```

```python
from asmlib import *
import os
OPT = dict(recc=7, rpc=0, pfe=1, tpad=2176, ypad=384, ysleep=12, crot=1, stsc="sc1", ht=0, wt=0, sx0=1, outsc="", pfw2=1, sleep=2, rot=1, ntx="", ntw="", n0=1, pf=1)
for kv in os.environ.get("OPT", "").split(","):
    if "=" in kv:
        k, v = kv.split("="); OPT[k] = int(v) if v.lstrip("-").isdigit() else v

WS_H, WS_T, WS_Y, WS_P, WS_F = 0, 0x800000, 0xC00000, 0x1000000, 0x1B00000
WS_S = WS_F + 0x80000
F_CF, WS_CS = WS_F + 0x90000, WS_F + 0xA0000
TS = 163840 + OPT['tpad']; YS = 40960 + OPT['ypad']
WS_SIZE = 0x2000000
F_EP, F_TF, F_YF, F_HB, F_HA, F_PF = WS_F, WS_F + 0x1000, WS_F + 0x4000, WS_F + 0x20000, WS_F + 0x40000, WS_F + 0x60000
F_RF = WS_F + 0x90000
WS_W2 = 0x1400000
ST = "sc1"
K0 = -2.0 * 0.7978845608028654 * 1.4426950408889634
K1C = K0 * 0.044715
LOG2E = 1.4426950408889634
BIG = 0x7f000000
SPIN = 40000

SG, SX, SW, SB, SS = 4, 12, 16, 20, 24
S_TAG = 3
S_V, S_RB, S_IDX, S_ROT = 28, 29, 30, 31
S_SX, S_SBO = 32, 42
S_W, S_SET = 52, 53
T0, T1, T2, T3 = 54, 55, 56, 57
S_LA, S_LB, S_LC = 58, 59, 60
S_PG, S_B1, S_NP, S_M4, S_M2, S_MSK = 61, 66, 71, 72, 73, 74
S_DBG = 100
XSLOT = 81920
S_PK = 44

def srd(a, base, ptr, size):
    a(f"""s_mov_b32 s{base}, s{ptr}
    s_and_b32 s{base+1}, s{ptr+1}, 0xffff
    s_mov_b32 s{base+2}, {size}
    s_mov_b32 s{base+3}, 0x00020000""")

def stats_math(a, vsum, vssq, t0, t1, r1, rr=None):
    a(f"""v_mul_f32 v{vsum}, {fl(1/640)}, v{vsum}
    v_mul_f32 v{vssq}, {fl(1/640)}, v{vssq}
    v_fma_f32 v{t0}, -v{vsum}, v{vsum}, v{vssq}
    v_max_f32 v{t0}, 0, v{t0}
    v_add_f32 v{t1}, {fl(1e-5)}, v{t0}
    v_rsq_f32 v{r1}, v{t1}""")
    if rr is not None:
        a(f"""v_mul_f32 v{t1}, v{r1}, v{r1}
        v_mul_f32 v{t1}, v{t1}, v{t0}
        v_add_f32 v{t1}, {fl(1e-5)}, v{t1}
        v_rsq_f32 v{t1}, v{t1}
        v_mul_f32 v{rr}, v{r1}, v{t1}""")

_uid = [0]
def uid(p):
    _uid[0] += 1
    return f"{p}_{_uid[0]}"

def tag_issue(a, v, vz):
    a(f"v_mov_b32 v{vz}, 0")
    a(f"global_load_dword v{v}, v{vz}, s[{S_DBG}:{S_DBG+1}] sc1", tag="tag")
def tag_check(a, v, vz):
    L = uid("Ltag")
    a.vmwait("tag"); vm = list(a.vm)
    a(f"""s_mov_b32 s{T3}, 0
    {L}:
    v_readfirstlane_b32 s{S_TAG}, v{v}
    s_add_u32 s{T3}, s{T3}, 1
    s_cmp_lg_u32 s{S_TAG}, 0
    s_cbranch_scc1 {L}d
    s_cmp_ge_u32 s{T3}, {SPIN}
    s_cbranch_scc1 {L}d
    s_sleep {OPT['sleep']}
    global_load_dword v{v}, v{vz}, s[{S_DBG}:{S_DBG+1}] sc1
    s_waitcnt vmcnt(0)
    s_branch {L}
    {L}d:
    s_and_b32 s{S_TAG}, s{S_TAG}, -8""")
    a.vm = vm
def pad_op(a, vz):
    a(f"v_mov_b32 v{vz}, 0")
    a(f"global_load_dword v0, v{vz}, s[{S_DBG}:{S_DBG+1}]", tag="pad")
def keep_vm(f):
    def g(a, *x, **k):
        vm = list(a.vm); f(a, *x, **k); a.vm = vm
    return g

def publish(a, soff, cnt, v, vz, t=T3):
    a(f"""s_or_b32 s{t}, s{S_TAG}, {cnt}
    v_mov_b32 v{v}, s{t}
    v_mov_b32 v{vz}, 0
    s_mov_b64 exec, 1""")
    a(f"buffer_store_dword v{v}, v{vz}, s[{SS}:{SS+3}], s{soff} offen {ST}", tag="flag")
    a("s_mov_b64 exec, -1")

def poll_issue(a, voff, soff, smask, v, nload=1, stride=256):
    a(f"s_mov_b64 exec, s[{smask}:{smask+1}]")
    for i in range(nload):
        a(f"buffer_load_dword v{v+i}, v{voff}, s[{SS}:{SS+3}], s{soff} offen offset:{i*stride} sc1", tag="poll")
    a("s_mov_b64 exec, -1")
def poll_check(a, voff, soff, need, smask, v, nload=1, stride=256, sleep=None):
    L = uid("Lpoll")
    a.vmwait("poll")
    vm = list(a.vm)
    a(f"""s_mov_b32 s{T2}, 0
    s_add_u32 s{T3}, s{S_TAG}, {need}
    s_mov_b64 exec, s[{smask}:{smask+1}]
    {L}:""")
    for i in range(nload): a(f"v_subrev_u32 v{v+i}, s{T3}, v{v+i}")
    for i in range(1, nload): a(f"v_max_u32 v{v}, v{v}, v{v+i}")
    a(f"""v_cmp_lt_u32 vcc, {7-need}, v{v}
    s_add_u32 s{T2}, s{T2}, 1
    s_cbranch_vccz {L}d
    s_cmp_ge_u32 s{T2}, {SPIN}
    s_cbranch_scc1 {L}d
    s_sleep {sleep or OPT['sleep']}""")
    for i in range(nload):
        a(f"buffer_load_dword v{v+i}, v{voff}, s[{SS}:{SS+3}], s{soff} offen offset:{i*stride} sc1")
    a(f"""s_waitcnt vmcnt(0)
    s_branch {L}
    {L}d:
    s_mov_b64 exec, -1""")
    a.vm = vm
def poll(a, voff, soff, need, smask, v, nload=1, stride=256):
    poll_issue(a, voff, soff, smask, v, nload, stride); poll_check(a, voff, soff, need, smask, v, nload, stride)

SPB = 8
def sp_base(off):
    return [f"s_add_u32 s{SPB}, s{SS}, s{off}", f"s_addc_u32 s{SPB+1}, s{SS+1}, 0"]
def sp_issue(a, offs, dst):
    for o, d in zip(offs, dst): a(f"s_load_dword s{d}, s[{SPB}:{SPB+1}], {o} glc")
def sp_check(a, offs, dst, needs):
    L = uid("Lsp")
    a(f"""s_mov_b32 s{T2}, 0
    s_add_u32 s{T3}, s{S_TAG}, {needs}
    {L}:
    s_waitcnt lgkmcnt(0)""")
    for d in dst: a(f"s_sub_u32 s{d}, s{d}, s{T3}")
    for d in dst[1:]: a(f"s_max_u32 s{dst[0]}, s{dst[0]}, s{d}")
    a(f"""s_cmp_le_u32 s{dst[0]}, {7-needs}
    s_cbranch_scc1 {L}d
    s_add_u32 s{T2}, s{T2}, 1
    s_cmp_ge_u32 s{T2}, {SPIN}
    s_cbranch_scc1 {L}d
    s_sleep {OPT['sleep']}""")
    sp_issue(a, offs, dst)
    a(f"""s_branch {L}
    {L}d:""")
L6 = [128*i for i in range(6)]
D6 = [10, 11, 42, 43, 50, 51]
D6A = [66, 67, 68, 69, 70, 96]

VXO = 2
def prologue(a):
    a.label("L_first")
    a.stamp(0)
    R = OPT["rot"]
    ROT = {1: f"s_mul_i32 s{T3}, s{T3}, 3\n s_add_u32 s{S_ROT}, s{T3}, s{T1}",
           2: f"s_add_u32 s{T3}, s{T3}, s{T1}\n s_and_b32 s{T3}, s{T3}, 1\n s_mul_i32 s{S_ROT}, s{T3}, 5",
           4: f"s_add_u32 s{T3}, s{T3}, s{T1}\n s_and_b32 s{S_ROT}, s{T3}, 1",
           0: f"s_mov_b32 s{S_ROT}, 0"}[R]
    a(f"""s_load_dwordx2 s[{SX}:{SX+1}], s[0:1], 0
    s_load_dwordx2 s[{SW}:{SW+1}], s[0:1], 32
    s_load_dwordx2 s[{SS}:{SS+1}], s[0:1], 80
    s_load_dwordx2 s[{SB}:{SB+1}], s[0:1], 40
    s_load_dwordx2 s[{S_DBG}:{S_DBG+1}], s[0:1], 72
    s_load_dwordx2 s[8:9], s[0:1], 48
    s_cmp_ge_u32 s2, 256
    s_cbranch_scc1 L_end
    v_lshrrev_b32 v2, 6, v0
    v_and_b32 v1, 63, v0
    v_readfirstlane_b32 s{S_V}, v2""")
    if OPT["pfe"]:
        a(f"""s_and_b32 s{T0}, s2, 1
        s_lshl_b32 s{T0}, s{T0}, 3
        s_lshr_b32 s{T1}, s2, 5
        s_add_u32 s{T0}, s{T0}, s{T1}
        s_bitcmp0_b32 0xe0c0, s{T0}
        s_cbranch_scc1 L_npe
        s_sub_u32 s{T1}, s{S_V}, 1
        s_cmp_ge_u32 s{T1}, 2
        s_cbranch_scc1 L_npe
        s_getpc_b64 s[96:97]
        L_pe:
        s_bfe_u32 s{T0}, s2, 0x20003
        s_lshl_b32 s{T1}, s{T1}, 2
        s_add_u32 s{T0}, s{T0}, s{T1}
        s_lshl_b32 s{T0}, s{T0}, 13
        v_lshl_add_u32 v9, v1, 7, s{T0}
        v_min_u32 v9, CODE_END - L_pe + 384, v9
        global_load_dword v0, v9, s[96:97]
        L_npe:""")
    a(f"""s_mov_b32 s{SX+2}, 2621440
    s_mov_b32 s{SX+3}, 0x00020000
    s_mov_b32 s{SW+2}, 2211840
    s_mov_b32 s{SW+3}, 0x00020000
    s_and_b32 s{T0}, s2, 7
    s_lshr_b32 s{T1}, s2, 3
    s_lshr_b32 s{T2}, s{T0}, 1
    s_lshl_b32 s{T2}, s{T2}, 2
    s_and_b32 s{T3}, s{T1}, 3
    s_add_u32 s{S_RB}, s{T2}, s{T3}
    s_lshr_b32 s{T1}, s{T1}, 2
    s_and_b32 s{T0}, s{T0}, 1
    {ROT}
    s_lshl_b32 s{S_IDX}, s{T0}, 3
    s_add_u32 s{S_IDX}, s{S_IDX}, s{T1}
    s_cmp_ge_u32 s{S_ROT}, 10
    s_cselect_b32 s{T2}, 10, 0
    s_sub_u32 s{S_ROT}, s{S_ROT}, s{T2}
    s_lshl_b32 s{S_SX}, s{S_ROT}, 7
    s_and_b32 s{S_W}, s{S_V}, 3
    s_lshr_b32 s{S_SET}, s{S_V}, 2
    s_lshl_b32 s{S_M4}, s{S_W}, 12
    s_lshl_b32 s{S_M2}, s{S_W}, 11
    v_lshrrev_b32 v6, 3, v1
    v_mul_u32_u24 v6, {64*1280}, v6
    s_lshl_b32 s{T1}, s{S_RB}, 2
    s_add_u32 s{T0}, s{S_W}, s{T1}
    s_mul_i32 s{T0}, s{T0}, 1280
    v_add_u32 v6, s{T0}, v6
    v_and_b32 v7, 7, v1
    v_lshrrev_b32 v8, 4, v1
    v_xor_b32 v7, v7, v8
    v_lshl_add_u32 v{VXO}, v7, 4, v6
    v_xor_b32 v7, 4, v7
    v_lshl_add_u32 v{VXO+1}, v7, 4, v6
    v_add_u32 v{VXO+1}, {8*64*1280}, v{VXO+1}
    v_add_u32 v{VXO+2}, {16*64*1280}, v{VXO}
    v_add_u32 v{VXO+3}, {16*64*1280}, v{VXO+1}
    s_mov_b32 s{SB+2}, 3456
    s_mov_b32 s{SB+3}, 0x00020000
    s_mov_b32 s{SS+2}, {WS_SIZE}
    s_mov_b32 s{SS+3}, 0x00020000""")
    a.vm = []
def code_prefetch(a, v):
    if not OPT["pf"] or OPT["pfe"]: return
    L = uid("Lpf")
    a(f"""s_cmp_lg_u32 s{S_V}, 1
    s_cbranch_scc1 {L}
    s_getpc_b64 s[96:97]
    {L}p:
    s_sub_u32 s96, s96, {L}p - L_first
    s_subb_u32 s97, s97, 0
    s_bfe_u32 s{T0}, s2, 0x30003
    s_lshl_b32 s{T0}, s{T0}, 13
    v_lshl_add_u32 v{v}, v1, 7, s{T0}
    v_min_u32 v{v}, CODE_END - L_first - 128, v{v}""")
    vm = list(a.vm); a(f"global_load_dword v0, v{v}, s[96:97]"); a.vm = vm
    a.label(L)
def sx_table(a):
    for c in range(1, 10):
        a(f"""s_add_u32 s{S_SX+c}, s{S_SX+c-1}, 128
        s_cmp_eq_u32 s{S_SX+c}, 1280
        s_cselect_b32 s{S_SX+c}, 0, s{S_SX+c}""")
def rec_issue(a, voff, v):
    a(f"buffer_load_dwordx4 v[{v}:{v+3}], v{voff}, s[{SS}:{SS+3}], 0 offen sc1", tag="rec")
def rec_check(a, voff, v):
    L = uid("Lrec")
    a.vmwait("rec"); vm = list(a.vm)
    a(f"""s_mov_b32 s{T2}, 0
    s_or_b32 s{T3}, s{S_TAG}, 7
    {L}:
    v_cmp_ne_u32 vcc, s{T3}, v{v+3}
    s_add_u32 s{T2}, s{T2}, 1
    s_cbranch_vccz {L}d
    s_cmp_ge_u32 s{T2}, {SPIN}
    s_cbranch_scc1 {L}d
    s_sleep {OPT['sleep']}
    buffer_load_dwordx4 v[{v}:{v+3}], v{voff}, s[{SS}:{SS+3}], 0 offen sc1
    s_waitcnt vmcnt(0)
    s_branch {L}
    {L}d:""")
    a.vm = vm
def rec_addr(a, v):
    a(f"""s_lshl_b32 s{T0}, s{S_RB}, 11
    s_lshl_b32 s{T1}, s{S_W}, 9
    s_add_u32 s{T0}, s{T0}, s{T1}
    s_add_u32 s{T0}, s{T0}, {WS_S}
    v_and_b32 v{v}, 31, v1
    v_lshl_add_u32 v{v}, v{v}, 4, s{T0}""")

def x_dma(a, c):
    slot = c % 5
    for e in range(4):
        a(f"s_add_u32 m0, s{S_M4}, {XSLOT + slot*16384 + e*1024}")
        a(f"buffer_load_dwordx4 v{VXO+e}, s[{SX}:{SX+3}], s{S_SX+c} offen {OPT['ntx']} lds", tag=f"x{c}")

def panel_order(kh):
    def pidx(P):
        cg, r = divmod(P, 5)
        return r if cg % 2 == 0 else (4 if r == 0 else r - 1)
    ps = sorted(range(27*kh, 27*kh + 27), key=lambda P: (pidx(P), P))
    for n, c in ((9, 1), (15, 2), (21, 3)): assert all(pidx(P) <= c for P in ps[:n])
    return ps
SLOT = [122880, 81920, 0]
SG2 = 92
S_HFA, S_HFB = 98, 99
VST = 240
def order_table():
    def pack(ps, lo): return sum(p << (6*i) for i, p in enumerate(ps[lo:lo+5]))
    o = []
    for v in range(8):
        for kh in range(2):
            ps = panel_order(kh); r = []
            for lo, hi in ((0, 9), (9, 15), (15, 21), (21, 27)):
                seg = ps[lo:hi]; k = (v * OPT["crot"]) % len(seg)
                r += seg[k:] + seg[:k]
            o += [pack(r, 5*j) for j in range(6)] + [0, 0]
    return o
def st_table(a):
    L = uid("Lot")
    a(f"""s_getpc_b64 s[96:97]
    {L}:
    s_lshr_b32 s{T0}, s2, 5
    s_lshl_b32 s{T1}, s{S_RB}, 1
    s_add_u32 s{T0}, s{T0}, s{T1}
    s_and_b32 s{T0}, s{T0}, 7
    s_lshl_b32 s{T0}, s{T0}, 1
    s_and_b32 s{T1}, s2, 1
    s_add_u32 s{T0}, s{T0}, s{T1}
    s_lshl_b32 s{T0}, s{T0}, 5
    s_add_u32 s{T0}, s{T0}, ORDER_TAB - {L}
    s_add_u32 s96, s96, s{T0}
    s_addc_u32 s97, s97, 0
    s_load_dwordx4 s[{S_PK}:{S_PK+3}], s[96:97], 0
    s_load_dwordx2 s[{S_PK+4}:{S_PK+5}], s[96:97], 16""")
S_1120 = 5
def st_setup(a):
    a(f"""s_mov_b32 s{SG2}, s8
    s_mov_b32 s{SG2+1}, s9
    s_mov_b32 s{SG2+2}, 2211840
    s_mov_b32 s{SG2+3}, 0x00020000
    s_mov_b32 s{S_1120}, 1120
    s_and_b32 s{T1}, s2, 1
    s_mul_i32 s{S_HFA}, s{T1}, 640
    s_lshl_b32 s{T0}, s{S_RB}, 2
    s_add_u32 s{T0}, s{T0}, s{S_W}
    s_lshl_b32 s{T1}, s{T0}, 11
    s_add_u32 s{S_HFA}, s{S_HFA}, s{T1}
    s_add_u32 s{S_HFB}, s{S_HFA}, {F_HA}
    s_add_u32 s{S_HFA}, s{S_HFA}, {F_HB}
    s_mul_i32 s{T0}, s{T0}, {54*2048}
    v_lshlrev_b32 v245, 4, v1
    v_add_u32 v{VST}, s{T0}, v245
    s_lshr_b32 s{T2}, s2, 5
    s_mul_i32 s{T2}, s{T2}, 160""")
    for m in range(4):
        a(f"""s_add_u32 s{T0}, s{S_W}, {4*m}
        s_mul_i32 s{T1}, s{T0}, 52
        s_lshr_b32 s{T1}, s{T1}, 8
        s_mul_i32 s{T1}, s{T1}, 5
        s_sub_u32 s{T1}, s{T0}, s{T1}
        s_lshl_b32 s{T1}, s{T1}, 6
        v_add_u32 v245, s{T1}, v1
        v_mul_u32_u24 v246, 6554, v245
        v_lshrrev_b32 v246, 16, v246
        v_lshl_add_u32 v245, v245, 4, s{T2}""")
        if m == 3: a(f"s_cmp_eq_u32 s{T0}, 15"); a(f"s_cselect_b32 s{T1}, {BIG}, 0"); a(f"v_add_u32 v245, s{T1}, v245")
        a(f"v_mad_u32_u24 v{VST+1+m}, v246, s{S_1120}, v245")
    a(f"""s_mul_i32 s97, s{S_W}, 6144
    s_lshl_b32 s7, s{S_W}, 10
    s_add_u32 s6, s7, 12288
    s_cmp_eq_u32 s{S_W}, 3
    s_cselect_b32 s6, 39936, s6""")
def st_hl(a, s):
    base = SLOT[s % 3]; o = []
    for i in range(3):
        n = 3*s + i
        for e in range(2):
            g = [f"s_bfe_u32 s{T1}, s{S_PK + n//5}, {(6 << 16) | (6*(n % 5))}", f"s_add_u32 m0, s97, {base + 15360 + i*2048}",
                 f"s_lshl_b32 s{T1}, s{T1}, 11"] if e == 0 else []
            g.append(lambda e=e: a(f"buffer_load_dwordx4 v{VST}, s[{SS}:{SS+3}], s{T1} offen offset:{e*1024} {OPT['stsc']} lds", tag=f"st{s}"))
            o.append(g)
    return o
def st_h(a, s):
    for g in st_hl(a, s): run(a, g)
def st_w(a, s):
    base = SLOT[s % 3]; P = [T0, T1, T2]; o = []
    pre = []
    for i in range(3):
        n = 3*s + i
        pre += [f"s_bfe_u32 s{P[i]}, s{S_PK + n//5}, {(6 << 16) | (6*(n % 5))}", f"s_mul_i32 s{P[i]}, s{P[i]}, 40960"]
    for m in range(4):
        g = pre if m == 0 else []
        g = g + [f"s_add_u32 m0, s7, {base + m*4096}" if m < 3 else f"s_add_u32 m0, s6, {base}"]
        if m == 1: g += [f"s_cmp_eq_u32 s{S_W}, 0", f"s_cselect_b32 s{T3}, s{T0}, s{T1}"]
        if m == 2: g += [f"s_cmp_lt_u32 s{S_W}, 2", f"s_cselect_b32 s{T3}, s{T1}, s{T2}"]
        g.append(lambda m=m: a(f"buffer_load_dwordx4 v{VST+1+m}, s[{SG2}:{SG2+3}], s{[T0, T3, T3, T2][m]} offen lds", tag=f"st{s}"))
        o.append(g)
    return o
def w2_prefetch(a):
    a(f"""s_and_b32 s{T0}, s2, 1
    s_mul_i32 s{T0}, s{T0}, 864
    s_and_b32 s{T1}, s{S_RB}, 3
    s_mul_i32 s{T1}, s{T1}, 216
    s_add_u32 s{T0}, s{T0}, s{T1}
    s_mul_i32 s{T1}, s{S_W}, 54
    s_add_u32 s{T0}, s{T0}, s{T1}
    s_mul_i32 s{T0}, s{T0}, 1280
    s_lshr_b32 s{T1}, s2, 5
    s_mul_i32 s{T1}, s{T1}, 160
    s_add_u32 s{T0}, s{T0}, s{T1}
    v_min_u32 v246, 53, v1
    v_mul_u32_u24 v246, 1280, v246""")
    a(f"buffer_load_dword v0, v246, s[{SG2}:{SG2+3}], s{T0} offen", tag="pf")
    a(f"buffer_load_dword v0, v246, s[{SG2}:{SG2+3}], s{T0} offen offset:156", tag="pf")
def st_issue(a, s):
    st_h(a, s)
    for g in st_w(a, s): run(a, g)

XF = 96; ACC = (64, 80, 48); RING = 32
CSP = 0; B1L = 2560; RCL = 3072; TAGL = 5120; HB = 8192; SGL = 40960; CSW = 73728
V_XA, V_TR, V_L16, V_HO, V_J16 = 2, 6, 14, 18, 19
V_IRR, V_C0, V_C1 = 15, 16, 17
V_TRD = 24

def common_mlp_regs(a):
    a(f"""v_and_b32 v23, 31, v1
    v_lshrrev_b32 v21, 5, v1
    v_lshlrev_b32 v{V_J16}, 4, v23
    v_lshlrev_b32 v{V_HO}, 4, v1
    v_add_u32 v{V_L16}, s{S_M4}, v{V_HO}""")
def handoff_write(a, acc, buf, qs=range(4)):
    for q in qs:
        a(f"ds_write_b128 v{V_L16}, v[{acc+4*q}:{acc+4*q+3}] offset:{HB + buf*16384 + q*1024}", tag="pub")
def row_consts(a, vm, vrr, XE, t):
    a(f"""v_rcp_f32 v{V_IRR}, v{vrr}
    v_mul_f32 v{V_C0}, {fl(K0)}, v{vrr}
    v_mul_f32 v{V_C1}, v{vrr}, v{vrr}
    v_mul_f32 v{V_C1}, v{V_C1}, v{vrr}
    v_mul_f32 v{V_C1}, {fl(K1C)}, v{V_C1}""")
    if XE is None: return
    a(f"""v_sub_f32 v{vm}, 0, v{vm}
    v_cvt_pk_bf16_f32 v{XE}, v{vm}, v{vm}
    v_cvt_pk_bf16_f32 v{t+1}, v{V_IRR}, v{V_IRR}
    v_and_b32 v{t}, 0xffff0000, v{XE}
    v_and_b32 v{t+1}, 0xffff0000, v{t+1}
    v_sub_f32 v{t}, v{vm}, v{t}
    v_sub_f32 v{t+1}, v{V_IRR}, v{t+1}
    v_cvt_pk_bf16_f32 v{XE+1}, v{t}, v{V_IRR}
    v_cvt_pk_bf16_f32 v{XE+2}, v{t+1}, 0
    v_cmp_gt_u32 vcc, 32, v1
    v_mov_b32 v{XE+3}, 0
    v_cndmask_b32 v{XE}, 0, v{XE}, vcc
    v_cndmask_b32 v{XE+1}, 0, v{XE+1}, vcc
    v_cndmask_b32 v{XE+2}, 0, v{XE+2}, vcc""")
def epi_step(a, pidx, q, acc, U):
    P = acc + 4*q; o = []
    for t in range(4): o.append(f"v_mul_f32 v{U+t}, v{P+t}, v{P+t}")
    for t in range(4): o.append(f"v_fma_f32 v{U+t}, v{U+t}, v{V_C1}, v{V_C0}")
    for t in range(4): o.append(f"v_mul_f32 v{U+t}, v{U+t}, v{P+t}")
    for t in range(4): o.append(f"v_exp_f32 v{U+t}, v{U+t}")
    for t in range(4): o.append(f"v_fma_f32 v{U+t}, v{U+t}, v{V_IRR}, v{V_IRR}")
    for t in range(4): o.append(f"v_rcp_f32 v{U+t}, v{U+t}")
    for t in range(4): o.append(f"v_mul_f32 v{P+t}, v{P+t}, v{U+t}")
    d = P - 2*(q % 2)
    o += [f"v_cvt_pk_bf16_f32 v{d}, v{P}, v{P+1}", f"v_cvt_pk_bf16_f32 v{d+1}, v{P+2}, v{P+3}"]
    if q % 2 == 1:
        o.append(lambda: a(f"buffer_store_dwordx4 v[{P-4}:{P-1}], v{V_HO}, s[{SS}:{SS+3}], s{S_PG+pidx} offen offset:{1024*(q//2)} {ST}", tag=f"h{pidx}"))
    return o
def h_touch(a, regs, v):
    if not OPT["ht"]: return
    a(f"v_lshlrev_b32 v{v}, 7, v1")
    a("s_mov_b64 exec, 0xffff")
    for p in regs: a(f"buffer_load_dword v0, v{v}, s[{SS}:{SS+3}], s{p} offen", tag="pf")
    a("s_mov_b64 exec, -1")
def w_touch(a, v):
    if not OPT["wt"]: return
    a(f"""s_lshr_b32 s{T0}, s2, 5
    s_lshl_b32 s{T0}, s{T0}, 1
    s_and_b32 s{T1}, s2, 1
    s_add_u32 s{T0}, s{T0}, s{T1}
    s_mul_i32 s{T0}, s{T0}, {864*160}
    s_and_b32 s{T1}, s{S_RB}, 3
    s_lshl_b32 s{T1}, s{T1}, 2
    s_add_u32 s{T1}, s{T1}, s{S_W}
    s_mul_i32 s{T1}, s{T1}, {68*128}
    s_add_u32 s{T0}, s{T0}, s{T1}
    s_add_u32 s{T0}, s{T0}, {WS_W2}
    v_lshlrev_b32 v{v}, 7, v1""")
    a(f"buffer_load_dword v0, v{v}, s[{SS}:{SS+3}], s{T0} offen", tag="pf")
    a("s_mov_b64 exec, 0xf")
    a(f"s_add_u32 s{T0}, s{T0}, 8192")
    a(f"buffer_load_dword v0, v{v}, s[{SS}:{SS+3}], s{T0} offen", tag="pf")
    a("s_mov_b64 exec, -1")
def lines(t): return [x.strip() for x in t.strip().split("\n")]
def run(a, l):
    for x in l: x() if callable(x) else a(x)
def hf_addr(a, dst, second):
    a(f"""s_lshl_b32 s{dst}, s{S_RB}, 2
    s_add_u32 s{dst}, s{dst}, s{S_W}
    s_lshl_b32 s{dst}, s{dst}, 4
    s_add_u32 s{dst}, s{dst}, s{S_IDX}
    s_lshl_b32 s{dst}, s{dst}, 7
    s_add_u32 s{dst}, s{dst}, {F_HA if second else F_HB}""")

def mlp(a):
    a.label("L_mlp")
    a(f"""s_mul_i32 s{T0}, s{S_IDX}, 5
    s_add_u32 s{T0}, s{T0}, 1
    s_lshr_b32 s{T0}, s{T0}, 1
    s_lshl_b32 s{S_LA}, s{T0}, 7
    s_cmp_eq_u32 s{S_SET}, 0
    s_cbranch_scc1 L_mlpA""")
    def mlp_scalars():
        a(f"""s_add_u32 s{S_LB}, s{S_LA}, 128
        s_add_u32 s{S_LC}, s{S_LA}, 256
        s_sub_u32 s{T0}, s{S_LA}, 64
        s_bitcmp1_b32 s{S_IDX}, 0
        s_cselect_b32 s{S_LC}, s{T0}, s{S_LC}
        s_cmp_eq_u32 s{S_IDX}, 10
        s_cselect_b32 s{S_NP}, 4, 5""")
    COLS = ((S_LA, 0), (S_LA, 64), (S_LB, 0), (S_LB, 64), (S_LC, 0))
    def panel_scalars(ps):
        a(f"""s_lshl_b32 s{T2}, s{S_RB}, 2
        s_add_u32 s{T2}, s{T2}, s{S_W}
        s_mul_i32 s{T2}, s{T2}, {54*2048}""")
        for p in ps:
            base, add = COLS[p]
            a(f"""s_add_u32 s{T0}, s{base}, {add}
            s_lshl_b32 s{S_PG+p}, s{T0}, 5
            s_add_u32 s{S_PG+p}, s{S_PG+p}, s{T2}""")
    VBP, VBS, VB1 = 6, 8, 9
    a(f"""v_lshrrev_b32 v{VBP}, 3, v1
    s_lshl_b32 s{T0}, s{S_W}, 4
    v_add_u32 v{VBP}, s{T0}, v{VBP}
    v_mul_u32_u24 v{VBP}, 3456, v{VBP}
    v_bfe_u32 v23, v1, 4, 1
    v_lshlrev_b32 v23, 2, v23
    v_and_b32 v24, 7, v1
    v_xor_b32 v23, v23, v24
    v_lshl_add_u32 v{VBP}, v23, 4, v{VBP}
    v_add_u32 v{VBP+1}, {8*3456}, v{VBP}""")
    a.dstamp("st", 1)
    a("s_waitcnt lgkmcnt(0)")
    a.dstamp("st", 2)
    def b_dma(c, region, sline, tag):
        a(f"s_mul_i32 s{T0}, s{S_SX+c}, 1728")
        a(f"s_add_u32 s{T0}, s{T0}, s{sline}")
        for e in range(2):
            a(f"s_add_u32 m0, s{S_M2}, {region + c*8192 + e*1024}")
            a(f"buffer_load_dwordx4 v{VBP+e}, s[{SW}:{SW+3}], s{T0} offen {OPT['ntw']} lds", tag=tag)
    def chunk(c):
        x_dma(a, c); b_dma(c, 0, S_LA, f"x{c}")
    n0 = OPT["n0"]
    chunk(0)
    a.dstamp("st", 3)
    sx_table(a)
    for c in range(1, n0): chunk(c)
    a(f"""v_lshrrev_b32 v{VBS}, 2, v1
    s_lshl_b32 s{T0}, s{S_W}, 4
    v_add_u32 v{VBS}, s{T0}, v{VBS}
    v_mul_u32_u24 v{VBS}, 3456, v{VBS}
    v_and_b32 v23, 3, v1
    v_lshl_add_u32 v{VBS}, v23, 4, v{VBS}""")
    mlp_scalars()
    panel_scalars(range(5))
    common_mlp_regs(a)
    hf_addr(a, 31, 0)
    a(f"""s_load_dwordx4 s[68:71], s[0:1], 8
    s_mul_i32 s{T0}, s{S_IDX}, 24
    s_mul_i32 s{T1}, s{S_W}, 6
    s_add_u32 s{T0}, s{T0}, s{T1}
    v_min_u32 v160, 35, v1
    v_mul_u32_u24 v161, 43, v160
    v_lshrrev_b32 v161, 8, v161
    v_mul_u32_u24 v162, 6, v161
    v_sub_u32 v160, v160, v162
    v_add_u32 v161, s{T0}, v161
    v_min_u32 v161, 255, v161
    v_bfe_u32 v162, v161, 6, 1
    s_sub_u32 s{T1}, 32, s{S_RB}
    s_cmp_eq_u32 s{S_RB}, 0
    s_cselect_b32 s{T1}, 16, s{T1}
    s_sub_u32 s{T1}, s{T1}, s{S_RB}
    v_mul_u32_u24 v162, s{T1}, v162
    v_and_b32 v163, 63, v161
    v_lshl_add_u32 v162, v163, 5, v162
    v_add_u32 v162, s{S_RB}, v162
    v_mul_u32_u24 v162, 642, v162
    v_lshl_add_u32 v162, v160, 7, v162
    v_min_u32 v162, {2048*642 - 4}, v162
    v_lshrrev_b32 v161, 7, v161
    v_cmp_ne_u32 s[66:67], 0, v161""")
    st_table(a); st_setup(a)
    run(a, sp_base(S_HFA))
    nxt = n0
    a.dstamp("st", 4)
    for c in range(11):
        if 1 <= c <= 9: a.dstamp("bar", c)
        if c < 10: a.vmwait(f"x{c}")
        if 1 <= c <= 9: a.dstamp("bar2", c)
        if c == 10: a.dstamp("p", 1)
        if c < 4: a.dstamp("st", 5 + c)
        a("s_barrier")
        if c == 0: a.stamp(1)
        k = 0
        while nxt <= min(c + 4, 9) and k < 2:
            chunk(nxt); nxt += 1; k += 1
        if c >= 6:
            m = c - 6
            b_dma(2*m, XSLOT, S_LB, f"p{m}"); b_dma(2*m + 1, XSLOT, S_LB, f"p{m}")
    a(f"s_mov_b32 s{S_LA}, s31")
    a(f"""s_lshl_b32 s{T0}, s{S_W}, 9
    v_add_u32 v22, s{T0}, v{V_J16}""")
    a.vmwait(["p0", "p1", "p2", "p3"])
    a.dstamp("p", 2); a("s_barrier"); a.dstamp("p", 3)
    a.stamp(2)
    AR = {1: 80, 2: 96, 3: 112, 4: 128}
    def rd_acc(p, qs=range(4)):
        for q in qs:
            a(f"ds_read_b128 v[{AR[p]+4*q}:{AR[p]+4*q+3}], v{V_L16} offset:{HB + (p % 2)*16384 + q*1024}", tag=f"acc{p}_{q}")
    def sg(c):
        a(f"s_mul_i32 s{T0}, s{S_SX+c}, 1728")
        a(f"s_add_u32 s{T0}, s{T0}, s{S_LC}")
        a(f"s_add_u32 m0, s{T1}, {SGL + c*4096}")
        a(f"buffer_load_dwordx4 v{VBS}, s[{SW}:{SW+3}], s{T0} offen {OPT['ntw']} lds", tag="sg")
    def step(p, q):
        a.lgwait(f"acc{p}_{q}"); run(a, epi_step(a, p, q, AR[p], 60))
    a(f"ds_read_b128 v[24:27], v22 offset:{RCL}", tag="acc1_0")
    rd_acc(1)
    a(f"s_lshr_b32 s{T1}, s{S_M2}, 1")
    sg(0); sg(1)
    a.lgwait("acc1_0")
    a(f"""v_mov_b32 v{V_IRR}, v25
    v_mov_b32 v{V_C0}, v26
    v_mov_b32 v{V_C1}, v27
    v_readfirstlane_b32 s{S_TAG}, v24""")
    step(1, 0); sg(2); sg(3); step(1, 1)
    a.vmwait("p4"); a.lgall(); a.dstamp("p", 4); a("s_barrier")
    sg(4); sg(5); step(1, 2); sg(6); sg(7); step(1, 3); sg(8); sg(9)
    a("s_mov_b64 exec, s[66:67]")
    a("global_load_dword v0, v162, s[70:71]", tag="pf")
    a("s_not_b64 exec, exec")
    a("global_load_dword v0, v162, s[68:69]", tag="pf")
    a("s_mov_b64 exec, -1")
    a.dstamp("p", 5); a("s_barrier")
    rd_acc(2)
    step(2, 0); step(2, 1); step(2, 2)
    a.vmwait(["sg", "h1"]); a.dstamp("p", 6); a("s_barrier")
    publish(a, S_LA, 2, 28, 29); w2_prefetch(a)
    step(2, 3)
    a.dstamp("p", 7); a("s_barrier"); a.stamp(3)
    rd_acc(3, (2, 3))
    for g in st_w(a, 0): run(a, g)
    step(3, 2); sp_issue(a, L6, D6); step(3, 3)
    a.vmwait("h2"); publish(a, S_LA, 3, 28, 29)
    sp_check(a, L6, D6, 2)
    st_h(a, 0)
    a(f"s_cmp_eq_u32 s{S_IDX}, 10")
    a("s_cbranch_scc1 L_mlpB4")
    a.dstamp("p", 8); a("s_barrier")
    a.stamp(4)
    rd_acc(4, (2, 3)); step(4, 2); step(4, 3)
    a("s_branch L_CB")
    a.label("L_mlpB4")
    a("s_barrier")
    a("s_branch L_CB")

    a.label("L_mlpA")
    a.vm = []; a.lg = []
    a(f"""s_setprio 1
    s_memrealtime s[44:45]
    s_or_b32 s{T1}, s2, s{S_V}
    s_cmp_lg_u32 s{T1}, 0
    s_waitcnt lgkmcnt(0)
    s_cbranch_scc1 L_notag
    s_lshl_b32 s44, s44, 3
    s_or_b32 s44, s44, 1
    v_mov_b32 v9, 0
    v_mov_b32 v8, s44
    global_store_dword v9, v8, s[{S_DBG}:{S_DBG+1}] sc1
    L_notag:
    s_lshl_b32 s{T3}, s{S_W}, 2
    v_and_b32 v13, 15, v1
    v_mov_b32 v180, {BIG}
    s_lshl_b32 s{T1}, s{S_IDX}, 4
    s_add_u32 s{S_PG+2}, s{T1}, s{T3}
    v_lshrrev_b32 v10, 4, v1
    v_add_u32 v10, s{S_PG+2}, v10              ; R = 16*cg + 4*w + l/16
    v_and_b32 v11, 31, v10
    v_mul_u32_u24 v11, {64*1280}, v11
    v_bfe_u32 v12, v10, 5, 2
    s_lshl_b32 s{T1}, s{S_RB}, 2
    v_add_u32 v12, s{T1}, v12
    v_mul_u32_u24 v12, 1280, v12
    v_lshl_add_u32 v12, v13, 4, v12
    v_add_u32 v204, v11, v12
    s_cmp_ge_u32 s{S_IDX}, 8
    s_cselect_b32 s31, {BIG}, 0
    s_mul_i32 s42, s{S_RB}, 40
    s_mul_i32 s{T1}, s{S_W}, 10
    s_add_u32 s42, s42, s{T1}
    s_mul_i32 s42, s42, 3456
    s_mul_i32 s{T1}, s{S_IDX}, 320
    s_add_u32 s42, s42, s{T1}
    v_lshrrev_b32 v21, 5, v1
    v_and_b32 v23, 31, v1
    v_mul_u32_u24 v12, 3456, v21
    v_lshl_add_u32 v205, v23, 4, v12""")
    a.vm = []
    if OPT["sx0"]:
        for it in range(5): a(f"buffer_load_dwordx4 v[{228+4*it}:{231+4*it}], v204, s[{SX}:{SX+3}], s31 offen offset:{256*it}", tag="sx")
    code_prefetch(a, 30)
    mlp_scalars()
    panel_scalars([0, 3, 4])
    common_mlp_regs(a)
    a(f"""s_cmp_eq_u32 s{S_W}, 0
    s_cselect_b32 s{T0}, s{S_LA}, s{S_LB}
    s_cmp_ge_u32 s{S_W}, 2
    s_cselect_b32 s{T0}, s{S_LC}, s{T0}
    v_lshl_add_u32 v203, v1, 1, s{T0}""")
    a(f"""v_bfe_u32 v25, v1, 1, 3
    v_xor_b32 v25, v25, v21
    s_lshl_b32 s{T0}, s{S_W}, 5
    v_add_u32 v26, s{T0}, v23
    v_lshlrev_b32 v26, 7, v26
    v_lshl_add_u32 v26, v25, 4, v26
    v_add_u32 v{V_XA}, {XSLOT}, v26
    v_xor_b32 v{V_XA+1}, 32, v{V_XA}
    v_xor_b32 v{V_XA+2}, 64, v{V_XA}
    v_xor_b32 v{V_XA+3}, 96, v{V_XA}
    v_bfe_u32 v25, v1, 2, 2
    v_lshl_add_u32 v27, v21, 3, v25
    v_bfe_u32 v28, v1, 4, 1
    v_lshlrev_b32 v28, 5, v28
    v_and_b32 v29, 3, v1
    v_lshl_add_u32 v28, v29, 3, v28
    v_lshl_add_u32 v{V_TRD}, v27, 6, v28
    v_add_u32 v{V_TRD}, {SGL}, v{V_TRD}
    v_lshl_add_u32 v27, v27, 7, v28
    v_lshrrev_b32 v25, 1, v25
    v_lshl_add_u32 v{V_TR}, v25, 6, v27
    v_xor_b32 v{V_TR+1}, 64, v{V_TR}
    v_lshlrev_b32 v9, 1, v23
    v_mov_b32 v8, 0x05040100
    v_mov_b32 v200, 0x3f80
    v_mov_b32 v201, 0x3f800000
    v_mov_b32 v202, 0x3f803f80
    s_lshl_b32 s{T1}, s{S_IDX}, 4
    s_add_u32 s{T2}, s{T1}, s{S_RB}
    s_mul_i32 s{T2}, s{T2}, 896
    s_add_u32 s{T2}, s{T2}, {WS_CS}
    s_cmp_eq_u32 s{S_W}, 0
    s_cselect_b32 s{S_PG+1}, s{T2}, {BIG}
    s_lshl_b32 s{T0}, s{S_W}, 2
    s_mul_i32 s{S_PG+2}, s{S_PG+2}, 896
    s_add_u32 s{S_PG+2}, s{S_PG+2}, {WS_CS}
    s_and_b32 s{T1}, s{T1}, 16
    s_mul_i32 s{T1}, s{T1}, 128
    v_mul_u32_u24 v12, 48, v1
    v_add_u32 v12, s{T1}, v12""")
    for i in range(3):
        a(f"""v_add_u32 v{25+i}, {16*i}, v12
        v_subrev_u32 v28, 2560, v{25+i}
        v_min_u32 v{25+i}, v{25+i}, v28
        v_add_u32 v{25+i}, s{T0}, v{25+i}""")
    a(f"""s_lshl_b32 s{T0}, s{S_RB}, 11
    s_add_u32 s{T0}, s{T0}, {WS_S}
    s_add_u32 s{T0}, s{T0}, s31
    v_lshl_add_u32 v10, v10, 4, s{T0}
    v_cmp_eq_u32 vcc, 0, v13
    v_cndmask_b32 v16, v180, v10, vcc
    v_mul_u32_u24 v21, 12, v1
    v_add_u32 v21, {CSW}, v21
    s_mul_i32 s{T0}, s{S_W}, 640
    v_lshl_add_u32 v22, v1, 5, s{T0}
    v_add_u32 v22, {CSW}, v22
    s_lshl_b32 s{T0}, s{S_W}, 7
    v_lshl_add_u32 v23, v1, 1, s{T0}
    v_mov_b32 v10, 0
    v_mov_b32 v11, 0""")
    for i in range(8): a(f"v_mov_b32 v{248+i}, 0")
    hf_addr(a, S_LA, 1)
    st_table(a)
    rec_addr(a, 15)
    a.dstamp("st", 3)
    if OPT["sx0"]: tag_issue(a, 13, 17)
    else:
        for it in range(5): a(f"buffer_load_dwordx4 v[{228+4*it}:{231+4*it}], v204, s[{SX}:{SX+3}], s31 offen offset:{256*it}", tag="sx")
    a("s_mov_b32 exec_lo, 0xfffff"); a("s_mov_b32 exec_hi, 0xfffff")
    for it in range(5):
        a(f"buffer_load_dwordx4 v[{208+4*it}:{211+4*it}], v205, s[{SW}:{SW+3}], s42 offen", tag="cx")
        if it < 4: a(f"s_add_u32 s42, s42, {2*3456}")
    a("s_mov_b64 exec, -1")
    a(f"buffer_load_ushort v20, v203, s[{SB}:{SB+3}], 0 offen", tag="b1")
    if not OPT["sx0"]: tag_issue(a, 13, 17)
    def job_cs():
        a.vmwait("cx")
        for r in range(20):
            a(f"v_dot2c_f32_bf16 v{248+2*(r%4)}, v{208+r}, v200"); a(f"v_dot2c_f32_bf16 v{249+2*(r%4)}, v{208+r}, v201")
        for i in range(8): a(f"v_mov_b32 v{192+i}, v{248+i}")
        for i in range(8): a(f"v_permlane32_swap_b32 v{192+i}, v{248+i}")
        for i in range(8): a(f"v_add_f32 v{248+i}, v{248+i}, v{192+i}")
        a("s_mov_b64 exec, 0xfffff")
        a("ds_write_b128 v22, v[248:251]", tag="cw"); a("ds_write_b128 v22, v[252:255] offset:16", tag="cw")
        a("s_mov_b64 exec, -1")
        a.lgwait("cw")
    def job_st():
        a.vmwait("sx")
        for r in range(20):
            a(f"v_dot2c_f32_bf16 v10, v{228+r}, v202"); a(f"v_dot2c_f32_bf16 v11, v{228+r}, v{228+r}")
        for sh in (8, 4, 2, 1):
            for r in (10, 11): a(f"v_add_f32_dpp v{r}, v{r}, v{r} row_ror:{sh} row_mask:0xf bank_mask:0xf")
        stats_math(a, 10, 11, 192, 193, 12, 11)
        tag_check(a, 13, 17)
        a(f"v_or_b32 v13, 7, v13")
        a(f"buffer_store_dwordx4 v[10:13], v16, s[{SS}:{SS+3}], 0 offen {ST}")
    CR = 240
    def sum4():
        for i in range(3):
            a(f"v_add_f32 v{CR+i}, v{CR+i}, v{CR+4+i}"); a(f"v_add_f32 v{CR+8+i}, v{CR+8+i}, v{CR+12+i}")
        for i in range(3): a(f"v_add_f32 v{CR+i}, v{CR+i}, v{CR+8+i}")
    def csi():
        for i in range(4): a(f"buffer_load_dwordx4 v[{CR+4*i}:{CR+3+4*i}], v{V_HO}, s[{SS}:{SS+3}], s{S_PG+2} offen offset:{896*i} sc1", tag="csi")
    def job_in():
        L = uid("Lcs")
        a.vmwait("csi"); vm = list(a.vm)
        a(f"""s_mov_b32 s{T2}, 0
        s_or_b32 s{T3}, s{S_TAG}, 7
        s_mov_b32 exec_hi, 0x3fffff
        {L}:
        v_xor_b32 v{CR+3}, s{T3}, v{CR+3}
        v_xor_b32 v{CR+7}, s{T3}, v{CR+7}
        v_xor_b32 v{CR+11}, s{T3}, v{CR+11}
        v_xor_b32 v{CR+15}, s{T3}, v{CR+15}
        v_or3_b32 v{CR+3}, v{CR+3}, v{CR+7}, v{CR+11}
        v_or_b32 v{CR+3}, v{CR+3}, v{CR+15}
        v_cmp_ne_u32 vcc, 0, v{CR+3}
        s_add_u32 s{T2}, s{T2}, 1
        s_cbranch_vccz {L}d
        s_cmp_ge_u32 s{T2}, {SPIN}
        s_cbranch_scc1 {L}d
        s_sleep {OPT['sleep']}""")
        csi()
        a(f"""s_waitcnt vmcnt(0)
        s_branch {L}
        {L}d:""")
        a.vm = vm
        sum4()
        for i in range(3):
            if i == 1: a("s_mov_b32 exec_hi, 0x1fffff")
            a(f"ds_write_b32 v{25+i}, v{CR+i} offset:{CSP}")
        a("s_mov_b64 exec, -1")
    def we_read(p, T, t):
        a(f"ds_read_b128 v[{T}:{T+3}], v{V_J16} offset:{CSP + 512*p}", tag=f"we{p}")
        a(f"ds_read_u16 v{t}, v9 offset:{B1L + 64*p}", tag=f"we{p}")
    def we_build(p, T, t):
        return [lambda: a.lgwait(f"we{p}")] + lines(f"""v_add_f32 v{T}, v{T}, v{T+1}
        v_add_f32 v{T+2}, v{T+2}, v{T+3}
        v_add_f32 v{T}, v{T}, v{T+2}
        v_cvt_pk_bf16_f32 v{T+1}, v{T}, v{T}
        v_and_b32 v{T+2}, 0xffff0000, v{T+1}
        v_sub_f32 v{T+2}, v{T}, v{T+2}
        v_cvt_pk_bf16_f32 v{T}, v{T}, v{T+2}
        v_perm_b32 v{T+1}, v{t}, v{T+1}, v8
        v_mov_b32 v{T+2}, v{t}
        v_mov_b32 v{T+3}, 0""")
    def X(c):
        slot = c % 5
        if slot == 4:
            for s in range(4): a(f"v_add_u32 v{V_XA+s}, 16384, v{V_XA+s}")
        for s in range(4):
            k = 4*c + s
            a(f"ds_read_b128 v[{XF+4*k}:{XF+4*k+3}], v{V_XA+s} offset:{min(slot,3)*16384}", tag=f"X{c}")
        if slot == 4 and c < 9:
            for s in range(4): a(f"v_subrev_u32 v{V_XA+s}, 16384, v{V_XA+s}")
    def R(k):
        if k == 32:
            a(f"v_add_u32 v{V_TR}, 65536, v{V_TR}"); a(f"v_add_u32 v{V_TR+1}, 65536, v{V_TR+1}")
        off = (k % 32) * 2048
        b = RING + 8*(k % 4)
        for hf in range(2):
            a(f"ds_read_b64_tr_b16 v[{b+4*hf}:{b+4*hf+1}], v{V_TR+hf} offset:{off}", tag=f"R{k}")
            a(f"ds_read_b64_tr_b16 v[{b+4*hf+2}:{b+4*hf+3}], v{V_TR+hf} offset:{off+512}", tag=f"R{k}")
    def MM(acc, A, B, src): a(f"v_mfma_f32_32x32x16_bf16 v[{acc}:{acc+15}], v[{A}:{A+3}], v[{B}:{B+3}], " + ("0" if src == 0 else f"v[{acc}:{acc+15}]"))
    XEA = 2
    if OPT["sx0"]: job_st()
    a.dstamp("st", 4)
    a("s_barrier")
    a.stamp(1)
    X(0); R(0); R(1); R(2)
    a.lgwait("X0")
    for c in range(1, 11):
        if c <= 9: a.dstamp("bar", c); a.dstamp("bar2", c)
        if c == 10: a.dstamp("p", 1)
        a("s_barrier")
        if c <= 9: X(c)
        if c == 3 - OPT["sx0"]:
            for i in range(4):
                for j in range(3): a(f"ds_read_b32 v{CR+4*i+j}, v21 offset:{i*640 + 4*j}", tag="co")
        if c == 10:
            we_read(1, 28, 26); we_read(0, 20, 25)
        for s in range(4):
            k = 4*(c - 1) + s
            a.lgwait(f"R{k}")
            b = RING + 8*s
            for hf in range(2): MM(ACC[hf], b + 4*hf, XF + 4*k, k)
            if k + 3 < 40: R(k + 3)
            if c == 1 and s == 3 and not OPT["sx0"]: job_st()
            if c == 2 - OPT["sx0"] and s == 3: job_cs()
            if c == 3 - OPT["sx0"] and s == 1:
                a.lgwait("co"); sum4()
                a(f"v_mov_b32 v{CR+3}, v13"); a("s_mov_b32 exec_hi, 0x3fffff")
                a(f"buffer_store_dwordx4 v[{CR}:{CR+3}], v{V_HO}, s[{SS}:{SS+3}], s{S_PG+1} offen {ST}")
                a("s_mov_b64 exec, -1")
            if c == 6 and s == 0:
                a("s_mov_b32 exec_hi, 0x3fffff"); csi(); a("s_mov_b64 exec, -1")
                rec_issue(a, 15, 10)
            if c == 7 and s == 0: a(f"ds_write_b16 v23, v20 offset:{B1L}")
            if c == 8 and s == 3: job_in()
            if c == 9 and s == 1:
                rec_check(a, 15, 10); row_consts(a, 10, 11, XEA, 12)
                a(f"""s_lshl_b32 s{T0}, s{S_W}, 9
                v_add_u32 v12, s{T0}, v{V_J16}
                v_mov_b32 v13, s{S_TAG}
                ds_write_b128 v12, v[14:17] offset:{RCL}
                ds_write_b32 v12, v13 offset:{RCL}""")
            if c == 10 and s == 0: run(a, we_build(1, 28, 26))
            if c == 10 and s == 1:
                run(a, we_build(0, 20, 25))
                for hf in range(2): a(f"v_add_u32 v{V_TR+hf}, {XSLOT - 65536}, v{V_TR+hf}")
            if c == 10 and s == 2:
                MM(ACC[1], 28, XEA, 1); MM(ACC[0], 20, XEA, 1)
                we_read(2, 28, 26)
    run(a, we_build(2, 28, 26))
    handoff_write(a, ACC[1], 1)
    a.lgall()
    a.dstamp("p", 2); a("s_barrier"); a.dstamp("p", 3)
    a.stamp(2)
    SL = [32, 36, 40, 44, 20]
    def R2(n):
        p, k = divmod(n, 40)
        b = SL[n % 5]
        if p < 2:
            vb = V_TR + p
            if k == 32: a(f"v_add_u32 v{vb}, 65536, v{vb}")
            off = (k % 32) * 2048; d = 512
        else:
            vb = V_TRD; off = k * 1024; d = 256
        a(f"ds_read_b64_tr_b16 v[{b}:{b+1}], v{vb} offset:{off}", tag=f"Q{n}")
        a(f"ds_read_b64_tr_b16 v[{b+2}:{b+3}], v{vb} offset:{off+d}", tag=f"Q{n}")
    for n in range(4): R2(n)
    PA = [ACC[1], ACC[2], ACC[0]]
    own0 = sum([epi_step(a, 0, q, ACC[0], 10) for q in range(4)], [])
    own3 = sum([epi_step(a, 3, q, ACC[2], 10) for q in range(2)], [])
    n0 = n3 = 0
    wb = []
    for n in range(120):
        p, k = divmod(n, 40)
        if n in (46, 50, 54, 58, 62, 66, 70, 74, 78): a.dstamp("n1", 1 + (n - 46)//4)
        if n in (86, 90, 94, 98, 102, 106, 110, 114, 119): a.dstamp("n2", 1 + (n - 86)//4)
        if n in (0, 4, 8, 12, 16, 24, 30, 36, 42): a.dstamp("n0", 1 + [0, 4, 8, 12, 16, 24, 30, 36, 42].index(n))
        if n == 28: a.dstamp("p", 4); a("s_barrier")
        if k == 0: MM(PA[p], 28, XEA, 0)
        a.lgwait(f"Q{n}")
        MM(PA[p], SL[n % 5], XF + 4*k, 1)
        if n + 4 < 120: R2(n + 4)
        if n in (2, 56):
            we_read(3 + n//40, 28, 26); wb = we_build(3 + n//40, 28, 26)
        if n % 40 >= 20 and wb: run(a, wb[:1 + callable(wb[0])]); wb = wb[1 + callable(wb[0]):]
        if n < 44:
            m = (n + 1) * len(own0) // 44
            run(a, own0[n0:m]); n0 = m
        if 44 <= n < 48: handoff_write(a, ACC[1], 0, (n - 44,))
        if n == 51: a.lgwait("pub"); a.dstamp("p", 5); a("s_barrier")
        if n == 75: a.vmwait("h0"); a.dstamp("p", 6); a("s_barrier")
        if n == 79:
            a(f"s_cmp_eq_u32 s{S_NP}, 4")
            a("s_cbranch_scc1 L_np4")
        if n in (83, 84): handoff_write(a, ACC[2], 1, (n - 81,))
        if n == 88:
            a.lgwait("pub"); a.dstamp("p", 7); a("s_barrier"); a.stamp(3)
        if 85 <= n < 117:
            m = (n - 84) * len(own3) // 32
            run(a, own3[n3:m]); n3 = m
    handoff_write(a, ACC[0], 0, (2, 3))
    a.lgall(); a.dstamp("p", 8); a("s_barrier"); a.stamp(4)
    for q in (0, 1): run(a, epi_step(a, 4, q, ACC[0], 10))
    a(f"s_mov_b32 s{S_LB}, s{S_LA}")
    a("s_waitcnt vmcnt(1)")
    a("s_branch L_CA")
    a.label("L_np4")
    a("s_nop 15")
    handoff_write(a, ACC[2], 1, (2, 3))
    a.lgall(); a.dstamp("p", 7); a("s_barrier")
    run(a, own3)
    a(f"s_mov_b32 s{S_LB}, s{S_LA}")
    a("s_waitcnt vmcnt(0)")
    a("s_barrier")
    a("s_branch L_CA")

def run(a, l):
    for x in l: x() if callable(x) else a(x)
def merge(a, mf, va):
    n = len(mf); m = len(va); j = 0
    for i in range(n):
        a(mf[i])
        k = (i + 1) * m // n
        while j < k:
            x = va[j]; j += 1
            x() if callable(x) else a(x)

WPAR = 10240; LW = XSLOT; LT = 0; EXS = 122880; EXF = 131072
def dft(a):
    a.label("L_dft")
    a.vm = []; a.lg = []
    a(f"""s_cmp_eq_u32 s{S_SET}, 0
    s_cselect_b64 vcc, -1, 0
    v_cndmask_b32 v{VXO}, v{VXO+2}, v{VXO}, vcc
    v_cndmask_b32 v{VXO+1}, v{VXO+3}, v{VXO+1}, vcc
    s_lshl_b32 s{T0}, s{S_SET}, 11
    s_add_u32 s{S_LB}, s{S_M4}, s{T0}""")
    def xd(c, e):
        a(f"s_add_u32 m0, s{S_LB}, {XSLOT + (c % 5)*16384 + e*1024}")
        a(f"buffer_load_dwordx4 v{VXO+e}, s[{SX}:{SX+3}], s{S_SX+c} offen {OPT['ntx']} lds", tag=f"x{c}")
    n0 = 3
    a.dstamp("st", 1)
    a("s_waitcnt lgkmcnt(0)")
    a.dstamp("st", 2)
    xd(0, 0); xd(0, 1)
    a.dstamp("st", 3)
    sx_table(a)
    for c in range(1, n0): xd(c, 0); xd(c, 1)
    code_prefetch(a, 30)
    a("s_load_dwordx4 s[68:71], s[0:1], 8")
    VF, VFS, VD, VM, VMS, VW = 6, 7, 8, 9, 10, 11
    a(f"""s_lshl_b32 s{T0}, s{S_IDX}, 1
    s_add_u32 s{S_LA}, s{T0}, s{S_SET}      ; hg
    s_lshl_b32 s{T0}, s{S_LA}, 4
    v_and_b32 v12, 15, v1
    v_add_u32 v12, s{T0}, v12
    v_cmp_eq_u32 vcc, 0, v12
    v_mov_b32 v13, 160
    v_cndmask_b32 v13, v12, v13, vcc
    s_mov_b64 s[74:75], vcc
    v_cvt_f32_u32 v{VF}, v12
    v_cvt_f32_u32 v{VFS}, v13
    v_mul_f32 v{VF}, {fl(1/640)}, v{VF}
    v_mul_f32 v{VFS}, {fl(-1/640)}, v{VFS}
    s_and_b32 s{T0}, s{S_V}, 1
    s_bfe_u32 s{T1}, s{S_V}, 0x10001
    s_cmp_eq_u32 s{T1}, 0
    s_cselect_b32 s{T2}, s{S_SX}, s{S_SX+5}
    s_lshr_b32 s{T2}, s{T2}, 1
    s_add_u32 s{T2}, s{T2}, s{T0}
    v_lshrrev_b32 v{VD}, 4, v1
    v_lshlrev_b32 v{VD}, 3, v{VD}
    v_add_u32 v{VD}, s{T2}, v{VD}
    v_cvt_f32_u32 v{VD}, v{VD}
    v_add_f32 v{VD}, 0.5, v{VD}
    s_mul_i32 s{T2}, s{S_SET}, 40968
    s_mul_i32 s{T1}, s{T1}, 20480
    s_add_u32 s{T2}, s{T2}, s{T1}
    s_lshl_b32 s{T0}, s{T0}, 11
    s_add_u32 s{T2}, s{T2}, s{T0}
    v_lshl_add_u32 v{VW}, v1, 4, s{T2}
    v_xor_b32 v14, 8, v{VW}
    v_mul_f32 v{VM}, {fl(32.0)}, v{VF}
    v_mul_f32 v{VMS}, {fl(32.0)}, v{VFS}
    v_cos_f32 v{VM}, v{VM}
    v_cos_f32 v{VMS}, v{VMS}
    v_mul_f32 v12, v{VD}, v{VF}
    v_mul_f32 v13, v{VD}, v{VFS}
    v_add_f32 v{VM}, v{VM}, v{VM}
    v_add_f32 v{VMS}, v{VMS}, v{VMS}""")
    CC, SN = 64, 80
    for u in range(2):
        for e in range(4):
            dl = 32*u + 2*e
            if dl:
                a(f"v_fmamk_f32 v{CC+4*u+e}, v{VF}, {fl(dl)}, v12"); a(f"v_fmamk_f32 v{SN+4*u+e}, v{VFS}, {fl(dl)}, v13")
                a(f"v_cos_f32 v{CC+4*u+e}, v{CC+4*u+e}"); a(f"v_sin_f32 v{SN+4*u+e}, v{SN+4*u+e}")
            else:
                a(f"v_cos_f32 v{CC}, v12"); a(f"v_sin_f32 v{SN}, v13")
    for m in range(5):
        o = 96 + 8*(m % 2)
        for r in range(4):
            a(f"v_cvt_pk_bf16_f32 v{o+r}, v{CC+2*r}, v{CC+2*r+1}")
            a(f"v_cvt_pk_bf16_f32 v{o+4+r}, v{SN+2*r}, v{SN+2*r+1}")
        a(f"ds_write2st64_b64 v{VW}, v[{o}:{o+1}], v[{o+4}:{o+5}] offset0:{m*8} offset1:{m*8+2}")
        a(f"ds_write2st64_b64 v14, v[{o+2}:{o+3}], v[{o+6}:{o+7}] offset0:{m*8} offset1:{m*8+2}")
        if m < 4:
            for u in range(2):
                for e in range(4):
                    a(f"v_fma_f32 v{CC+4*u+e}, v{VM}, v{CC+4*(1-u)+e}, -v{CC+4*u+e}")
                    a(f"v_fma_f32 v{SN+4*u+e}, v{VMS}, v{SN+4*(1-u)+e}, -v{SN+4*u+e}")
    XA = 6; VB = 10; SE, SO = 11, 12; ON = 16
    a(f"""v_and_b32 v18, 15, v1
    v_lshrrev_b32 v19, 4, v1
    v_bfe_u32 v20, v1, 1, 3
    v_xor_b32 v20, v20, v19
    s_lshl_b32 s{T0}, s{S_SET}, 2
    v_xor_b32 v20, s{T0}, v20
    s_lshl_b32 s{T0}, s{S_W}, 5
    v_add_u32 v18, s{T0}, v18
    v_lshlrev_b32 v18, 7, v18
    v_lshl_add_u32 v{XA}, v20, 4, v18
    v_add_u32 v{XA}, {XSLOT}, v{XA}
    v_xor_b32 v{XA+1}, 64, v{XA}
    v_add_u32 v{XA+2}, 2048, v{XA}
    v_add_u32 v{XA+3}, 2048, v{XA+1}
    s_mul_i32 s{T0}, s{S_SET}, 40960
    v_lshl_add_u32 v{VB}, v1, 4, s{T0}
    v_mov_b32 v{SE}, 0x05040100
    v_mov_b32 v{SO}, 0x07060302
    s_lshl_b32 s{T0}, s{S_RB}, 2
    s_add_u32 s{S_LC}, s{T0}, s{S_W}        ; n2""")
    rec_addr(a, 16)
    FO = 40
    f1 = f"""v_lshrrev_b32 v20, 4, v1
    v_lshlrev_b32 v20, 8, v20
    v_add_u32 v20, s{S_LC}, v20
    v_cvt_f32_u32 v20, v20
    v_and_b32 v21, 1, v1
    s_lshl_b32 s{T0}, s{S_SET}, 4
    v_and_b32 v22, 15, v1
    v_add_u32 v22, s{T0}, v22
    v_lshrrev_b32 v23, 1, v22
    v_cvt_f32_u32 v23, v23
    v_cmp_eq_u32 vcc, 1, v21
    v_sub_f32 v21, 0, v23
    v_cndmask_b32 v23, v21, v23, vcc
    v_mov_b32 v21, 0.25
    v_cndmask_b32 v21, 0, v21, vcc
    v_cmp_eq_u32 vcc, 1, v22
    v_mov_b32 v22, {fl(-16.0)}
    v_cndmask_b32 v23, v23, v22, vcc
    v_mov_b32 v22, 0
    v_cndmask_b32 v21, v21, v22, vcc
    v_mul_f32 v23, {fl(1/2048)}, v23
    v_fma_f32 v21, v23, v20, v21""".split("\n")
    for jj in range(8):
        dn = 64*(16*(jj//4) + jj % 4)
        f1.append(f"v_mov_b32 v{24+jj}, v21" if dn == 0 else f"v_fmamk_f32 v{24+jj}, v23, {fl(dn)}, v21")
    for jj in range(8): f1 += [f"v_sin_f32 v{32+jj}, v{24+jj}", f"v_cos_f32 v{24+jj}, v{24+jj}"]
    for r in range(4): f1 += [f"v_cvt_pk_bf16_f32 v{FO+r}, v{24+2*r}, v{25+2*r}", f"v_cvt_pk_bf16_f32 v{FO+4+r}, v{32+2*r}, v{33+2*r}"]
    f1parts = {0: f1[:30], 1: f1[30:]}
    HP, F0, K1W, SGN, HG = 61, 62, 63, 64, 65
    wsc = {2: lines(f"""s_cmp_lt_u32 s{S_W}, 2
        s_cselect_b32 s{SW}, s68, s70
        s_cselect_b32 s{SW+1}, s69, s71
        s_mov_b32 s{SW+2}, {2048*642}
        s_and_b32 s{HG}, s{S_IDX}, 1
        s_lshl_b32 s{F0}, s{HG}, 6
        s_lshl_b32 s{HG}, s{HG}, 2
        s_add_u32 s{HG}, s{HG}, s{S_W}
        s_lshr_b32 s{SGN}, s{S_IDX}, 1
        s_sub_u32 s{T2}, 257, s{F0}
        s_cmp_eq_u32 s{SGN}, 0
        s_cselect_b32 s{F0}, s{F0}, s{T2}"""),
      3: lines(f"""s_and_b32 s{T0}, s{S_W}, 1
        s_add_u32 s{T1}, s{T0}, 8
        s_lshr_b32 s{T2}, s{S_W}, 1
        s_cmp_eq_u32 s{S_IDX}, 4
        s_cselect_b32 s{HG}, s{T1}, s{HG}
        s_cselect_b32 s{SGN}, s{T2}, s{SGN}
        s_cselect_b32 s{F0}, 128, s{F0}
        s_lshl_b32 s{HP}, s{HG}, 1
        s_add_u32 s{HP}, s{HP}, s{SGN}
        s_sub_u32 s{T2}, 0, s{S_RB}
        s_cmp_eq_u32 s{S_RB}, 0
        s_cselect_b32 s66, 16, s{T2}
        s_cmp_eq_u32 s{T0}, 0
        s_cselect_b32 s{K1W}, s{S_RB}, s66"""),
      4: lines(f"""s_mul_i32 s{T0}, s{K1W}, 642
        s_lshl_b32 s{T1}, s{F0}, 1
        s_add_u32 s{T1}, s{T1}, s{T0}
        s_and_b32 s{T1}, s{T1}, -16
        s_add_u32 s{T0}, s{T0}, 320
        s_and_b32 s{T0}, s{T0}, -16
        s_sub_u32 s{T0}, s{T0}, s{T1}
        s_sub_u32 s68, s{T0}, 144
        s_mul_i32 s{T0}, s{S_SET}, {32*20544}
        s_add_u32 s69, s{T1}, s{T0}
        s_lshl_b32 s{T0}, s{S_SET}, 7
        s_add_u32 s96, s{T1}, s{T0}"""),
      5: lines(f"""s_cmp_lt_i32 s{K1W}, 0
        s_cselect_b32 s97, {2048*642}, 0
        s_cmp_eq_u32 s{S_SET}, 0
        s_cselect_b32 s70, s97, 0
        s_mul_i32 s71, s{S_W}, {WPAR}
        s_mul_i32 s{T0}, s{S_SET}, 5120
        s_add_u32 s71, s71, s{T0}
        s_mov_b32 s67, 20544
        v_mov_b32 v56, s96
        v_mad_u32_u24 v56, v1, s67, v56
        v_add_u32 v57, s97, v56
        v_cmp_eq_u32 vcc, 0, v1
        v_cndmask_b32 v56, v56, v57, vcc""")}
    a.lgall()
    a.dstamp("st", 4)
    XRB = (64, 80); TBB = (96, 112); EOB = (128, 144); AC = 160; GS = 192
    nxt = n0
    for c in range(12):
        rd = []
        if c < 10:
            if c >= 1: a.dstamp("bar", c)
            a.vmwait(f"x{c}")
            if c >= 1: a.dstamp("bar2", c)
            if c < 4: a.dstamp("st", 5 + c)
            a("s_barrier")
            if c == 0: a.stamp(1)
            slot = c % 5
            XR = XRB[c % 2]
            for s in range(4):
                g = []
                if slot == 4: g.append(f"v_add_u32 v{XA+s}, 16384, v{XA+s}")
                g.append(f"ds_read_b128 v[{XR+4*s}:{XR+4*s+3}], v{XA+s} offset:{min(slot,3)*16384}")
                if slot == 4: g.append(f"v_subrev_u32 v{XA+s}, 16384, v{XA+s}")
                rd.append(g)
        if 1 <= c <= 10:
            TB = TBB[(c - 1) % 2]
            for ty in range(4):
                rd.append([f"ds_read_b128 v[{TB+4*ty}:{TB+4*ty+3}], v{VB} offset:{(c-1)*4096 + ty*1024}"])
        todo = []
        while nxt <= min(c + 4, 9) and len(todo) < 2: todo.append(nxt); nxt += 1
        for cc in todo:
            for e in range(2): rd.append([lambda cc=cc, e=e: xd(cc, e)])
        if c == 6: rd.append([lambda: tag_issue(a, 4, 5)])
        if c == OPT["recc"]:
            rd.append([lambda: rec_issue(a, 16, 20)])

        mf = []; va = []
        if c >= 2:
            EO, TB = EOB[c % 2], TBB[c % 2]
            for t in range(2):
                for ty in range(4):
                    acc = AC + 8*ty + 4*t; xs = EO + 8*t + 4*(ty // 2)
                    mf.append(f"v_mfma_f32_16x16x32_bf16 v[{acc}:{acc+3}], v[{xs}:{xs+3}], v[{TB+4*ty}:{TB+4*ty+3}], " + ("0" if c == 2 else f"v[{acc}:{acc+3}]"))
        if 1 <= c <= 10:
            XR, EO = XRB[(c - 1) % 2], EOB[(c - 1) % 2]
            for t in range(2):
                for ks in range(2):
                    for r in range(2):
                        lo = XR + 8*t + 4*ks + 2*r
                        va.append(f"v_perm_b32 v{EO+8*t+2*ks+r}, v{lo+1}, v{lo}, v{SE}")
                        va.append(f"v_perm_b32 v{EO+8*t+4+2*ks+r}, v{lo+1}, v{lo}, v{SO}")
        va += f1parts.get(c, [])
        n = max(len(mf), 1)
        for i in range(n):
            if mf: a(mf[i])
            for grp in (rd[i:i+1] if i < n - 1 else rd[i:]):
                for x in grp: x() if callable(x) else a(x)
            for x in va[i*len(va)//n:(i+1)*len(va)//n]: a(x)
        if c == 10:
            a(f"""s_lshl_b32 s{T0}, s{S_V}, 11
            s_add_u32 s{T0}, s{T0}, {EXF}
            v_lshl_add_u32 v18, v1, 4, s{T0}
            ds_write_b128 v18, v[{FO}:{FO+3}]
            ds_write_b128 v18, v[{FO+4}:{FO+7}] offset:1024
            v_xor_b32 v18, 8192, v18
            s_lshl_b32 s{T0}, s{S_V}, 7
            s_add_u32 s{T0}, s{T0}, {EXS}
            v_and_b32 v17, 31, v1
            v_lshl_add_u32 v17, v17, 2, s{T0}
            v_lshrrev_b32 v19, 4, v1
            v_lshl_add_u32 v19, v19, 4, s{T0}""")
        if c < 10: a.lgall()
        if c == 10:
            tag_check(a, 4, 5); a.lgall()
            a("s_barrier")
            a(f"ds_read_b128 v[48:51], v18", tag="f")
            a(f"ds_read_b128 v[52:55], v18 offset:1024", tag="f")
            rec_check(a, 16, 20)
            a(f"ds_write_b32 v17, v22")
            a(f"ds_read_b128 v[24:27], v19", tag="r")
            a(f"ds_read_b128 v[28:31], v19 offset:64", tag="r")
    a.stamp(2)
    a("s_setprio 1")
    a.lgwait("f")
    FRr, FIr, FNr = (40, 48), (44, 52), (56, 60)
    for u in range(2):
        for r in range(4): a(f"v_xor_b32 v{FNr[u]+r}, 0x80008000, v{FIr[u]+r}")
    a(f"""s_lshl_b32 s{T0}, s{S_V}, 12
    v_lshrrev_b32 v14, 4, v1
    v_lshlrev_b32 v14, 8, v14
    v_and_b32 v15, 15, v1
    v_lshl_add_u32 v14, v15, 2, v14
    s_lshl_b32 s{T1}, s{S_SET}, 10
    s_add_u32 s{T1}, s{T1}, s{T0}
    s_bfe_u32 s{T2}, s{S_LC}, 0x10001
    s_lshl_b32 s{T2}, s{T2}, 6
    s_add_u32 s{T1}, s{T1}, s{T2}
    v_add_u32 v10, s{T1}, v14
    v_xor_b32 v11, 1024, v10
    v_xor_b32 v12, 64, v10
    v_xor_b32 v13, 1088, v10
    v_lshl_add_u32 v15, v1, 4, s{T0}
    v_lshrrev_b32 v16, 3, v1
    v_mul_u32_u24 v16, {TS}, v16
    v_and_b32 v17, 7, v1
    v_lshl_add_u32 v16, v17, 4, v16
    s_lshl_b32 s{T0}, s{S_LA}, 14
    s_lshl_b32 s{T1}, s{S_LC}, 7
    s_add_u32 s{T0}, s{T0}, s{T1}
    s_add_u32 s{T0}, s{T0}, {WS_T}""")
    a.lgwait("r")
    for i in range(8):
        er, ei, orr, oi, rho = AC + i, AC + 8 + i, AC + 16 + i, AC + 24 + i, 24 + i
        a(f"""v_mul_f32 v20, v{orr}, v{rho}
        v_mul_f32 v21, v{oi}, v{rho}
        v_fma_f32 v{oi}, -v{er}, v{rho}, v20
        v_fma_f32 v{er}, v{er}, v{rho}, v20
        v_fma_f32 v{orr}, -v{ei}, v{rho}, v21
        v_fma_f32 v{ei}, v{ei}, v{rho}, v21""")
    a(f"s_cmp_lg_u32 s{S_LA}, 0")
    a("s_cbranch_scc1 L_dnsp")
    for i in range(8):
        a(f"v_cndmask_b32 v{AC+i}, v{AC+i}, v{AC+16+i}, s[74:75]")
        a(f"v_cndmask_b32 v{AC+16+i}, v{AC+16+i}, 0, s[74:75]")
    a.label("L_dnsp")
    XB = 64; OUT = 80
    def o(sgn, cc, u): return OUT + 16*sgn + 8*cc + 4*u
    for sgn in range(2):
        for ty in (2*sgn, 2*sgn + 1):
            for r in range(4):
                a(f"v_cvt_pk_bf16_f32 v{XB+4*ty+r}, v{AC+8*ty+2*r}, v{AC+8*ty+2*r+1}")
        xr, xi = XB + 8*sgn, XB + 8*sgn + 4
        for u in range(2):
            a(f"v_mfma_f32_16x16x32_bf16 v[{o(sgn,0,u)}:{o(sgn,0,u)+3}], v[{FRr[u]}:{FRr[u]+3}], v[{xr}:{xr+3}], 0")
            a(f"v_mfma_f32_16x16x32_bf16 v[{o(sgn,1,u)}:{o(sgn,1,u)+3}], v[{FIr[u]}:{FIr[u]+3}], v[{xr}:{xr+3}], 0")
        for u in range(2):
            a(f"v_mfma_f32_16x16x32_bf16 v[{o(sgn,0,u)}:{o(sgn,0,u)+3}], v[{FNr[u]}:{FNr[u]+3}], v[{xi}:{xi+3}], v[{o(sgn,0,u)}:{o(sgn,0,u)+3}]")
            a(f"v_mfma_f32_16x16x32_bf16 v[{o(sgn,1,u)}:{o(sgn,1,u)+3}], v[{FRr[u]}:{FRr[u]+3}], v[{xi}:{xi+3}], v[{o(sgn,1,u)}:{o(sgn,1,u)+3}]")
    for sgn in range(2):
        for cc in range(2):
            for u in range(2):
                r = o(sgn, cc, u)
                a(f"v_cvt_pk_bf16_f32 v{r}, v{r}, v{r+1}")
                a(f"v_cvt_pk_bf16_f32 v{r+1}, v{r+2}, v{r+3}")
                a(f"ds_write_b32 v{10+2*cc+u}, v{r} offset:{sgn*2048}")
                a(f"ds_write_b32 v{10+2*cc+u}, v{r+1} offset:{sgn*2048+128}")
        for it in (2*sgn, 2*sgn + 1): a(f"ds_read_b128 v[{128+4*it}:{131+4*it}], v15 offset:{it*1024}", tag=f"r{it}")
    for it in range(4):
        a.lgwait(f"r{it}")
        a(f"s_add_u32 s{T1}, s{T0}, {(it//2)*8192 + (it%2)*8*TS}")
        a(f"buffer_store_dwordx4 v[{128+4*it}:{131+4*it}], v16, s[{SS}:{SS+3}], s{T1} offen {ST}", tag="T")
    a("s_setprio 0")
    a.stamp(3); a.dstamp("fft", 1)
    a(f"""s_lshl_b32 s{S_LA}, s{S_IDX}, 4
    s_add_u32 s{S_LA}, s{S_LA}, s{S_RB}
    s_lshl_b32 s{S_LA}, s{S_LA}, 7
    s_add_u32 s{S_LA}, s{S_LA}, {F_TF}""")
    s_w, s_jp, s_g = S_W, S_RB, S_IDX
    PHI, MK = 36, 38
    C, SN = 16, 32
    a(f"""v_and_b32 v6, 31, v1
    s_lshl_b32 s{T0}, s{S_SET}, 5
    v_add_u32 v7, s{T0}, v6
    v_cvt_f32_u32 v7, v7
    v_mul_f32 v7, {fl(1/64)}, v7
    v_lshrrev_b32 v8, 5, v1
    v_lshl_add_u32 v8, v8, 2, s{T0}
    v_cvt_f32_u32 v8, v8
    v_mul_f32 v8, v8, v7
    v_and_b32 v6, 1, v6
    v_mov_b32 v9, 0x80008000
    v_cmp_eq_u32 vcc, 1, v6
    v_cndmask_b32 v9, 0, v9, vcc""")
    for u in range(2):
        for jj in range(8):
            b = 16*u + 8*(jj//4) + jj % 4
            if b: a(f"v_fmamk_f32 v{128+jj}, v7, {fl(b)}, v8")
            else: a(f"v_mov_b32 v{128+jj}, v8")
        for jj in range(8):
            a(f"v_sin_f32 v{136+jj}, v{128+jj}"); a(f"v_cos_f32 v{128+jj}, v{128+jj}")
        for r in range(4):
            a(f"v_cvt_pk_bf16_f32 v{C+4*u+r}, v{128+2*r}, v{129+2*r}")
            a(f"v_cvt_pk_bf16_f32 v{SN+4*u+r}, v{136+2*r}, v{137+2*r}")
    for base in (C, SN):
        for r in range(8): a(f"v_xor_b32 v{base+8+r}, v9, v{base+r}")
    a(f"""s_lshl_b32 s{T1}, s{s_w}, 13
    s_lshl_b32 s{T2}, s{S_SET}, 12
    v_lshrrev_b32 v6, 5, v1
    v_bfe_u32 v7, v1, 2, 2
    v_lshl_add_u32 v7, v6, 2, v7
    v_lshlrev_b32 v7, 7, v7
    v_bfe_u32 v8, v1, 3, 2
    v_lshrrev_b32 v9, 1, v8
    v_and_b32 v8, 1, v8
    v_lshl_add_u32 v7, v8, 6, v7
    v_lshl_add_u32 v7, v9, 5, v7
    v_and_b32 v8, 3, v1
    v_lshl_add_u32 v7, v8, 3, v7
    v_add_u32 v7, s{T1}, v7
    v_add_u32 v2, s{T2}, v7
    v_xor_b32 v3, 4096, v2
    v_xor_b32 v4, 64, v2
    v_xor_b32 v5, 4160, v2
    s_lshr_b32 s{PHI}, s{s_jp}, 1
    s_and_b32 s{PHI}, s{PHI}, 2
    s_lshl_b32 s{T2}, s{S_SET}, 12
    s_add_u32 s{T1}, s{T1}, s{T2}
    v_and_b32 v7, 7, v1
    v_xor_b32 v7, v7, v6
    v_xor_b32 v7, s{PHI}, v7
    v_and_b32 v8, 31, v1
    v_lshlrev_b32 v8, 7, v8
    v_lshl_add_u32 v50, v7, 4, v8
    v_add_u32 v50, s{T1}, v50
    v_xor_b32 v51, 32, v50
    v_xor_b32 v52, 64, v50
    v_xor_b32 v53, 96, v50
    v_lshrrev_b32 v7, 3, v1
    v_and_b32 v8, 7, v1
    v_xor_b32 v54, v7, v8
    v_lshlrev_b32 v54, 4, v54
    v_lshl_add_u32 v54, v7, 7, v54
    v_add_u32 v54, s{T1}, v54
    v_mul_u32_u24 v55, {YS}, v7
    v_lshl_add_u32 v55, v8, 4, v55
    v_lshlrev_b32 v56, 4, v1
    s_lshl_b32 s{T0}, s{S_V}, 12
    s_add_u32 s{T0}, s{T0}, 32768
    v_add_u32 v57, s{T0}, v56
    v_xor_b32 v58, 16384, v57
    v_lshlrev_b32 v59, 7, v1
    s_and_b32 s{T0}, s{s_g}, 1
    s_lshl_b32 s{T0}, s{T0}, 12
    s_cmp_eq_u32 s{s_g}, 4
    s_cselect_b32 s{T0}, 8192, s{T0}
    s_cselect_b32 s34, 0xffff, -1
    s_mov_b32 s35, 0
    s_add_u32 s33, s{T0}, {F_TF}
    s_mov_b32 s32, s{T1}""")
    for c in (2, 3, 4): run(a, wsc[c])
    run(a, wsc[5][:8])
    st_table(a); st_setup(a)
    a.dstamp("fft", 2)
    a.vmwait("T")
    a("s_barrier")
    a(f"s_cmp_lg_u32 s{S_V}, 4")
    a("s_cbranch_scc1 L_dnp")
    vm = list(a.vm); publish(a, S_LA, 5, 61, 62); a.vm = vm
    a.label("L_dnp")
    a.stamp(4)
    WV = 144
    wv = []
    for i in range(5):
        wv += f"""v_add_u32 v152, {64*i}, v1
        v_mul_u32_u24 v153, 6554, v152
        v_lshrrev_b32 v153, 16, v153
        v_mul_u32_u24 v154, 10, v153
        v_sub_u32 v154, v152, v154
        v_cmp_eq_u32 vcc, 9, v154
        v_lshl_add_u32 v154, v154, 4, s69
        v_mad_u32_u24 v{WV+i}, v153, s67, v154
        v_mov_b32 v152, s68
        v_cndmask_b32 v152, 0, v152, vcc
        v_add_u32 v{WV+i}, v{WV+i}, v152""".split("\n")
    wv += f"""v_add_u32 v152, s70, v{WV}
    v_cmp_gt_u32 vcc, 10, v1
    v_cndmask_b32 v{WV}, v{WV}, v152, vcc""".split("\n")
    run(a, wv)
    def wd(i):
        a(f"s_add_u32 m0, s71, {LW + i*1024}")
        a(f"buffer_load_dwordx4 v{WV+i}, s[{SW}:{SW+3}], 0 offen lds", tag="w")

    for i in range(5): wd(i)
    a(f"""v_and_b32 v60, 1, v1
    v_bfe_u32 v61, v1, 1, 4
    s_lshl_b32 s{T0}, s{HG}, 4
    v_add_u32 v61, s{T0}, v61
    v_cmp_eq_u32 vcc, 0, v61
    s_cmp_eq_u32 s{SGN}, 0
    s_cselect_b64 s[{MK}:{MK+1}], vcc, 0
    v_sub_u32 v6, 320, v61
    s_cselect_b64 vcc, -1, 0
    v_cndmask_b32 v61, v6, v61, vcc
    v_subrev_u32 v61, s{F0}, v61
    v_lshlrev_b32 v61, 1, v61
    v_mov_b32 v6, s{s_jp}
    v_mov_b32 v7, s66
    v_cmp_eq_u32 vcc, 1, v60
    v_cndmask_b32 v6, v6, v7, vcc
    v_add_u32 v7, s{F0}, v6
    v_lshlrev_b32 v7, 1, v7
    v_and_b32 v7, 15, v7
    v_add_u32 v61, v61, v7
    v_lshlrev_b32 v6, 1, v6
    v_and_b32 v6, 15, v6
    v_add_u32 v6, 144, v6
    v_cndmask_b32 v61, v61, v6, s[{MK}:{MK+1}]
    v_mul_u32_u24 v60, {WPAR}, v60
    v_lshrrev_b32 v6, 5, v1
    v_mul_u32_u24 v6, 640, v6
    v_add3_u32 v15, v60, v61, v6
    s_mul_i32 s{T0}, s{S_SET}, 5120
    s_add_u32 s{T0}, s{T0}, {LW}
    v_add_u32 v15, s{T0}, v15""")
    a.dstamp("fft", 3)
    a(f"s_cmp_lg_u32 s{S_V}, 0")
    a("s_cbranch_scc1 L_fnp")
    vm = list(a.vm); poll(a, 59, 33, 5, 34, 60); a.vm = vm
    a.label("L_fnp")
    a(f"""s_mul_i32 s{T0}, s{s_jp}, {TS}
    s_lshl_b32 s{T2}, s{HP}, 13
    s_add_u32 s{T0}, s{T0}, s{T2}
    s_lshl_b32 s{T2}, s{S_SET}, 12
    s_add_u32 s{T0}, s{T0}, s{T2}
    s_add_u32 s{T0}, s{T0}, {WS_T}
    s_mov_b32 m0, s32""")
    a("s_barrier")
    a.stamp(5); a.dstamp("fft", 4)
    for i in range(4):
        a(f"buffer_load_dwordx4 v56, s[{SS}:{SS+3}], s{T0} offen offset:{i*1024} sc1 lds", tag="t")
    a(f"s_cmp_lg_u32 s{S_SET}, 0")
    a("s_cbranch_scc1 L_fnc")
    a("s_setprio 1")
    a.lgall()
    vm = list(a.vm)
    for g in st_w(a, 0): run(a, g)
    a.vmwait("t")
    a("s_branch L_fnd")
    a.label("L_fnc")
    a.vm = vm
    a.vmall()
    a.label("L_fnd")
    run(a, sp_base(S_HFA))
    a("s_barrier")
    a.dstamp("fft", 5)
    BR, BI, NB, WR, WI, DR, DI = 64, 80, 128, 144, 160, 176, 192
    for u in range(4):
        for cc, b in ((0, BR), (1, BI)):
            a(f"ds_read_b64_tr_b16 v[{b+4*u}:{b+4*u+1}], v{2 + 2*cc + u//2} offset:{(u%2)*2048}", tag=f"b{u}")
            a(f"ds_read_b64_tr_b16 v[{b+4*u+2}:{b+4*u+3}], v{2 + 2*cc + u//2} offset:{(u%2)*2048 + 1024}", tag=f"b{u}")
    def wread(r):
        q, tt = divmod(r, 4)
        off = (8*q + tt) * 160
        a(f"ds_read_u16_d16_hi v{WR+r}, v15 offset:{off}", tag=f"w{r}")
        a(f"ds_read_u16_d16_hi v{WI+r}, v15 offset:{off + 2*WPAR}", tag=f"w{r}")
    def M(d, A, B, first): return f"v_mfma_f32_32x32x16_bf16 v[{d}:{d+15}], v[{A}:{A+3}], v[{B}:{B+3}], " + ("0" if first else f"v[{d}:{d+15}]")
    for u in range(4):
        a.lgwait(f"b{u}")
        a(M(DR, C+4*u, BR+4*u, u == 0))
        for r in range(4): a(f"v_xor_b32 v{NB+4*u+r}, 0x80008000, v{BR+4*u+r}")
        a(M(DI, C+4*u, BI+4*u, u == 0)); wread(4*u); wread(4*u + 1)
        a(M(DR, SN+4*u, BI+4*u, False)); wread(4*u + 2); wread(4*u + 3)
        a(M(DI, SN+4*u, NB+4*u, False))
    a.dstamp("fft", 6)
    a.lgall()
    sp_issue(a, L6, D6)
    ZR, ZI, ZN = 64, 80, 208
    for g4 in range(4):
        rs = range(4*g4, 4*g4 + 4)
        a.lgwait(f"w{4*g4+3}")
        for i, r in enumerate(rs): a(f"v_mul_f32 v{6+i}, v{DR+r}, v{WR+r}")
        for i, r in enumerate(rs): a(f"v_mul_f32 v{DR+r}, v{DR+r}, v{WI+r}")
        for i, r in enumerate(rs): a(f"v_fma_f32 v{6+i}, -v{DI+r}, v{WI+r}, v{6+i}")
        for i, r in enumerate(rs): a(f"v_fmac_f32 v{DR+r}, v{DI+r}, v{WR+r}")
        for i, r in enumerate(rs): a(f"v_subrev_f32_dpp v{DI+r}, v{6+i}, v{DR+r} quad_perm:[1,0,3,2] row_mask:0xf bank_mask:0xf")
        for i, r in enumerate(rs): a(f"v_add_f32_dpp v{6+i}, v{DR+r}, v{6+i} quad_perm:[1,0,3,2] row_mask:0xf bank_mask:0xf")
        for k in range(2): a(f"v_cvt_pk_bf16_f32 v{ZI+2*g4+k}, v{DI+4*g4+2*k}, v{DI+4*g4+2*k+1}")
        for k in range(2): a(f"v_cvt_pk_bf16_f32 v{ZR+2*g4+k}, v{6+2*k}, v{7+2*k}")
        if g4 % 2:
            u = g4 // 2
            a(f"ds_write_b128 v57, v[{ZR+4*u}:{ZR+4*u+3}] offset:{u*1024}")
            a(f"ds_write_b128 v57, v[{ZI+4*u}:{ZI+4*u+3}] offset:{2048 + u*1024}")
    YR, YI = 144, 160
    def step3(u):
        a(M(YR, ZR+4*u, C+4*u, u == 0))
        for r in range(4): a(f"v_xor_b32 v{ZN+4*u+r}, 0x80008000, v{ZI+4*u+r}")
        a(M(YI, ZI+4*u, C+4*u, u == 0)); a(M(YI, ZR+4*u, SN+4*u, False)); a(M(YR, ZN+4*u, SN+4*u, False))
    step3(0)
    a.lgall()
    a("s_barrier")
    a.dstamp("fft", 7)
    for u in range(2):
        a(f"ds_read_b128 v[{ZR+8+4*u}:{ZR+11+4*u}], v58 offset:{u*1024}", tag=f"z{u}")
        a(f"ds_read_b128 v[{ZI+8+4*u}:{ZI+11+4*u}], v58 offset:{2048 + u*1024}", tag=f"z{u}")
    a(f"s_cmp_eq_u32 s{S_SET}, 0")
    a("s_cbranch_scc1 L_fw1")
    lg = list(a.lg)
    sp_check(a, L6, D6, 2)
    st_h(a, 0)
    a.lg = lg
    a.label("L_fw1")
    step3(1)
    for u in (2, 3):
        a.lgwait(f"z{u-2}"); step3(u)
    a(f"s_cmp_lg_u32 s{s_jp}, 0")
    a(f"s_cbranch_scc1 L_fns")
    a(f"""v_and_b32 v6, 31, v1
    s_lshl_b32 s{T0}, s{S_SET}, 5
    v_add_u32 v6, s{T0}, v6
    v_cvt_f32_u32 v6, v6
    v_mul_f32 v6, {fl(1/128)}, v6
    v_cos_f32 v7, v6
    v_sin_f32 v8, v6
    s_nop 7
    v_mul_f32 v7, 0.5, v7
    v_mul_f32 v8, 0.5, v8""")
    for pr in range(8):
        ar, br, ai, bi = YR+2*pr, YR+2*pr+1, YI+2*pr, YI+2*pr+1
        a(f"""v_sub_f32 v6, v{br}, v{ai}
        v_add_f32 v9, v{bi}, v{ar}
        v_sub_f32 v{ar}, v{ar}, v{bi}
        v_add_f32 v{ai}, v{ai}, v{br}
        v_mul_f32 v{br}, v7, v6
        v_mul_f32 v{bi}, v8, v6
        v_mul_f32 v{ar}, 0.5, v{ar}
        v_mul_f32 v{ai}, 0.5, v{ai}
        v_fma_f32 v{br}, -v8, v9, v{br}
        v_fmac_f32 v{bi}, v7, v9""")
    a.label("L_fns")
    a(f"""s_lshl_b32 s{T0}, s{HP}, 11
    s_lshl_b32 s{T1}, s{s_jp}, 7
    s_add_u32 s{T0}, s{T0}, s{T1}
    s_mul_i32 s{T1}, s{S_SET}, {32*YS}
    s_add_u32 s{T0}, s{T0}, s{T1}
    s_add_u32 s{T0}, s{T0}, {WS_Y}
    s_nop 7""")
    O = 176; k = 0
    for cc, src in ((1, YI), (0, YR)):
        for par in range(2):
            o = O + 4*k; k += 1
            for q in range(4): a(f"v_cvt_pk_bf16_f32 v{o+q}, v{src+4*q+par}, v{src+4*q+2+par}")
            a(f"ds_write_b128 v{50+2*par+cc}, v[{o}:{o+3}]")
    for it in range(4): a(f"ds_read_b128 v[{16+4*it}:{19+4*it}], v54 offset:{it*1024}", tag=f"r{it}")
    a.dstamp("fft", 8)
    a(f"s_mov_b32 s60, s{T0}")
    a.lgall()
    def ystores():
        for it in range(4):
            a(f"buffer_store_dwordx4 v[{16+4*it}:{19+4*it}], v55, s[{SS}:{SS+3}], s60 offen {ST}", tag="y")
            if it < 3: a(f"s_add_u32 s60, s60, {8*YS}")
    a(f"""s_mov_b32 s{S_LA}, {BIG}
    s_mov_b32 s{S_PG+3}, {BIG}
    s_mov_b32 s{S_PG+4}, {BIG}
    s_cmp_eq_u32 s{S_SET}, 0
    s_cbranch_scc1 L_fa""")
    ystores(); st_h(a, 1)
    a("s_waitcnt vmcnt(10)")
    a("s_branch L_CB2")
    a.label("L_fa")
    ystores()
    a(f"""s_mul_i32 s{S_LB}, s{s_jp}, 5
    s_add_u32 s{S_LB}, s{S_LB}, s{s_g}
    s_lshl_b32 s{S_LB}, s{S_LB}, 7
    s_add_u32 s{S_LB}, s{S_LB}, {F_YF}
    s_cmp_eq_u32 s{S_V}, 0
    s_cselect_b32 s{S_LB}, s{S_LB}, {BIG}
    s_branch L_CA2""")

YA, YB, LX, LH, LS = 40960, 122880, 81920, 92160, 102400
S_C8, S_KH, S_CB = 60, 61, 64
M_G0, M_G2 = 32, 34
FG, FL = 210, 211
GE, GO = 16, 56

def g_head(t, S_CB):
    return lines(f"""v_add_u32 v{t+4}, s{S_CB}, v{FL}
    v_cvt_f32_u32 v{t+4}, v{t+4}
    v_add_f32 v{t+4}, 0.5, v{t+4}
    v_mul_f32 v{t+4}, {fl(1/640)}, v{t+4}
    v_and_b32 v{t}, 1, v{FG}
    v_lshlrev_b32 v{t}, 1, v{t}
    v_sub_u32 v{t+1}, 320, v{t}
    v_cmp_lt_u32 s[40:41], 31, v1
    v_cndmask_b32 v{t}, v{t}, v{t+1}, s[40:41]
    v_cvt_f32_u32 v{t}, v{t}
    v_mul_f32 v{t}, v{t}, v{t+4}
    v_fract_f32 v{t}, v{t}
    v_sub_f32 v{t+1}, 0, v{t+4}
    v_cndmask_b32 v{t+1}, v{t+4}, v{t+1}, s[40:41]
    v_mul_f32 v{t+2}, {fl(16.0)}, v{t+4}
    v_cos_f32 v{t+2}, v{t+2}
    v_mul_f32 v{t+4}, {fl(160.0)}, v{t+4}
    v_sin_f32 v{t+5}, -v{t+4}
    v_cos_f32 v{t+4}, v{t+4}
    v_add_f32 v{t+2}, v{t+2}, v{t+2}
    v_sub_f32 v{t+3}, 0, v{t+2}""")
def g_seq(t, n, CV, SV, dst_e, dst_o, offs, special):
    o = []
    for m in range(2):
        for j in range(n):
            k = 16*m + offs[j]
            o.append(f"v_fmamk_f32 v{CV+n*m+j}, v{t+1}, {fl(k)}, v{t}" if k else f"v_mov_b32 v{CV+n*m+j}, v{t}")
        for j in range(n): o += [f"v_sin_f32 v{SV+n*m+j}, -v{CV+n*m+j}", f"v_cos_f32 v{CV+n*m+j}, v{CV+n*m+j}"]
    o += lines(f"""v_cndmask_b32 v{t+4}, v{CV}, v{t+4}, s[{special[0]}:{special[0]+1}]
    v_cndmask_b32 v{t+5}, v{SV}, v{t+5}, s[{special[0]}:{special[0]+1}]
    v_mul_f32 v{t}, 0.5, v{t+4}
    v_mul_f32 v{t+1}, 0.5, v{t+5}
    v_cndmask_b32 v{t+4}, v{t+4}, v{t}, s[{special[1]}:{special[1]+1}]
    v_cndmask_b32 v{t+5}, v{t+5}, v{t+1}, s[{special[1]}:{special[1]+1}]""")
    for m in range(10):
        u = n*(m % 2); sg = "-" if (m // 2) % 2 else ""
        for r in range(n // 2):
            c0 = t + 4 if (m == 0 and r == 0) else CV + u + 2*r
            s0 = t + 5 if (m == 0 and r == 0) else SV + u + 2*r
            o.append(f"v_cvt_pk_bf16_f32 v{dst_e(m, r)}, {sg}v{c0}, {sg}v{CV+u+2*r+1}")
            o.append(f"v_cvt_pk_bf16_f32 v{dst_o(m, r)}, {sg}v{s0}, {sg}v{SV+u+2*r+1}")
        if m + 2 < 10:
            M = t + 3 if m % 2 == 0 else t + 2
            for j in range(n):
                o += [f"v_fmac_f32 v{CV+u+j}, v{M}, v{CV+n-u+j}", f"v_fmac_f32 v{SV+u+j}, v{M}, v{SV+n-u+j}"]
    return o
def run(a, l):
    for x in l: x() if callable(x) else a(x)

def phase_c(a):
    a.skip = a.skip + [k for k in os.environ.get("CSKIP", "").split(",") if k]
    a.label("L_CA")
    a.vm = []; a.lg = []
    a.stamp(6); a.dstamp("fft", 9); a.dstamp("p", 9)
    publish(a, S_LA, 4, 6, 7)
    st_setup(a)
    a.label("L_CA2")
    a.vm = []
    a("s_load_dwordx2 s[8:9], s[0:1], 56")
    for g in st_w(a, 1): run(a, g)
    HB_, WB_, AC2 = 16, 32, 80
    a(f"""v_lshrrev_b32 v{FG}, 4, v1
    v_and_b32 v{FL}, 15, v1
    v_lshrrev_b32 v2, 5, v1
    v_lshlrev_b32 v2, 4, v2
    v_bfe_u32 v3, v1, 4, 1
    v_lshl_add_u32 v2, v3, 2, v2
    v_bfe_u32 v3, v1, 2, 2
    v_add_u32 v2, v2, v3
    v_mul_u32_u24 v2, 160, v2
    v_and_b32 v3, 3, v1
    v_lshl_add_u32 v10, v3, 3, v2
    v_add_u32 v9, {SLOT[1]}, v10
    v_add_u32 v8, {SLOT[0]}, v10
    s_mul_i32 s{T0}, s{S_W}, 6144
    s_add_u32 s{T0}, s{T0}, 15360
    v_lshlrev_b32 v2, 9, v{FG}
    v_lshl_add_u32 v2, v{FL}, 4, v2
    v_add_u32 v13, s{T0}, v2
    v_add_u32 v12, {SLOT[1]}, v13
    v_add_u32 v11, {SLOT[0]}, v13
    s_lshr_b32 s{S_C8}, s2, 5
    s_and_b32 s{S_KH}, s2, 1""")
    def reads(n):
        s, i = divmod(n, 3); o = []
        for rt in range(2):
            b = HB_ + 8*(n % 2) + 4*rt
            o.append((f"ds_read_b128 v[{b}:{b+3}], v{11 + s % 3} offset:{i*2048 + rt*256}", f"H{n}"))
        for ct in range(5):
            b = WB_ + 20*(n % 2) + 4*ct
            o.append((f"ds_read_b64_tr_b16 v[{b}:{b+1}], v{8 + s % 3} offset:{i*5120 + ct*32}", f"W{n}_{ct}"))
            o.append((f"ds_read_b64_tr_b16 v[{b+2}:{b+3}], v{8 + s % 3} offset:{i*5120 + ct*32 + 8*160}", f"W{n}_{ct}"))
        return o
    B2 = 196; PV = 212
    fill = lines(f"""s_mul_i32 s36, s{S_C8}, 160
    v_lshl_add_u32 v2, v{FG}, 3, s36
    s_mov_b32 s{SB}, s8
    s_mov_b32 s{SB+1}, s9
    s_mov_b32 s{SB+2}, 1280""")
    for ct in range(5):
        fill.append(lambda ct=ct: a(f"buffer_load_dwordx2 v[{B2+2*ct}:{B2+2*ct+1}], v2, s[{SB}:{SB+3}], 0 offen offset:{32*ct}", tag="b2"))
    fill += lines(f"""s_lshr_b32 s38, s{S_W}, 1
    s_xor_b32 s38, s38, s{S_KH}
    s_and_b32 s39, s{S_W}, 1
    s_xor_b32 s40, s2, 1
    s_lshl_b32 s40, s40, 1
    s_add_u32 s40, s40, s39
    s_mul_i32 s41, s40, 6144
    s_add_u32 s41, s41, {WS_P}
    s_lshl_b32 s40, s40, 7
    s_add_u32 s40, s40, {F_PF}
    s_lshl_b32 s34, s2, 1
    s_add_u32 s34, s34, s39
    s_mul_i32 s35, s34, 6144
    s_mul_i32 s50, s38, 3072
    s_add_u32 s35, s35, s50
    s_add_u32 s35, s35, {WS_P}
    s_lshl_b32 s34, s34, 7
    s_add_u32 s34, s34, {F_PF}
    v_lshlrev_b32 v5, 4, v1
    s_mul_i32 s50, s39, 5120
    s_add_u32 s50, s50, {LH}
    v_add_u32 v14, s50, v5
    s_lshl_b32 s50, s39, 5
    s_lshl_b32 s51, s38, 4
    s_add_u32 s50, s50, s51
    v_add_u32 v15, s50, v{FL}
    v_mul_u32_u24 v208, 320, v15
    v_lshl_add_u32 v208, v{FG}, 4, v208
    v_add_u32 v208, {LS}, v208                  ; s image
    v_mul_u32_u24 v209, 160, v15
    v_lshl_add_u32 v209, v{FG}, 3, v209
    v_add_u32 v209, {LX}, v209""")
    a.lgall()
    a("s_waitcnt vmcnt(8)")
    a.dstamp("c", 1)
    a("s_barrier")
    a.stamp(7)
    for t, g in reads(0): a(t, tag=g)
    nf = 0
    for n in range(27):
        s, i = divmod(n, 3)
        nx = reads(n + 1) if n + 1 < 27 else []
        if n == 0: wl = st_w(a, 2)
        if i == 2: wl = st_w(a, s + 3) if s + 3 < 9 else []
        if i == 2 and n + 1 < 27:
            a.lgall()
            a.vmwait(f"st{s+1}")
            if s == 1: a.vmwait("b2")
            if s < 7: a.dstamp("c", s + 2)
            a("s_barrier")
            if s == 1: publish(a, S_LB, 5, 6, 7, t=39)
        for ct in range(5):
            if ct % 2 == 0: a.lgwait([f"W{n}_{ct}", f"W{n}_{min(ct+1, 4)}"])
            for rt in range(2):
                d = AC2 + (ct*2 + rt)*4; w = WB_ + 20*(n % 2) + 4*ct; h = HB_ + 8*(n % 2) + 4*rt
                a(f"v_mfma_f32_16x16x32_bf16 v[{d}:{d+3}], v[{w}:{w+3}], v[{h}:{h+3}], " + ("0" if n == 0 else f"v[{d}:{d+3}]"))
                k = 2*ct + rt
                for t, g in nx[(k*12)//10:((k+1)*12)//10]: a(t, tag=g)
                if wl and k in ((1, 4, 7) if n < 2 else ((2, 8), (4,), (5,))[i]): run(a, wl.pop(0))
        m = (n + 1) * len(fill) // 5 if n > 0 else 0
        run(a, fill[nf:m]); nf = max(nf, m)
    a.stamp(8); a.dstamp("c", 9)
    OV = 80
    a("s_cmp_eq_u32 s38, 0")
    a("s_cbranch_scc1 L_keep")
    for rt in range(2):
        for ct in range(5):
            d = AC2 + (ct*2 + rt)*4; o = 16 + 12*rt + 2*ct
            a(f"v_cvt_pk_bf16_f32 v{o}, v{d}, v{d+1}"); a(f"v_cvt_pk_bf16_f32 v{o+1}, v{d+2}, v{d+3}")
        for i in range(3):
            a(f"buffer_store_dwordx4 v[{16+12*rt+4*i}:{19+12*rt+4*i}], v5, s[{SS}:{SS+3}], s41 offen offset:{i*1024} {ST}", tag="P")
        if rt == 0: a("s_add_u32 s41, s41, 3072")
    a("s_barrier")
    for ct in range(5): a(f"ds_read_b128 v[{OV+8*ct}:{OV+8*ct+3}], v14 offset:{ct*1024}")
    a.vmall()
    publish(a, 40, 5, 6, 7)
    a("s_branch L_kept")
    a.label("L_keep")
    a("s_nop 7")
    for ct in range(5): a(f"ds_write_b128 v14, v[{AC2+8*ct+4}:{AC2+8*ct+7}] offset:{ct*1024}")
    a.lgall()
    a("s_barrier")
    a.label("L_kept")
    a.vm = []
    run(a, sp_base(34))
    sp_issue(a, [0], [10])
    a("v_mov_b32 v6, 0x3f80"); a("v_mov_b32 v7, 0x3f800000")
    a.lgall()
    for ct in range(5):
        for k in range(2):
            a(f"v_dot2c_f32_bf16 v{OV+8*ct+2*k}, v{B2+2*ct+k}, v6"); a(f"v_dot2c_f32_bf16 v{OV+8*ct+2*k+1}, v{B2+2*ct+k}, v7")
    a.dstamp("fin", 1)
    sp_check(a, [0], [10], 5)
    a.dstamp("fin", 2)
    for i in range(3): a(f"buffer_load_dwordx4 v[{PV+4*i}:{PV+4*i+3}], v5, s[{SS}:{SS+3}], s35 offen offset:{i*1024} sc1", tag=f"p{i}")
    a("s_barrier")
    SV_, XV, XFF, E = 16, 40, 56, 128
    for ct in range(5):
        a(f"ds_read_b128 v[{SV_+4*ct}:{SV_+4*ct+3}], v208 offset:{ct*64}", tag="s")
        a(f"ds_read_b64 v[{XV+2*ct}:{XV+2*ct+1}], v209 offset:{ct*32}", tag="x")
    a.lgwait("x")
    for i in range(10):
        a(f"v_lshlrev_b32 v{XFF+2*i}, 16, v{XV+i}"); a(f"v_and_b32 v{XFF+2*i+1}, 0xffff0000, v{XV+i}")
    def ov(i): return OV + 8*(i // 4) + i % 4
    for i in range(10):
        a.vmwait(f"p{i//4}")
        if i == 8: a.dstamp("fin", 3)
        a(f"v_dot2c_f32_bf16 v{ov(2*i)}, v{PV+i}, v6"); a(f"v_dot2c_f32_bf16 v{ov(2*i+1)}, v{PV+i}, v7")
    for i in range(20): a(f"v_mul_f32 v{E+i}, {fl(-LOG2E)}, v{ov(i)}")
    for i in range(20): a(f"v_exp_f32 v{E+i}, v{E+i}")
    for i in range(20): a(f"v_mul_f32 v{SV_+i}, v{SV_+i}, v{ov(i)}")
    for i in range(20): a(f"v_add_f32 v{E+i}, 1.0, v{E+i}")
    for i in range(20): a(f"v_rcp_f32 v{E+i}, v{E+i}")
    for ct in range(5):
        for i in range(4*ct, 4*ct + 4): a(f"v_fmac_f32 v{XFF+i}, v{SV_+i}, v{E+i}")
        a(f"v_cvt_pk_bf16_f32 v{XV+2*ct}, v{XFF+4*ct}, v{XFF+4*ct+1}")
        a(f"v_cvt_pk_bf16_f32 v{XV+2*ct+1}, v{XFF+4*ct+2}, v{XFF+4*ct+3}")
        a(f"ds_write_b64 v209, v[{XV+2*ct}:{XV+2*ct+1}] offset:{ct*32}")
    a.lgall()
    a.dstamp("fin", 4)
    a("s_barrier")
    a.stamp(9)
    a.dump(10, SS, S_V, 0, tmp=32)
    a("s_endpgm")

    a.label("L_CB")
    a.lg = []
    a.vm = []
    st_h(a, 1)
    a("s_waitcnt vmcnt(6)")
    a.label("L_CB2")
    a("s_load_dwordx2 s[4:5], s[0:1], 64")
    a.stamp(6); a.dstamp("c", 1); a.dstamp("fft", 9); a.dstamp("p", 9)
    a("s_barrier")
    a.stamp(7)
    publish(a, S_LA, 5, 28, 29)
    def bar(j):
        a.vmwait(f"st{j}")
        if j < 8: a.dstamp("c", j + 1)
        a("s_barrier")
    FX = 212; HF = 216; G2 = 96
    t = 244
    setup = lines(f"""s_lshr_b32 s{S_C8}, s2, 5
    s_and_b32 s{S_KH}, s2, 1
    v_lshrrev_b32 v{FG}, 4, v1
    v_and_b32 v{FL}, 15, v1
    s_lshl_b32 s62, s{S_RB}, 2
    s_lshl_b32 s63, s{S_KH}, 1
    s_add_u32 s62, s62, s63
    s_mul_i32 s36, s{S_C8}, 160
    s_mul_i32 s38, s62, 1280
    s_add_u32 s36, s36, s38
    s_lshl_b32 s38, s{S_W}, 6
    s_mov_b32 s39, {64*1280}
    s_mul_i32 s{S_CB}, s{S_C8}, 80
    s_add_u32 s37, s{S_CB}, 64
    s_lshl_b32 s63, s{S_W}, 4
    s_add_u32 s{S_CB}, s{S_CB}, s63
    v_cmp_eq_u32 s[{M_G0}:{M_G0+1}], 0, v{FG}
    v_cmp_eq_u32 s[{M_G2}:{M_G2+1}], 2, v{FG}""")
    for e in range(3):
        setup += lines(f"""v_add_u32 v{t}, s38, v1
        v_add_u32 v{t}, {256*e}, v{t}
        v_mul_u32_u24 v{t+1}, 6554, v{t}
        v_lshrrev_b32 v{t+1}, 16, v{t+1}
        v_mul_u32_u24 v{t+2}, 10, v{t+1}
        v_sub_u32 v{t+2}, v{t}, v{t+2}
        v_and_b32 v{t+3}, 31, v{t+1}
        v_mul_lo_u32 v{t+3}, v{t+3}, s39
        v_lshl_add_u32 v{t+3}, v{t+2}, 4, v{t+3}
        v_lshrrev_b32 v{t+2}, 5, v{t+1}
        v_mul_u32_u24 v{t+2}, 1280, v{t+2}
        v_add3_u32 v{FX+e}, v{t+3}, v{t+2}, s36""")
    setup += lines(f"""v_mov_b32 v{t}, {BIG}
    s_cmp_lt_u32 s{S_W}, 2
    s_cselect_b64 vcc, -1, 0
    v_cndmask_b32 v{FX+2}, v{t}, v{FX+2}, vcc""")
    c = t + 4
    offs = [4*(j//2) + j % 2 for j in range(8)]
    gen = setup + g_head(t, S_CB) + g_seq(t, 8, 176, 192, lambda m, r: GE + 4*m + r, lambda m, r: GO + 4*m + r, offs, (M_G0, M_G2))
    gen += g_head(t, 37) + g_seq(t, 8, 176, 192, lambda m, r: G2 + 4*m + r, lambda m, r: G2 + 40 + 4*m + r, offs, (M_G0, M_G2))
    gen += lines(f"""v_lshlrev_b32 v{t}, 6, v{FL}
    v_add_u32 v{t}, s62, v{t}
    v_cvt_f32_u32 v{t}, v{t}
    v_mul_f32 v{t}, {fl(1/2048)}, v{t}
    v_lshlrev_b32 v{t+1}, 1, v{FG}
    v_cvt_f32_u32 v{t+1}, v{t+1}
    v_cvt_f32_u32 v{t+2}, v{FL}
    v_mul_f32 v{t+2}, 0.5, v{t+2}""")
    for y in range(2):
        for tt in range(2):
            if tt: gen.append(f"v_add_f32 v{t}, 0.5, v{t}")
            elif y: gen.append(f"v_add_f32 v{t}, {fl(1/2048 - 0.5)}, v{t}")
            gen.append(f"v_mul_f32 v{t+3}, v{t+1}, v{t}")
            for jj in range(8):
                jo = 8*(jj//4) + (jj % 4)//2
                if jj % 2: gen.append(f"v_add_f32 v{c+jj}, {fl(0.25)}, v{c+jj-1}")
                elif jo: gen.append(f"v_fmamk_f32 v{c+jj}, v{t}, {fl(jo)}, v{t+3}")
                else: gen.append(f"v_mov_b32 v{c+jj}, v{t+3}")
            gen.append(f"v_cndmask_b32 v{c+1}, v{c+1}, v{t+2}, s[{M_G0}:{M_G0+1}]")
            for jj in range(8): gen.append(f"v_cos_f32 v{c+jj}, v{c+jj}")
            for r in range(4): gen.append(f"v_cvt_pk_bf16_f32 v{HF+8*y+4*tt+r}, v{c+2*r}, v{c+2*r+1}")
    gen += lines(f"""v_mul_u32_u24 v6, 320, v{FL}
    v_lshl_add_u32 v6, v{FG}, 4, v6
    s_lshl_b32 s38, s{S_W}, 6
    s_add_u32 s38, s38, {LS}
    v_add_u32 v12, s38, v6
    s_and_b32 s38, s{S_W}, 1
    s_mul_i32 s39, s38, 10240
    s_add_u32 s39, s39, {LS + 256}
    v_add_u32 v13, s39, v6
    v_bfe_u32 v2, v1, 2, 2
    v_and_b32 v2, 2, v2
    v_and_b32 v3, 1, v{FG}
    v_xor_b32 v2, v2, v3
    v_lshlrev_b32 v2, 4, v2
    v_lshl_add_u32 v2, v{FL}, 6, v2
    v_lshrrev_b32 v3, 1, v{FG}
    v_lshl_add_u32 v2, v3, 11, v2
    v_add_u32 v4, {YB}, v2
    v_add_u32 v2, {YA}, v2
    v_xor_b32 v3, 32, v2
    v_xor_b32 v5, 32, v4""")
    ns = len(setup)
    cut = [0, ns + 20] + [ns + 20 + (len(gen) - ns - 20)*k//7 for k in range(1, 8)]
    def part(k): run(a, gen[cut[k]:cut[k+1]])
    def mix(st, k):
        hl = st_hl(a, st); g = gen[cut[k]:cut[k+1]]
        for j in range(6):
            run(a, hl[j]); run(a, g[j*len(g)//6:(j+1)*len(g)//6])
    def yload(y):
        a(f"""s_add_u32 s{T0}, s62, {y}
        s_mul_i32 s{T0}, s{T0}, {YS}
        s_mul_i32 s{T1}, s{S_W}, 10240
        s_add_u32 s{T0}, s{T0}, s{T1}
        s_add_u32 s{T0}, s{T0}, {WS_Y}""")
        for i in range(10):
            if i % 4 == 0:
                a(f"s_add_u32 m0, s{T1}, {(YA, YB)[y] + i*1024}")
                if i: a(f"s_add_u32 s{T0}, s{T0}, 4096")
            a(f"buffer_load_dwordx4 v9, s[{SS}:{SS+3}], s{T0} offen offset:{(i%4)*1024} sc1 lds", tag=f"y{y}")
    sp_issue(a, L6, D6)
    st_h(a, 2)
    part(0)
    bar(1)
    sp_check(a, L6, D6, 3); mix(3, 1)
    bar(2)
    sp_issue(a, L6, D6); run(a, sp_base(S_HFB)); sp_issue(a, L6, D6A)
    mix(4, 2)
    bar(3)
    sp_check(a, L6, D6A, 4); run(a, sp_base(S_HFA)); sp_check(a, L6, D6, 4); mix(5, 3)
    bar(4)
    sp_issue(a, L6, D6); run(a, sp_base(S_HFB)); sp_issue(a, L6, D6A)
    mix(6, 4)
    bar(5)
    a(f"""s_mov_b64 s[{S_MSK}:{S_MSK+1}], 0xfffff
    s_mul_i32 s63, s{S_W}, 2560
    s_add_u32 s63, s63, {F_YF}
    v_lshlrev_b32 v7, 7, v1
    v_lshlrev_b32 v9, 4, v1""")
    poll_issue(a, 7, 63, S_MSK, 10)
    sp_check(a, L6, D6A, 5); run(a, sp_base(S_HFA)); sp_check(a, L6, D6, 5); mix(7, 5)
    poll_check(a, 7, 63, 5, S_MSK, 10, sleep=OPT['ysleep'])
    bar(6)
    mix(8, 6); yload(0)
    bar(7)
    yload(1); part(7)
    a.vmwait("y0")
    bar(8)
    for e in range(3):
        if e == 2: a(f"s_cmp_ge_u32 s{S_W}, 2"); a("s_cbranch_scc1 L_nx3")
        a(f"s_add_u32 m0, s7, {LX + e*4096}")
        a(f"buffer_load_dwordx4 v{FX+e}, s[{SX}:{SX+3}], 0 offen lds", tag="x")
    a.label("L_nx3")
    YF_ = 176; AC = 232
    def yread(y, m):
        for i in range(4):
            cc, rt = divmod(i, 2)
            b = YF_ + 16*(m % 2) + 4*i
            a(f"ds_read_b128 v[{b}:{b+3}], v{2+2*y+cc} offset:{m*4096 + rt*1024}", tag=f"y{y}_{m}_{i}")
    def idft(y, own, fifth):
        a.lg = []
        yread(y, 0); yread(y, 1)
        for m in range(10):
            for i in range(4):
                a.lgwait(f"y{y}_{m}_{i}")
                b = YF_ + 16*(m % 2) + 4*i
                for d, g in ([(AC + 8*y + 4*(i % 2), (GE, GO)[i // 2] + 4*m)] if own else []) + ([(AC + 16 + 4*(i % 2), G2 + 40*(i // 2) + 4*m)] if fifth else []):
                    a(f"v_mfma_f32_16x16x32_bf16 v[{d}:{d+3}], v[{b}:{b+3}], v[{g}:{g+3}], " + ("0" if (m == 0 and i < 2) else f"v[{d}:{d+3}]"))
            if m + 2 < 10: yread(y, m + 2)
    idft(0, 1, 0)
    a.dstamp("fin", 1)
    a.vmall()
    a.stamp(8); a.dstamp("c", 9)
    a("s_barrier")
    a.dstamp("fin", 2)
    a(f"s_cmp_eq_u32 s{S_W}, 1"); a("s_cbranch_scc1 L_idb")
    a(f"s_cmp_lg_u32 s{S_W}, 0"); a("s_cbranch_scc1 L_ida")
    idft(0, 0, 1)
    a.label("L_ida")
    idft(1, 1, 0)
    a("s_branch L_idc")
    a.label("L_idb")
    idft(1, 1, 1)
    a.label("L_idc")
    a("s_nop 7")
    a(f"""s_cmp_eq_u32 s38, 0
    s_cselect_b64 vcc, -1, 0""")
    for r in range(8): a(f"v_cndmask_b32 v{208 - 8 + r}, v{HF+8+r}, v{HF+r}, vcc")
    SR = 16
    for k in range(3):
        for r in range(4): a(f"v_cvt_pk_bf16_f32 v{176+4*k+r}, v{AC+8*k+2*r}, v{AC+8*k+2*r+1}")
        for rt in range(2):
            d = SR + 8*k + 4*rt; h = (HF + 8*k if k < 2 else 200) + 4*rt
            a(f"v_mfma_f32_16x16x32_bf16 v[{d}:{d+3}], v[{176+4*k}:{179+4*k}], v[{h}:{h+3}], 0")
    for k in range(3):
        if k == 2:
            a(f"s_cmp_ge_u32 s{S_W}, 2"); a("s_cbranch_scc1 L_nod")
        for rt in range(2):
            d = SR + 8*k + 4*rt
            for i in range(4): a(f"v_mul_f32 v{d+i}, {fl(2.0/(2048*640))}, v{d+i}")
            a(f"ds_write_b128 v{12 + k//2}, v[{d}:{d+3}] offset:{(k % 2)*10240 + rt*5120}")
    a.label("L_nod")
    a(f"""v_add_u32 v9, s7, v9
    s_mov_b32 s6, 2621440
    s_mov_b32 s7, 0x00020000
    v_add_u32 v9, {LX}, v9
    s_waitcnt lgkmcnt(0)""")
    a.dstamp("fin", 3)
    a("s_barrier")
    a("s_barrier")
    a.dstamp("fin", 4)
    for e in range(3): a(f"ds_read_b128 v[{96+4*e}:{99+4*e}], v9 offset:{e*4096}", tag=f"o{e}")
    for e in range(3):
        a.lgwait(f"o{e}")
        a(f"buffer_store_dwordx4 v[{96+4*e}:{99+4*e}], v{FX+e}, s[4:7], 0 offen {OPT['outsc']}")
    if a.prof: a.vmall()
    a.dstamp("fin", 5)
    a.stamp(9)
    a.dump(10, SS, S_V, 0, tmp=32)

def fused(prof=False):
    a = Asm(); a.prof = prof
    prologue(a)
    a(f"""s_cmp_lt_u32 s{S_IDX}, 6
    s_cbranch_scc1 L_mlp
    s_sub_u32 s{S_IDX}, s{S_IDX}, 6
    s_cmp_lt_u32 s{S_IDX}, 2
    s_cbranch_scc1 L_dft
    s_add_u32 s{S_IDX}, s{S_IDX}, 4
    s_cmp_lt_u32 s{S_IDX}, 11
    s_cbranch_scc1 L_mlp
    s_sub_u32 s{S_IDX}, s{S_IDX}, 9
    s_branch L_dft""")
    mlp(a)
    dft(a)
    phase_c(a)
    a.label("L_end")
    a("s_endpgm")
    return a

if __name__ == "__main__":
    import sys
    from build import HEAD
    NAME = "recurrent_scan__spectral_gfnet__mixer_channel_mlp__prompt_kernel"
    a = fused("prof" in sys.argv)
    s = HEAD + "; @launch grid=(256,1,1) block=(512,1,1) lds=163840\n"
    s += '.amdgcn_target "amdgcn-amd-amdhsa--gfx950"\n.text\n'
    s += f".globl {NAME}\n.p2align 8\n.type {NAME},@function\n{NAME}:\n" + a.text()
    s += "CODE_END:\n    s_endpgm\n.p2align 6\n.type ORDER_TAB,@object\nORDER_TAB:\n" + "".join(f".long {x}\n" for x in order_table()) + '.section .rodata,"a"\n' + kernel_desc(NAME, 256, sgpr=102)
    open(sys.argv[1], "w").write(s)
    print("nops", a.nops, "lines", len(a.lines))
```
